```python
import torch

def _softmax(x, axis=-1):
    return torch.softmax(x, dim=axis)
def _gelu(x):
    return torch.nn.functional.gelu(x, approximate="tanh")
def _silu(x):
    return torch.nn.functional.silu(x)
def _sigmoid(x):
    return torch.sigmoid(x)
def _layernorm(x, axis=-1, eps=1e-5):
    m = x.mean(dim=axis, keepdim=True)
    v = x.var(dim=axis, keepdim=True, unbiased=False)
    return (x - m) / torch.sqrt(v + eps)
def _scatter_add(tgt, idx, src, axis=0):
    return tgt.clone().index_add_(axis, idx, src)
def _segment_sum(src, seg, n):
    out = torch.zeros((n,) + src.shape[1:], dtype=src.dtype)
    return out.index_add_(0, seg, src)
def _pad(x, pw):
    flat = tuple(v for pair in reversed(pw) for v in pair)
    return torch.nn.functional.pad(x, flat)

kernel_name = 'recurrent_scan__compressed_kv_cla__geglu_ffn__decode'

def setup_inputs():

    _w = (lambda a: (lambda t: t.to(torch.bfloat16) if t.is_floating_point() else t)(torch.as_tensor(a)))
    def _A_setup():
        B, H, Sq, Sk, D, M = 2, 32, 1, 4096, 128, 576
        Dc = 4 * D
        return {
            "x": _w((lambda *s: torch.randn(*s, dtype=torch.bfloat16) * 0.05)(B, Sq, M)),
            "c_kv": _w((lambda *s: torch.randn(*s, dtype=torch.bfloat16) * 0.2)(B, Sk, Dc)),
            "w_q": _w((lambda *s: torch.randn(*s, dtype=torch.bfloat16) * 3.2)(M, H, D) * (M ** -0.5)),
            "w_uk": _w((lambda *s: torch.randn(*s, dtype=torch.bfloat16) * 3.2)(Dc, H, D) * (Dc ** -0.5)),
            "w_uv": _w((lambda *s: torch.randn(*s, dtype=torch.bfloat16) * 0.2)(Dc, H, D) * (Dc ** -0.5)),
            "w_o": _w((lambda *s: torch.randn(*s, dtype=torch.bfloat16) * 0.2)(H, D, M) * ((H * D) ** -0.5)),
        }
    _A_in = _A_setup()

    def _B_setup():
        B, S, D, F = 2, 1, 576, 4608
        return {
            "x": _w((lambda *s: torch.randn(*s, dtype=torch.bfloat16) * 0.05)(B, S, D)),
            "w_gate": _w((lambda *s: torch.randn(*s, dtype=torch.bfloat16) * 0.1)(D, F)),
            "w_up": _w((lambda *s: torch.randn(*s, dtype=torch.bfloat16) * 0.1)(D, F)),
            "w_down": _w((lambda *s: torch.randn(*s, dtype=torch.bfloat16) * 0.1)(F, D)),
        }
    _B_in = _B_setup()

    return {
        "A_x": _A_in["x"],
        "A_c_kv": _A_in["c_kv"],
        "A_w_q": _A_in["w_q"],
        "A_w_uk": _A_in["w_uk"],
        "A_w_uv": _A_in["w_uv"],
        "A_w_o": _A_in["w_o"],
        "B_x": _B_in["x"],
        "B_w_gate": _B_in["w_gate"],
        "B_w_up": _B_in["w_up"],
        "B_w_down": _B_in["w_down"],
    }

def reference(A_x, A_c_kv, A_w_q, A_w_uk, A_w_uv, A_w_o, B_x, B_w_gate, B_w_up, B_w_down):
    def _A_ref(x, c_kv, w_q, w_uk, w_uv, w_o):
        B, Sq, M = x.shape[0], x.shape[1], x.shape[2]
        Sk = c_kv.shape[1]
        H, D = w_q.shape[1], w_q.shape[2]
        q = torch.einsum("bqm,mhd->bhqd", x, w_q)
        k = torch.einsum("bkc,chd->bhkd", c_kv, w_uk)
        v = torch.einsum("bkc,chd->bhkd", c_kv, w_uv)
        scores = torch.einsum("bhqd,bhkd->bhqk", q, k) * (D ** -0.5)
        off = Sk - Sq
        qi = torch.arange(Sq)[:, None]
        kj = torch.arange(Sk)[None, :]
        cmask = kj <= (qi + off)
        scores = torch.where(cmask[None, None], scores, -1e9)
        p = _softmax(scores, axis=-1)
        ctx = torch.einsum("bhqk,bhkd->bhqd", p, v)
        return torch.einsum("bhqd,hdm->bqm", ctx, w_o)

    def _B_ref(x, w_gate, w_up, w_down):
        return (_gelu(x @ w_gate) * (x @ w_up)) @ w_down

    x = A_x
    xn = _layernorm(x, axis=-1)
    s = _A_ref(xn, A_c_kv, A_w_q, A_w_uk, A_w_uv, A_w_o)
    g = _silu(_B_ref(xn, B_w_gate, B_w_up, B_w_down))
    return x + s * g
```

```python
import re

TRANS = ("v_exp_f32", "v_log_f32", "v_rcp_f32", "v_rsq_f32", "v_sqrt_f32", "v_sin_f32", "v_cos_f32")

def regs_of(op):
    op = op.strip()
    out = set()
    m = re.fullmatch(r"-?\|?(?:abs\()?([vas])\[(\d+):(\d+)\]\)?\|?", op)
    if m:
        for i in range(int(m.group(2)), int(m.group(3)) + 1):
            out.add(m.group(1) + str(i))
        return out
    m = re.fullmatch(r"-?\|?(?:abs\()?([vas])(\d+)\)?\|?", op)
    if m:
        out.add(m.group(1) + m.group(2))
        return out
    if op in ("vcc", "vcc_lo", "vcc_hi"):
        out.add("vcc")
    elif op in ("exec", "exec_lo", "exec_hi"):
        out.add("exec")
    elif op == "m0":
        out.add("m0")
    return out

def split_ops(s):
    parts = s.split(None, 1)
    mn = parts[0]
    if len(parts) == 1:
        return mn, [], ""
    rest = parts[1]
    ops = []
    depth = 0
    cur = ""
    for ch in rest:
        if ch == "[":
            depth += 1
        if ch == "]":
            depth -= 1
        if ch == "," and depth == 0:
            ops.append(cur.strip())
            cur = ""
        else:
            cur += ch
    last = cur.strip()
    toks = last.split()
    mods = ""
    if toks:
        ops.append(toks[0])
        mods = " ".join(toks[1:])
    return mn, ops, mods

class Ins:
    __slots__ = ("mn", "cls", "dst", "src", "srcc", "states", "dpp", "store_data", "lds")

def classify(s):
    mn, ops, mods = split_ops(s)
    I = Ins()
    I.mn = mn
    I.dst, I.src, I.srcc = set(), set(), set()
    I.states = 1
    I.dpp = ("row_" in mods) or ("quad_perm" in mods) or mn.endswith("_dpp")
    I.store_data = set()
    I.lds = False
    R = [regs_of(o) for o in ops]
    if mn == "s_nop":
        I.cls = "nop"
        I.states = int(ops[0], 0) + 1
    elif mn.startswith("v_mfma"):
        I.cls = "mfma"
        I.dst = R[0]
        I.src = R[1] | R[2]
        I.srcc = R[3]
    elif mn.startswith("v_"):
        I.cls = "valu"
        if mn.startswith("v_permlane"):
            I.dst = R[0] | R[1]
            I.src = R[0] | R[1]
        else:
            I.dst = set(R[0])
            k = 1
            if mn.startswith(("v_add_co", "v_sub_co", "v_addc_co", "v_subb_co")):
                I.dst |= R[1]
                k = 2
            for r in R[k:]:
                I.src |= r
            if mn.startswith(("v_fmac", "v_pk_fmac", "v_dot2c", "v_writelane")) or I.dpp:
                I.src |= R[0]
            if mn.startswith("v_cndmask") and len(ops) == 3:
                I.src.add("vcc")
    elif mn.startswith(("buffer_", "global_")):
        I.cls = "vmem"
        I.lds = (" lds" in " " + mods) or ("_lds_" in mn)
        if "load" in mn and not I.lds:
            I.dst = R[0]
            for r in R[1:]:
                I.src |= r
        else:
            for r in R:
                I.src |= r
            if "store" in mn and ("x3" in mn or "x4" in mn):
                I.store_data = R[0] if mn.startswith("buffer_") else R[1]
        if I.lds:
            I.src.add("m0")
    elif mn.startswith("ds_"):
        I.cls = "ds"
        if mn.startswith(("ds_read", "ds_bpermute", "ds_permute", "ds_swizzle")):
            I.dst = R[0]
            for r in R[1:]:
                I.src |= r
        else:
            for r in R:
                I.src |= r
    elif mn.startswith("s_"):
        I.cls = "salu"
        if mn.startswith(("s_cmp", "s_bitcmp", "s_cbranch", "s_branch", "s_waitcnt", "s_barrier", "s_endpgm", "s_setprio", "s_sleep")):
            for r in R:
                I.src |= r
        else:
            if R:
                I.dst = R[0]
            for r in R[1:]:
                I.src |= r
    else:
        raise ValueError("unknown instr " + s)
    return I

def need(p, c):
    n = 0
    vd = {r for r in p.dst if r[0] in "va" and r != "vcc"}
    sd = {r for r in p.dst if r[0] == "s" or r == "vcc"}
    if p.cls == "valu":
        if c.cls == "mfma" and vd & (c.src | c.srcc):
            n = max(n, 2)
        if c.cls == "valu":
            if (c.dpp or c.mn.startswith("v_permlane")) and vd & c.src:
                n = max(n, 2)
            if c.mn.startswith(("v_readlane", "v_readfirstlane")) and vd & c.src:
                n = max(n, 1)
            if p.mn.startswith(TRANS) and vd & c.src:
                n = max(n, 1)
            if sd & c.src:
                n = max(n, 4 if c.mn.startswith(("v_readlane", "v_writelane")) else 2)
        if c.cls == "vmem" and sd & c.src:
            n = max(n, 5)
        if c.cls == "salu" and sd & c.src:
            n = max(n, 1)
    if p.cls == "mfma":
        np_ = 8 if "32x32" in p.mn else 4
        big = 12 if np_ == 8 else 8
        if c.cls == "mfma":
            if vd & c.src:
                n = max(n, big)
            if vd & c.srcc and vd != c.srcc:
                n = max(n, big - 2)
            if vd & c.dst and not (vd & c.srcc):
                n = max(n, big)
        elif c.cls in ("valu", "vmem", "ds"):
            if vd & (c.src | c.dst):
                n = max(n, big)
        if c.cls == "valu" and p.srcc & c.dst:
            n = max(n, 7 if np_ == 8 else 3)
    if p.cls == "salu" and "m0" in p.dst and c.cls == "vmem" and c.lds:
        n = max(n, 1)
    if p.cls == "vmem" and p.store_data and (p.store_data & c.dst):
        n = max(n, 2)
    return n

class Asm:
    def __init__(self):
        self.out = []
        self.hist = []
        self.vm = []
        self.ds = []
        self.nlab = 0
        self.nops = 0

    def raw(self, s):
        self.out.append(s)

    def c(self, s):
        self.out.append("    ; " + s)

    def label(self, name):
        self.out.append(name + ":")

    def newlab(self, base="L"):
        self.nlab += 1
        return f"{base}_{self.nlab}"

    def I(self, s, tag=None):
        ins = classify(s)
        dist = 0
        pad = 0
        for p in reversed(self.hist[-24:]):
            k = need(p, ins)
            if k > dist:
                pad = max(pad, k - dist)
            dist += p.states
            if dist >= 20:
                break
        while pad > 0:
            k = min(pad, 16)
            self.out.append(f"    s_nop {k-1}")
            self.hist.append(classify(f"s_nop {k-1}"))
            self.nops += 1
            pad -= k
        self.out.append("    " + s)
        self.hist.append(ins)
        if ins.cls == "vmem":
            self.vm.append(tag)
        elif ins.cls == "ds":
            self.ds.append(tag)
        return ins

    def __call__(self, s, tag=None):
        for line in s.strip().split("\n"):
            line = line.split(";")[0].strip()
            if line:
                self.I(line, tag)

    def _after(self, lst, tag):
        idx = [i for i, t in enumerate(lst) if t == tag]
        assert idx, f"no op tagged {tag}"
        return len(lst) - 1 - idx[-1]

    def wait_vm(self, tag=None):
        n = 0 if tag is None else min(self._after(self.vm, tag), 63)
        self.I(f"s_waitcnt vmcnt({n})")

    def wait_vm_idx(self, idx):
        n = min(len(self.vm) - 1 - idx, 63)
        self.I(f"s_waitcnt vmcnt({n})")

    def wait_ds(self, tag=None):
        n = 0 if tag is None else min(self._after(self.ds, tag), 15)
        self.I(f"s_waitcnt lgkmcnt({n})")

    def reset_counters(self):
        self.vm = []
        self.ds = []

    def text(self):
        return "\n".join(self.out) + "\n"
```

```python
import sys, json
from asmlib import Asm

NAME = "recurrent_scan__compressed_kv_cla__geglu_ffn__decode"

DEF = dict(
    ts=0,
    nt_w=1,
    nt_ckv=1,
    pf=1,
    gb_c1=10,
    gb_q=18,
    f1_d1=6, f1_sw=16, f1_d2=12,
    f2_d1=3, f2_sw=9, f2_d2=12,
    p3_first=10,
    spin=60000,
)

Q_OFF  = 0x000000
QA_OFF = 0x020000
BIG0   = 0x040000
OP_OFF = BIG0
CX_OFF = OP_OFF + 0x200000
SP_OFF = CX_OFF + 0x80000
YP_OFF = SP_OFF + 0x90000
H_OFF  = YP_OFF + 0x36000
ML_OFF = H_OFF + 0x4800
BIG1   = ML_OFF + 0x2000
NCLR = 7
assert BIG1 - BIG0 <= 512 * NCLR * 1024
TS_OFF = 0x800000
WS_SIZE = 0x1000000
OOB = 0x7f000000

XN = 0
RED = 0x1000
FBASE = 0x2000
WQL = 0x1D000
LDS_SIZE = 0x26000
CKV = 0
QAL = 0x20000
MX = 0x24000
PB = 0x24400
QS = 0x25400
WUVL = 0
WOL = 0x8000
OPL = 0x12000

sW, sH, sJ = "s6", "s7", "s8"
WS, DBG = "s[16:19]", "s[20:23]"
R0, R1, R2, R3, R4 = "s[24:27]", "s[28:31]", "s[32:35]", "s[36:39]", "s[40:43]"
sCNT = "s60"
vL, vN, vG, vRR, vCC8, vL16 = "v1", "v2", "v3", "v4", "v5", "v6"

def vr(b, n=1):
    return f"v{b}" if n == 1 else f"v[{b}:{b+n-1}]"
def ar(b, n=1):
    return f"a{b}" if n == 1 else f"a[{b}:{b+n-1}]"

class Gen:
    def __init__(self, cfg):
        self.cfg = dict(DEF); self.cfg.update(cfg)
        self.a = Asm()
        self.nts = 0

    def ts(self, k):
        if self.cfg["ts"]:
            self.a(f"s_memrealtime s[{64+2*k}:{65+2*k}]\ns_waitcnt lgkmcnt(0)")

    def ts_flush(self):
        a = self.a
        if not self.cfg["ts"]:
            return
        a.c("diagnostic: store stamps")
        a(f"""s_lshl_b32 s3, s2, 2
              s_add_u32 s3, s3, {sW}
              s_lshl_b32 s3, s3, 7
              s_add_u32 s3, s3, {TS_OFF}
              v_mov_b32 v8, 0""")
        for k in range(16):
            a(f"v_mov_b32 v10, s{64+2*k}\nv_mov_b32 v11, s{65+2*k}")
            a(f"buffer_store_dwordx2 v[10:11], v8, {WS}, s3 offen offset:{8*k}")
            a("s_nop 1")

    def srd(self, reg, slot, size):
        base = int(reg[2:].split(":")[0])
        self.a(f"s_load_dwordx2 s[{base}:{base+1}], s[0:1], {slot*8}\ns_mov_b32 s{base+2}, {size}\ns_mov_b32 s{base+3}, 0x20000")

    def nt(self, k):
        return " nt" if self.cfg[k] else ""

    def check_regs(self, regs, tmp):
        a = self.a
        regs = list(regs)
        if len(regs) == 1:
            a(f"v_cmp_eq_u32 vcc, -1, {regs[0]}")
            return
        if len(regs) == 2:
            a(f"v_max_u32 {tmp}, {regs[0]}, {regs[1]}")
            rest = []
        else:
            a(f"v_max3_u32 {tmp}, {regs[0]}, {regs[1]}, {regs[2]}")
            rest = regs[3:]
        while rest:
            if len(rest) >= 2:
                a(f"v_max3_u32 {tmp}, {tmp}, {rest[0]}, {rest[1]}"); rest = rest[2:]
            else:
                a(f"v_max_u32 {tmp}, {tmp}, {rest[0]}"); rest = rest[1:]
        a(f"v_cmp_eq_u32 vcc, -1, {tmp}")

    def poll(self, loads, regs, tmp, tag, issued=False):
        a = self.a
        if not issued:
            for s in loads:
                a(s, tag)
        a(f"s_mov_b32 {sCNT}, {self.cfg['spin']}")
        a.wait_vm(tag)
        top, ok = a.newlab("Lp"), a.newlab("Lok")
        a.label(top)
        self.check_regs(regs, tmp)
        a(f"s_cbranch_vccz {ok}")
        a(f"s_sub_u32 {sCNT}, {sCNT}, 1\ns_cbranch_scc1 {ok}")
        keep = list(a.vm)
        for s in loads:
            a(s)
        a("s_waitcnt vmcnt(0)")
        a.vm = keep
        a(f"s_branch {top}")
        a.label(ok)

    def flags_wait(self, reg, tag, bit=None):
        a = self.a
        a(f"s_mov_b32 {sCNT}, {self.cfg['spin']}")
        a.wait_vm(tag)
        top, ok = a.newlab("Lf"), a.newlab("Lfok")
        a.label(top)
        a(f"v_cmp_ne_u32 vcc, 16, {reg}")
        if bit is None:
            a(f"s_cbranch_vccz {ok}")
        else:
            a(f"s_bitcmp0_b64 vcc, {bit}\ns_cbranch_scc1 {ok}")
        a(f"s_sub_u32 {sCNT}, {sCNT}, 1\ns_cbranch_scc1 {ok}")
        keep = list(a.vm)
        a(f"v_lshlrev_b32 v7, 2, {vL}")
        a(f"buffer_load_dword {reg}, v7, {DBG}, 0 offen sc1")
        a("s_waitcnt vmcnt(0)")
        a.vm = keep
        a(f"s_branch {top}")
        a.label(ok)

    def flags_load(self, reg, tag):
        self.a(f"v_lshlrev_b32 v7, 2, {vL}")
        self.a(f"buffer_load_dword {reg}, v7, {DBG}, 0 offen sc1", tag)

    def barrier(self):
        self.a("s_barrier")

    def rows1152_voffs(self, base):
        a = self.a
        a(f"s_movk_i32 s3, 1821")
        for i in range(9):
            d = vr(base + i)
            a(f"""v_add_u32 v7, {64*i}, {vL}
                  v_mul_u32_u24 v8, s3, v7
                  v_lshrrev_b32 v8, 18, v8
                  v_lshlrev_b32 v8, 5, v8
                  v_lshlrev_b32 v7, 4, v7
                  v_xor_b32 v7, v7, v8""")
            a(f"v_subrev_u32 {d}, {(i & 3) * 1024}, v7")

    def dma1152(self, srd, vbase, s_mem, s_lds, ntk, tag, i):
        a = self.a
        if i % 4 == 0:
            a(f"s_add_u32 m0, {s_lds}, {i*1024}")
        a(f"buffer_load_dwordx4 {vr(vbase+i)}, {srd}, {s_mem} offen offset:{(i&3)*1024}{self.nt(ntk)} lds", tag)

    def prologue(self):
        a = self.a
        c = self.cfg
        a("s_cmp_ge_u32 s2, 256\ns_cbranch_scc1 L_end")
        self.ts(0)
        self.srd(WS, 12, WS_SIZE)
        self.srd(DBG, 11, 256)
        a(f"""s_lshr_b32 s10, s2, 3
              s_and_b32 s9, s2, 7
              v_lshrrev_b32 v7, 6, v0
              v_and_b32 {vL}, 63, v0
              v_readfirstlane_b32 {sW}, v7
              s_and_b32 s11, s10, 15
              s_lshr_b32 s3, s11, 2
              s_lshl_b32 {sH}, s9, 2
              s_add_u32 {sH}, {sH}, s3
              s_and_b32 {sJ}, s11, 3""")
        if c["pf"]:
            a.c("pull the kernel's own code into L2 (16 lines per wave)")
            a("s_getpc_b64 s[4:5]")
            a.label("L_pc")
            a(f"""s_and_b32 s3, s10, 3
                  s_lshl_b32 s3, s3, 2
                  s_add_u32 s3, s3, {sW}
                  s_lshl_b32 s3, s3, 10
                  v_lshl_add_u32 v7, {vL}, 6, s3
                  v_min_u32 v7, L_end-L_pc, v7
                  s_mov_b64 exec, 0xffff""")
            a("global_load_dword v9, v7, s[4:5]", "pf")
            a("s_mov_b64 exec, -1")
        a(f"""v_and_b32 {vN}, 15, {vL}
              v_lshrrev_b32 {vG}, 4, {vL}
              v_lshrrev_b32 {vRR}, 2, {vN}
              v_and_b32 {vCC8}, 3, {vL}
              v_lshlrev_b32 {vCC8}, 3, {vCC8}
              v_lshlrev_b32 {vL16}, 4, {vL}""")
        a("s_cmp_ge_u32 s10, 16\ns_cbranch_scc1 L_GB")

    def ga(self):
        a = self.a
        c = self.cfg
        pre_vm = list(a.vm)
        a.c("===== group A: q partial, clears, then FFN roles =====")
        self.srd(R0, 0, 2304)
        self.srd(R1, 2, 576*8192)
        vXA, vA, vB, vCL = "v12", "v13", "v14", "v15"
        a(f"""v_lshrrev_b32 v7, 5, {vL}
              v_mul_u32_u24 v7, 1152, v7
              v_and_b32 v8, 31, {vL}
              v_lshl_add_u32 {vXA}, v8, 3, v7
              v_lshl_add_u32 v16, v8, 2, v7""")
        a(f"""s_and_b32 s3, {sW}, 1
              s_lshl_b32 s3, s3, 7
              v_lshlrev_b32 v7, 5, {vG}
              v_lshlrev_b32 v8, 4, {vN}
              v_xor_b32 v7, v7, v8
              v_xor_b32 v7, s3, v7
              v_lshl_add_u32 {vA}, {vG}, 13, v7
              v_xor_b32 {vB}, 0x80, {vA}""")
        a(f"""s_lshl_b32 s12, {sH}, 2
              s_add_u32 s12, s12, {sJ}
              s_lshl_b32 s3, s12, 10
              s_lshl_b32 s13, {sW}, 8
              s_add_u32 s3, s3, s13
              v_add_u32 {vCL}, s3, {vL16}
              s_lshl_b32 s3, {sH}, 10
              s_lshl_b32 s13, {sJ}, 8
              s_add_u32 s3, s3, s13
              s_lshl_b32 s13, {sW}, 6
              s_add_u32 s3, s3, s13
              s_add_u32 s3, s3, {QA_OFF}
              v_bfe_u32 v7, {vL}, 2, 1
              v_lshlrev_b32 v7, 15, v7
              v_and_b32 v8, 3, {vL}
              v_lshl_add_u32 v7, v8, 4, v7
              v_add_u32 v7, s3, v7
              v_cmp_lt_u32 vcc, 15, {vL}
              v_cndmask_b32 {vCL}, {vCL}, v7, vcc
              v_mov_b32 v7, {OOB}
              v_cmp_lt_u32 vcc, 23, {vL}
              v_cndmask_b32 {vCL}, {vCL}, v7, vcc
              v_mov_b32 v20, -1
              v_mov_b32 v21, -1
              v_mov_b32 v22, -1
              v_mov_b32 v23, -1""")
        a(f"""s_mul_i32 s44, {sJ}, {144*8192}
              s_mul_i32 s3, {sW}, {36*8192}
              s_add_u32 s44, s44, s3
              s_lshl_b32 s3, {sH}, 8
              s_add_u32 s44, s44, s3
              s_mul_i32 s45, {sW}, {36*256}
              s_add_u32 s45, s45, {WQL}
              s_waitcnt lgkmcnt(0)""")
        X = 24
        for k in range(4):
            a(f"buffer_load_dwordx2 {vr(X+2*k,2)}, {vXA}, {R0}, 0 offen offset:{256*k}", "x")
        a(f"buffer_load_dword {vr(X+8)}, v16, {R0}, 0 offen offset:1024", "x")
        a(f"buffer_store_dwordx4 v[20:23], {vCL}, {WS}, 0 offen sc1", "eclr")
        for i in range(9):
            a(f"s_add_u32 m0, s45, {i*1024}")
            if i:
                a(f"s_add_u32 s44, s44, {4*8192}")
            a(f"buffer_load_dwordx4 {vA if i%2==0 else vB}, {R1}, s44 offen{self.nt('nt_w')} lds", "wq")
        self.ts(1)
        a(f"s_cmp_lt_u32 s11, 9\ns_cbranch_scc0 L_ga_f2ptr")
        self.srd(R2, 7, 576*9216)
        self.srd(R3, 8, 576*9216)
        self.srd(R4, 10, 2304)
        a("s_branch L_ga_ptrdone")
        a.label("L_ga_f2ptr")
        self.srd(R2, 9, 4608*1152)
        a.label("L_ga_ptrdone")
        a(f"""v_mov_b32 v17, 1
              s_lshl_b32 s3, {sH}, 2
              v_mov_b32 v18, s3
              v_mov_b32 v7, {OOB}
              v_cmp_eq_u32 vcc, 0, {vL}
              v_cndmask_b32 v18, v7, v18, vcc""")
        a.wait_vm("eclr")
        a(f"buffer_atomic_add v17, v18, {DBG}, 0 offen sc1", "at1")
        self.ts(2)
        U = 34
        for k in range(9):
            a(f"v_lshlrev_b32 {vr(U+2*k)}, 16, {vr(X+k)}\nv_and_b32 {vr(U+2*k+1)}, 0xffff0000, {vr(X+k)}")
        a(f"v_pk_add_f32 v[52:53], {vr(U,2)}, {vr(U+2,2)}")
        for k in range(2, 9):
            a(f"v_pk_add_f32 v[52:53], v[52:53], {vr(U+2*k,2)}")
        a("v_add_f32 v52, v52, v53")
        self.red32("v52", "v53")
        a("v_mul_f32 v52, 0x3ae38e39, v52")
        a("v_cvt_pk_bf16_f32 v54, v52, v52\nv_and_b32 v54, 0xffff0000, v54\nv_mov_b32 v55, v54\nv_mov_b32 v53, v52")
        D = 56
        for k in range(9):
            a(f"v_pk_add_f32 {vr(D+2*k,2)}, {vr(U+2*k,2)}, v[52:53] neg_lo:[0,1] neg_hi:[0,1]")
        a(f"v_pk_mul_f32 v[74:75], {vr(D,2)}, {vr(D,2)}")
        for k in range(1, 9):
            a(f"v_pk_fma_f32 v[74:75], {vr(D+2*k,2)}, {vr(D+2*k,2)}, v[74:75]")
        a("v_add_f32 v74, v74, v75")
        for k in range(9):
            a(f"v_pk_add_f32 {vr(D+2*k,2)}, {vr(U+2*k,2)}, v[54:55] neg_lo:[0,1] neg_hi:[0,1]")
        self.red32("v74", "v75")
        a("""v_mul_f32 v74, 0x3ae38e39, v74
             v_cvt_pk_bf16_f32 v74, v74, v74
             v_and_b32 v74, 0xffff0000, v74
             v_add_f32 v74, 0x3727c5ac, v74
             v_cvt_pk_bf16_f32 v74, v74, v74
             v_and_b32 v74, 0xffff0000, v74
             v_sqrt_f32 v74, v74
             v_cvt_pk_bf16_f32 v74, v74, v74
             v_and_b32 v74, 0xffff0000, v74
             v_rcp_f32 v74, v74""")
        for k in range(9):
            a(f"v_cvt_pk_bf16_f32 {vr(X+k)}, {vr(D+2*k)}, {vr(D+2*k+1)}")
        a("v_mov_b32 v75, v74")
        for k in range(9):
            a(f"v_lshlrev_b32 {vr(U+2*k)}, 16, {vr(X+k)}\nv_and_b32 {vr(U+2*k+1)}, 0xffff0000, {vr(X+k)}")
        for k in range(9):
            a(f"v_pk_mul_f32 {vr(U+2*k,2)}, {vr(U+2*k,2)}, v[74:75]")
        for k in range(9):
            a(f"v_cvt_pk_bf16_f32 {vr(X+k)}, {vr(U+2*k)}, {vr(U+2*k+1)}")
        for k in range(4):
            a(f"ds_write_b64 {vXA}, {vr(X+2*k,2)} offset:{XN+256*k}")
        a(f"ds_write_b32 v16, {vr(X+8)} offset:{XN+1024}")
        self.ts(3)
        a(f"""s_lshl_b32 s3, s12, 2
              s_add_u32 s3, s3, {sW}
              s_mul_i32 s46, s3, {NCLR*1024}
              s_add_u32 s46, s46, {BIG0}
              s_add_u32 s47, s46, 4096""")
        for k in range(NCLR):
            a(f"buffer_store_dwordx4 v[20:23], {vL16}, {WS}, {'s46' if k<4 else 's47'} offen offset:{(k&3)*1024} sc1", "bclr")
        vT0, vT1, vXB, vQS = "v76", "v77", "v78", "v79"
        a(f"""v_and_b32 v7, 1, {vG}
              v_lshl_add_u32 v80, v7, 2, {vRR}
              s_lshl_b32 s3, {sW}, 1
              v_xor_b32 v7, s3, v80
              v_lshl_add_u32 v7, v7, 5, {vCC8}
              v_lshl_add_u32 v8, {vG}, 2, {vRR}
              v_lshl_add_u32 v7, v8, 8, v7
              v_add_u32 {vT0}, {WQL}, v7
              v_xor_b32 {vT1}, 32, {vT0}
              v_and_b32 v7, 1, {vN}
              v_mul_u32_u24 v7, 1152, v7
              v_lshl_add_u32 v81, {vG}, 3, v7
              s_mul_i32 s3, {sJ}, 288
              v_add_u32 {vXB}, s3, v81
              s_lshl_b32 s3, s12, 10
              s_lshl_b32 s13, {sW}, 7
              s_add_u32 s3, s3, s13
              v_lshlrev_b32 v7, 9, {vN}
              v_lshl_add_u32 v7, {vG}, 4, v7
              v_add_u32 v7, s3, v7
              v_mov_b32 v82, {OOB}
              v_cmp_gt_u32 vcc, 2, {vN}
              v_cndmask_b32 {vQS}, v82, v7, vcc
              s_waitcnt lgkmcnt(0)""")
        XB = 84
        for s in range(4):
            a(f"ds_read2_b64 {vr(XB+4*s,4)}, {vXB} offset0:{8*s} offset1:{8*s+4}")
        a(f"ds_read_b64 {vr(XB+16,2)}, {vXB} offset:256")
        a("s_cmp_lt_u32 s11, 9\ns_cbranch_scc0 L_ga_notf1")
        save = (list(a.vm), list(a.ds))
        self.f1(vT0, vT1, vQS, XB)
        a.label("L_ga_notf1")
        a.vm, a.ds = list(save[0]), list(save[1])
        a("s_cmp_lt_u32 s11, 15\ns_cbranch_scc0 L_ga_idle")
        self.f2(vT0, vT1, vQS, XB)
        a.label("L_ga_idle")
        a.vm, a.ds = list(save[0]), list(save[1])
        self.p1a(vT0, vT1, vQS, XB)
        self.bigflag()
        self.ts(15)
        self.ts_flush()
        a("s_endpgm")
        a.vm = pre_vm
        a.ds = []

    def red32(self, x, t):
        a = self.a
        for r in (8, 4, 2, 1):
            a(f"v_add_f32_dpp {x}, {x}, {x} row_ror:{r} row_mask:0xf bank_mask:0xf")
        a(f"v_mov_b32 {t}, {x}\nv_permlane16_swap_b32 {x}, {t}\nv_add_f32 {x}, {x}, {t}")

    def p1a(self, vT0, vT1, vQS, XB):
        a = self.a
        a.wait_vm("wq")
        self.ts(4)
        self.barrier()
        W = 104
        for s in range(5):
            for t, vt in enumerate((vT0, vT1)):
                b = W + 18*t + 4*s
                a(f"ds_read_b64_tr_b16 {vr(b,2)}, {vt} offset:{32*s*256}", f"wq{s}")
                if s < 4:
                    a(f"ds_read_b64_tr_b16 {vr(b+2,2)}, {vt} offset:{(32*s+16)*256}", f"wq{s}")
        Dq = 140
        for s in range(5):
            a.wait_ds(f"wq{s}")
            for t in range(2):
                b = W + 18*t + 4*s
                cin = "0" if s == 0 else vr(Dq+4*t, 4)
                if s < 4:
                    a(f"v_mfma_f32_16x16x32_bf16 {vr(Dq+4*t,4)}, {vr(b,4)}, {vr(XB+4*s,4)}, {cin}")
                else:
                    a(f"v_mfma_f32_16x16x16_bf16 {vr(Dq+4*t,4)}, {vr(b,2)}, {vr(XB+16,2)}, {cin}")
        for t in range(2):
            a(f"buffer_store_dwordx4 {vr(Dq+4*t,4)}, {vQS}, {WS}, 0 offen offset:{64*t} sc1", "qst")
        self.ts(5)

    def bigflag(self):
        a = self.a
        a.wait_vm("bclr")
        a(f"buffer_atomic_add v17, v18, {DBG}, 0 offen offset:128 sc1", "at2")

    def stream(self, n, d1, sw, d2, issue, hooks):
        a = self.a
        for i in range(n):
            if i in hooks:
                hooks[i]()
            d = d1 if i < sw else d2
            if i - d >= 0:
                a.wait_vm(("st", i - d))
            issue(i)
        if n in hooks:
            hooks[n]()

    def f1(self, vT0, vT1, vQS, XBq):
        a = self.a
        c = self.cfg
        a.c("----- F1: gate/up columns, h publish, final reduce -----")
        sF = "s13"
        a(f"""s_mul_i32 {sF}, s9, 9
              s_add_u32 {sF}, {sF}, s11
              s_mul_i32 s48, {sW}, {144*9216}
              s_lshl_b32 s3, {sF}, 7
              s_add_u32 s48, s48, s3
              s_lshl_b32 s49, {sW}, 13
              s_add_u32 s49, s49, {FBASE}
              s_lshl_b32 s50, {sW}, 12
              s_add_u32 s50, s50, 0x22000
              v_lshrrev_b32 v7, 3, {vL}
              v_mul_u32_u24 v7, 9216, v7
              v_and_b32 v8, 7, {vL}
              v_lshlrev_b32 v8, 4, v8
              v_lshlrev_b32 v150, 5, {vG}
              v_xor_b32 v8, v8, v150
              v_add_u32 v150, v7, v8
              s_waitcnt lgkmcnt(0)""")
        vF = "v150"
        ops = []
        for s in range(5):
            for m in range(2):
                for i in range(4 if s < 4 else 2):
                    ops.append((s, m, i))
        def issue(k):
            s, m, i = ops[k]
            if s < 4:
                a(f"s_add_u32 m0, s49, {s*0x8000 + m*4096 + i*1024}")
            else:
                a(f"s_add_u32 m0, s50, {m*2048 + i*1024}")
            a(f"s_add_u32 s51, s48, {(32*s+8*i)*9216}")
            a(f"buffer_load_dwordx4 {vF}, {R2 if m==0 else R3}, s51 offen{self.nt('nt_w')} lds", ("st", k))
        XB = 152
        VT = 170
        ACC = 176
        FR = 208
        def setup():
            a(f"""s_mul_i32 s3, {sW}, 288
                  v_add_u32 v7, s3, v81""")
            for s in range(4):
                a(f"ds_read2_b64 {vr(XB+4*s,4)}, v7 offset0:{8*s} offset1:{8*s+4}")
            a(f"ds_read_b64 {vr(XB+16,2)}, v7 offset:256")
            a(f"""v_lshrrev_b32 v7, 1, v80
                  v_lshl_add_u32 v7, v7, 5, {vCC8}
                  v_lshl_add_u32 v8, {vG}, 2, {vRR}
                  v_lshl_add_u32 v7, v8, 7, v7
                  v_add_u32 {vr(VT)}, s49, v7""")
            for t in range(1, 4):
                a(f"v_xor_b32 {vr(VT+t)}, {32*t}, {vr(VT)}")
        def compute(s):
            last = max(k for k, o in enumerate(ops) if o[0] == s)
            a.wait_vm(("st", last))
            for m in range(2):
                for t in range(4):
                    b = FR + 16*m + 4*t
                    mo = m*4096 if s < 4 else m*2048
                    a(f"ds_read_b64_tr_b16 {vr(b,2)}, {vr(VT+t)} offset:{mo}", ("f", m, t))
                    if s < 4:
                        a(f"ds_read_b64_tr_b16 {vr(b+2,2)}, {vr(VT+t)} offset:{mo+2048}", ("f", m, t))
            if s < 3:
                for t in range(4):
                    a(f"v_add_u32 {vr(VT+t)}, 0x8000, {vr(VT+t)}")
            elif s == 3:
                a(f"s_sub_u32 s3, s50, s49\ns_sub_u32 s3, s3, {3*0x8000}")
                for t in range(4):
                    a(f"v_add_u32 {vr(VT+t)}, s3, {vr(VT+t)}")
            for m in range(2):
                for t in range(4):
                    b = FR + 16*m + 4*t
                    d = ACC + 16*m + 4*t
                    a.wait_ds(("f", m, t))
                    cin = "0" if s == 0 else vr(d, 4)
                    if s < 4:
                        a(f"v_mfma_f32_16x16x32_bf16 {vr(d,4)}, {vr(b,4)}, {vr(XB+4*s,4)}, {cin}")
                    else:
                        a(f"v_mfma_f32_16x16x16_bf16 {vr(d,4)}, {vr(b,2)}, {vr(XB+16,2)}, {cin}")
        d1, sw, d2 = c["f1_d1"], c["f1_sw"], c["f1_d2"]
        def h_p1a():
            self.p1a(vT0, vT1, vQS, XBq)
            self.barrier()
            setup()
            self.bigflag()
        hooks = {d1: h_p1a}
        done = set()
        def mk(s, extra=None):
            def f():
                if extra: extra()
                compute(s)
            return f
        for s in range(4):
            k = min(8*(s+1) + (d1 if 8*(s+1) + d1 < sw else d2), 36)
            k = max(k, d1 + 1)
            prev = hooks.get(k)
            def comb(prev=prev, s=s):
                if prev: prev()
                if s == 2:
                    self.flags_load("v9", "flg")
                compute(s)
            hooks[k] = comb
        self.stream(36, d1, sw, d2, issue, hooks)
        self.ts(6)
        a(f"""s_lshr_b32 s14, {sF}, 1
              s_lshl_b32 s3, s14, 5
              v_bfe_u32 v7, {vL}, 2, 1
              v_mul_u32_u24 v7, 1152, v7
              v_add3_u32 v240, v7, {vCC8}, s3""")
        a(f"buffer_load_dwordx2 v[242:243], v240, {R0}, 0 offen", "xres")
        compute(4)
        self.ts(7)
        a(f"""s_lshl_b32 s3, {sW}, 10
              s_add_u32 s3, s3, {RED}
              v_lshlrev_b32 v7, 4, {vN}
              v_lshl_add_u32 v7, {vG}, 5, v7
              v_add_u32 v7, s3, v7
              s_mov_b32 exec_lo, 0x00030003
              s_mov_b32 exec_hi, 0x00030003""")
        for m in range(2):
            for t in range(4):
                a(f"ds_write_b128 v7, {vr(ACC+16*m+4*t,4)} offset:{m*512+t*128}")
        a("s_mov_b64 exec, -1")
        self.flags_wait("v9", "flg")
        a(f"v_lshlrev_b32 v7, 3, {vL}\ns_waitcnt lgkmcnt(0)")
        self.barrier()
        a(f"s_cmp_eq_u32 {sW}, 0\ns_cbranch_scc0 L_f1_nopub")
        for m in range(2):
            for w in range(4):
                a(f"ds_read_b64 {vr(FR+8*m+2*w,2)}, v7 offset:{RED+w*1024+m*512}")
        a(f"""v_bfe_u32 v8, {vL}, 1, 1
              v_mul_u32_u24 v8, 9216, v8
              v_lshrrev_b32 v10, 5, {vL}
              v_lshl_add_u32 v8, v10, 6, v8
              v_lshl_add_u32 v8, {vRR}, 4, v8
              v_and_b32 v10, 1, {vG}
              v_lshl_add_u32 v8, v10, 3, v8
              v_and_b32 v10, 1, {vL}
              v_lshl_add_u32 v8, v10, 2, v8
              s_lshl_b32 s3, {sF}, 7
              s_add_u32 s3, s3, {H_OFF}
              s_waitcnt lgkmcnt(0)""")
        for m in range(2):
            b = FR + 8*m
            a(f"""v_pk_add_f32 {vr(b,2)}, {vr(b,2)}, {vr(b+2,2)}
                  v_pk_add_f32 {vr(b+4,2)}, {vr(b+4,2)}, {vr(b+6,2)}""")
        for m in range(2):
            b = FR + 8*m
            a(f"v_pk_add_f32 {vr(b,2)}, {vr(b,2)}, {vr(b+4,2)}")
        g0, g1, u0, u1 = vr(FR), vr(FR+1), vr(FR+8), vr(FR+9)
        t0, t1 = vr(FR+2), vr(FR+3)
        a(f"""v_cvt_pk_bf16_f32 {t0}, {g0}, {g1}
              v_cvt_pk_bf16_f32 {t1}, {u0}, {u1}
              v_lshlrev_b32 {g0}, 16, {t0}
              v_and_b32 {g1}, 0xffff0000, {t0}
              v_lshlrev_b32 {u0}, 16, {t1}
              v_and_b32 {u1}, 0xffff0000, {t1}
              s_mov_b32 s52, 0xbdd2d3e8
              v_mov_b32 {vr(FR+4)}, 0xc0135761
              v_mul_f32 {t0}, {g0}, {g0}
              v_mul_f32 {t1}, {g1}, {g1}
              v_fma_f32 {t0}, {t0}, s52, {vr(FR+4)}
              v_fma_f32 {t1}, {t1}, s52, {vr(FR+4)}
              v_mul_f32 {t0}, {t0}, {g0}
              v_mul_f32 {t1}, {t1}, {g1}
              v_exp_f32 {t0}, {t0}
              v_exp_f32 {t1}, {t1}
              v_add_f32 {t0}, 1.0, {t0}
              v_add_f32 {t1}, 1.0, {t1}
              v_rcp_f32 {t0}, {t0}
              v_rcp_f32 {t1}, {t1}
              v_mul_f32 {t0}, {t0}, {g0}
              v_mul_f32 {t1}, {t1}, {g1}
              v_cvt_pk_bf16_f32 {t0}, {t0}, {t1}
              v_and_b32 {t1}, 0xffff0000, {t0}
              v_lshlrev_b32 {t0}, 16, {t0}
              v_mul_f32 {t0}, {t0}, {u0}
              v_mul_f32 {t1}, {t1}, {u1}
              v_cvt_pk_bf16_f32 {t0}, {t0}, {t1}""")
        a(f"buffer_store_dword {t0}, v8, {WS}, s3 offen sc1")
        a.label("L_f1_nopub")
        self.ts(8)
        a(f"s_bitcmp0_b32 {sF}, 0\ns_cbranch_scc0 L_f1_exit")
        self.final()
        a.label("L_f1_exit")
        self.ts(15)
        self.ts_flush()
        a("s_endpgm")

    def final(self):
        a = self.a
        a.c("----- final: reduce partials of one 16-column tile -----")
        S, Y = 208, 224
        a(f"""s_lshl_b32 s44, s14, 14
              s_lshl_b32 s3, {sW}, 12
              s_add_u32 s44, s44, s3
              s_add_u32 s44, s44, {SP_OFF}
              s_mul_i32 s45, s14, 6144
              s_mul_i32 s3, {sW}, 1536
              s_add_u32 s45, s45, s3
              s_add_u32 s45, s45, {YP_OFF}
              v_mov_b32 v7, {OOB}
              v_cmp_gt_u32 vcc, 32, {vL}
              v_cndmask_b32 v10, v7, {vL16}, vcc
              s_mov_b32 {sCNT}, {self.cfg['spin']}
              s_mov_b32 s46, 1
              s_mov_b32 s47, 1""")
        top, nos, noy, ok = a.newlab("Lq"), a.newlab("Lq"), a.newlab("Lq"), a.newlab("Lq")
        a.label(top)
        a(f"s_cmp_eq_u32 s46, 0\ns_cbranch_scc1 {nos}")
        for i in range(4):
            a(f"buffer_load_dwordx4 {vr(S+4*i,4)}, {vL16}, {WS}, s44 offen offset:{1024*i} sc1")
        a.label(nos)
        a(f"s_cmp_eq_u32 s47, 0\ns_cbranch_scc1 {noy}")
        a(f"buffer_load_dwordx4 {vr(Y,4)}, {vL16}, {WS}, s45 offen sc1")
        a(f"buffer_load_dwordx4 {vr(Y+4,4)}, v10, {WS}, s45 offen offset:1024 sc1")
        a.label(noy)
        a("s_waitcnt vmcnt(0)")
        self.check_regs([vr(S+k) for k in range(16)], "v7")
        a("s_cmp_lg_u64 vcc, 0\ns_cselect_b32 s46, 1, 0")
        self.check_regs([vr(Y+k) for k in range(8)], "v7")
        a("s_cmp_lg_u64 vcc, 0\ns_cselect_b32 s47, 1, 0")
        a(f"s_or_b32 s3, s46, s47\ns_cbranch_scc0 {ok}")
        a(f"s_sub_u32 {sCNT}, {sCNT}, 1\ns_cbranch_scc0 {top}")
        a.label(ok)
        self.ts(9)
        for i in (0, 2):
            a(f"v_pk_add_f32 {vr(S+4*i,2)}, {vr(S+4*i,2)}, {vr(S+4*i+4,2)}\nv_pk_add_f32 {vr(S+4*i+2,2)}, {vr(S+4*i+2,2)}, {vr(S+4*i+6,2)}")
        a(f"v_pk_add_f32 {vr(Y,2)}, {vr(Y,2)}, {vr(Y+4,2)}\nv_pk_add_f32 {vr(Y+2,2)}, {vr(Y+2,2)}, {vr(Y+6,2)}")
        a(f"v_pk_add_f32 {vr(S,2)}, {vr(S,2)}, {vr(S+8,2)}\nv_pk_add_f32 {vr(S+2,2)}, {vr(S+2,2)}, {vr(S+10,2)}")
        for k in range(4):
            a(f"v_permlane32_swap_b32 {vr(S+k)}, {vr(Y+k)}")
        a(f"v_pk_add_f32 {vr(S,2)}, {vr(S,2)}, {vr(Y,2)}\nv_pk_add_f32 {vr(S+2,2)}, {vr(S+2,2)}, {vr(Y+2,2)}")
        for k in range(4):
            a(f"v_add_f32_dpp {vr(S+k)}, {vr(S+k)}, {vr(S+k)} row_ror:8 row_mask:0xf bank_mask:0xf")
        a(f"""s_lshl_b32 s3, {sW}, 9
              s_add_u32 s3, s3, {RED}
              v_and_b32 v7, 7, {vL}
              v_lshlrev_b32 v7, 4, v7
              v_lshl_add_u32 v8, {vG}, 7, v7
              v_add_u32 v8, s3, v8""")
        a(f"ds_write_b128 v8, {vr(S,4)}")
        a("s_waitcnt lgkmcnt(0)")
        self.barrier()
        a(f"s_cmp_eq_u32 {sW}, 0\ns_cbranch_scc0 L_f1_exit")
        a(f"""v_lshrrev_b32 v8, 3, {vL}
              v_and_b32 v10, 1, v8
              v_lshrrev_b32 v8, 1, v8
              v_lshlrev_b32 v8, 9, v8
              v_lshl_add_u32 v8, v10, 7, v8
              v_add_u32 v8, v8, v7""")
        a(f"ds_read_b128 {vr(S,4)}, v8 offset:{RED}")
        a(f"ds_read_b128 {vr(Y,4)}, v8 offset:{RED+256}")
        a("s_waitcnt lgkmcnt(0)")
        for k in range(4):
            a(f"v_permlane32_swap_b32 {vr(S+k)}, {vr(Y+k)}")
        a(f"v_pk_add_f32 {vr(S,2)}, {vr(S,2)}, {vr(Y,2)}\nv_pk_add_f32 {vr(S+2,2)}, {vr(S+2,2)}, {vr(Y+2,2)}")
        for k in range(4):
            a(f"v_add_f32_dpp {vr(S+k)}, {vr(S+k)}, {vr(S+k)} row_ror:8 row_mask:0xf bank_mask:0xf")
        for k in range(4):
            a(f"v_mov_b32 {vr(Y+k)}, {vr(S+k)}")
        for k in range(4):
            a(f"v_permlane16_swap_b32 {vr(S+k)}, {vr(Y+k)}")
        a(f"v_pk_add_f32 {vr(S,2)}, {vr(S,2)}, {vr(Y,2)}\nv_pk_add_f32 {vr(S+2,2)}, {vr(S+2,2)}, {vr(Y+2,2)}")
        for k in range(4):
            a(f"v_mov_b32 {vr(Y+k)}, {vr(S+k)}")
        for k in range(4):
            a(f"v_permlane32_swap_b32 {vr(S+k)}, {vr(Y+k)}")
        T = 232
        a(f"""v_cvt_pk_bf16_f32 {vr(T)}, {vr(Y)}, {vr(Y+1)}
              v_cvt_pk_bf16_f32 {vr(T+1)}, {vr(Y+2)}, {vr(Y+3)}
              v_cvt_pk_bf16_f32 {vr(T+2)}, {vr(S)}, {vr(S+1)}
              v_cvt_pk_bf16_f32 {vr(T+3)}, {vr(S+2)}, {vr(S+3)}""")
        for k in range(2):
            a(f"v_lshlrev_b32 {vr(Y+2*k)}, 16, {vr(T+k)}\nv_and_b32 {vr(Y+2*k+1)}, 0xffff0000, {vr(T+k)}")
        for k in range(4):
            a(f"v_mul_f32 {vr(S+4+k)}, 0xbfb8aa3b, {vr(Y+k)}")
        for k in range(4):
            a(f"v_exp_f32 {vr(S+4+k)}, {vr(S+4+k)}")
        for k in range(2):
            a(f"v_lshlrev_b32 {vr(S+2*k)}, 16, {vr(T+2+k)}\nv_and_b32 {vr(S+2*k+1)}, 0xffff0000, {vr(T+2+k)}")
        for k in range(4):
            a(f"v_add_f32 {vr(S+4+k)}, 1.0, {vr(S+4+k)}")
        for k in range(4):
            a(f"v_rcp_f32 {vr(S+4+k)}, {vr(S+4+k)}")
        for k in range(4):
            a(f"v_mul_f32 {vr(Y+k)}, {vr(Y+k)}, {vr(S+4+k)}")
        a(f"v_cvt_pk_bf16_f32 {vr(T)}, {vr(Y)}, {vr(Y+1)}\nv_cvt_pk_bf16_f32 {vr(T+1)}, {vr(Y+2)}, {vr(Y+3)}")
        for k in range(2):
            a(f"v_lshlrev_b32 {vr(Y+2*k)}, 16, {vr(T+k)}\nv_and_b32 {vr(Y+2*k+1)}, 0xffff0000, {vr(T+k)}")
        for k in range(4):
            a(f"v_mul_f32 {vr(Y+k)}, {vr(Y+k)}, {vr(S+k)}")
        a(f"v_cvt_pk_bf16_f32 {vr(T)}, {vr(Y)}, {vr(Y+1)}\nv_cvt_pk_bf16_f32 {vr(T+1)}, {vr(Y+2)}, {vr(Y+3)}")
        for k in range(2):
            a(f"v_lshlrev_b32 {vr(Y+2*k)}, 16, {vr(T+k)}\nv_and_b32 {vr(Y+2*k+1)}, 0xffff0000, {vr(T+k)}")
            a(f"v_lshlrev_b32 {vr(S+2*k)}, 16, {vr(242+k)}\nv_and_b32 {vr(S+2*k+1)}, 0xffff0000, {vr(242+k)}")
        for k in range(4):
            a(f"v_add_f32 {vr(Y+k)}, {vr(Y+k)}, {vr(S+k)}")
        a(f"""v_cvt_pk_bf16_f32 {vr(T)}, {vr(Y)}, {vr(Y+1)}
              v_cvt_pk_bf16_f32 {vr(T+1)}, {vr(Y+2)}, {vr(Y+3)}
              s_mov_b64 exec, 0xff""")
        a(f"buffer_store_dwordx2 {vr(T,2)}, v240, {R4}, 0 offen")
        a("s_mov_b64 exec, -1")

    def f2(self, vT0, vT1, vQS, XBq):
        a = self.a
        c = self.cfg
        a.c("----- F2: down projection rows -----")
        sF = "s13"
        VO = 150
        a(f"""s_mul_i32 {sF}, s9, 6
              s_add_u32 {sF}, {sF}, s11
              s_sub_u32 {sF}, {sF}, 9
              s_mul_i32 s48, {sF}, {96*1152}
              s_mul_i32 s3, {sW}, 9216
              s_add_u32 s48, s48, s3
              s_add_u32 s49, s3, {FBASE}""")
        self.rows1152_voffs(VO)
        a("s_waitcnt lgkmcnt(0)")
        def issue(k):
            s, i = divmod(k, 9)
            if i == 0 and s > 0:
                a(f"s_add_u32 s48, s48, {4*9216}\ns_add_u32 s49, s49, {4*9216}")
            self.dma1152(R2, VO, "s48", "s49", "nt_w", ("st", k), i)
        vA0, vA1, vHA, vYS = "v160", "v161", "v162", "v163"
        HB = 164
        FR = 0
        def setup():
            a(f"""v_lshrrev_b32 v7, 1, v80
                  v_xor_b32 v7, {sW}, v7
                  v_lshl_add_u32 v7, v7, 5, {vCC8}
                  v_lshl_add_u32 v8, {vG}, 2, {vRR}
                  v_mul_u32_u24 v8, 1152, v8
                  v_add_u32 v7, v7, v8
                  v_add_u32 {vA0}, {FBASE}, v7
                  v_add_u32 {vA1}, {FBASE + 64*1152}, v7
                  v_and_b32 v7, 1, {vN}
                  v_mul_u32_u24 v7, 9216, v7
                  v_lshl_add_u32 {vHA}, {vG}, 4, v7
                  s_mul_i32 s50, {sF}, 192
                  s_add_u32 s50, s50, {H_OFF}
                  v_lshlrev_b32 v7, 6, {vN}
                  v_lshl_add_u32 v7, {vG}, 4, v7
                  v_cmp_gt_u32 vcc, 2, {vN}
                  v_cndmask_b32 {vYS}, v82, v7, vcc
                  s_mul_i32 s51, {sW}, 6144
                  s_lshl_b32 s3, {sF}, 7
                  s_add_u32 s51, s51, s3
                  s_add_u32 s51, s51, {YP_OFF}""")
        def pre(s):
            a.wait_vm(("st", 9*s+8))
            self.barrier()
            for u in range(9):
                for hh in range(2):
                    va = vA0 if s < 2 else vA1
                    off = u*128 + ((32*s if s < 2 else 0) + 16*hh)*1152
                    a(f"ds_read_b64_tr_b16 {ar(FR+36*s+4*u+2*hh,2)}, {va} offset:{off}", ("fr", s, u))
        d1, sw, d2 = c["f2_d1"], c["f2_sw"], c["f2_d2"]
        def h_p1a():
            self.p1a(vT0, vT1, vQS, XBq)
            setup()
            self.bigflag()
        hooks = {d1: h_p1a}
        for s in range(2):
            k = min(9*(s+1) + (d1 if 9*(s+1) + d1 < sw else d2), 27)
            k = max(k, d1 + 1)
            prev = hooks.get(k)
            def comb(prev=prev, s=s):
                if prev: prev()
                if s == 1:
                    self.flags_load("v9", "flg")
                pre(s)
            hooks[k] = comb
        self.stream(27, d1, sw, d2, issue, hooks)
        self.ts(6)
        self.flags_wait("v9", "flg")
        loads = [f"buffer_load_dwordx4 {vr(HB+4*s,4)}, {vHA}, {WS}, s50 offen offset:{64*s} sc1" for s in range(3)]
        for s in loads:
            a(s, "hp")
        pre(2)
        self.ts(7)
        self.poll(loads, [vr(HB+k) for k in range(12)], "v7", "hp", issued=True)
        self.ts(8)
        ACC = 176
        a("s_waitcnt lgkmcnt(0)")
        for u in range(9):
            for s in range(3):
                cin = "0" if s == 0 else vr(ACC+4*u, 4)
                a(f"v_mfma_f32_16x16x32_bf16 {vr(ACC+4*u,4)}, {ar(FR+36*s+4*u,4)}, {vr(HB+4*s,4)}, {cin}")
            if u >= 1:
                a(f"buffer_store_dwordx4 {vr(ACC+4*(u-1),4)}, {vYS}, {WS}, s51 offen sc1")
                a(f"s_add_u32 s51, s51, {4*6144}")
        a(f"buffer_store_dwordx4 {vr(ACC+32,4)}, {vYS}, {WS}, s51 offen sc1")
        self.ts(15)
        self.ts_flush()
        a("s_endpgm")

    def gb(self):
        a = self.a
        c = self.cfg
        a.label("L_GB")
        a.c("===== group B: absorbed query, attention core, value/out projections =====")
        self.srd(R0, 3, 512*8192)
        self.srd(R1, 1, 2*4096*1024)
        self.srd(R2, 4, 512*8192)
        self.srd(R3, 5, 4096*1152)
        sB, sKT, sHG = "s13", "s14", "s15"
        vA, vB = "v12", "v13"
        VK = 16
        a(f"""s_lshl_b32 s3, s9, 3
              s_lshr_b32 {sKT}, s11, 1
              s_add_u32 s3, s3, {sKT}
              s_lshr_b32 {sB}, s3, 5
              s_and_b32 {sKT}, s3, 31
              s_and_b32 {sHG}, s11, 1
              s_lshl_b32 s12, {sH}, 2
              s_add_u32 s12, s12, {sJ}
              v_lshlrev_b32 v7, 5, {vG}
              v_lshlrev_b32 v8, 4, {vN}
              v_xor_b32 v7, v7, v8
              v_lshl_add_u32 {vA}, {vG}, 13, v7
              v_xor_b32 {vB}, 0x80, {vA}
              s_lshl_b32 s44, {sJ}, 20
              s_lshl_b32 s3, {sW}, 18
              s_add_u32 s44, s44, s3
              s_lshl_b32 s3, {sH}, 8
              s_add_u32 s44, s44, s3
              s_lshl_b32 s45, {sW}, 15
              s_lshl_b32 s46, {sB}, 22
              s_lshl_b32 s3, {sKT}, 17
              s_add_u32 s46, s46, s3
              s_add_u32 s46, s46, s45""")
        for k in range(8):
            a(f"v_xor_b32 {vr(VK+k)}, {32*k}, {vL16}")
        a("s_mov_b32 s47, s44\ns_waitcnt lgkmcnt(0)")
        for i in range(8):
            a(f"s_add_u32 m0, s45, {CKV + (24+i)*1024}")
            if i:
                a(f"s_add_u32 s47, s47, {4*8192}")
            a(f"buffer_load_dwordx4 {vA if i%2==0 else vB}, {R0}, s47 offen{self.nt('nt_w')} lds", "wuk")
        def key(i):
            if i % 4 == 0:
                a(f"s_add_u32 m0, s45, {CKV + i*1024}\ns_add_u32 s47, s46, {i*1024}")
            a(f"buffer_load_dwordx4 {vr(VK+(i&7))}, {R1}, s47 offen offset:{(i&3)*1024}{self.nt('nt_ckv')} lds", ("key", i))
        QR = 24
        qloads = [f"buffer_load_dwordx4 {vr(QR+4*p,4)}, {vL16}, {WS}, s48 offen offset:{1024*p} sc1" for p in range(4)]
        UK = 40
        XS = 72
        def uk_pre():
            a.wait_vm("wuk")
            a(f"""v_lshrrev_b32 v7, 1, {vG}
                  v_and_b32 v8, 7, {vN}
                  v_xor_b32 v7, v7, v8
                  v_lshlrev_b32 v7, 5, v7
                  v_and_b32 v8, 1, {vG}
                  v_lshl_add_u32 v76, v8, 4, v7
                  v_lshl_add_u32 v7, {vN}, 8, v76
                  s_add_u32 s3, s45, {CKV + 24*1024}
                  v_add_u32 {vr(XS)}, s3, v7""")
            for s in range(1, 4):
                a(f"v_xor_b32 {vr(XS+s)}, {64*s}, {vr(XS)}")
            for tt in range(2):
                for s in range(4):
                    a(f"ds_read_b128 {vr(UK+16*tt+4*s,4)}, {vr(XS+s)} offset:{4096*tt}")
            a("s_waitcnt lgkmcnt(0)")
        self.ts(1)
        for i in range(32):
            if i == c["gb_c1"]:
                self.flags_load("v9", "flg1")
            if i == c["gb_q"]:
                self.flags_wait("v9", "flg1", bit=sH)
                a(f"s_lshl_b32 s48, {sH}, 12")
                for s in qloads:
                    a(s, "qp")
                self.ts(2)
            if i == 24:
                uk_pre()
            key(i)
        self.flags_load("v9", "flg2")
        self.ts(3)
        SA, QB, PV = 80, 84, 88
        a(f"""v_lshl_add_u32 v7, {vN}, 10, v76
              v_add_u32 {vr(SA)}, s45, v7
              v_add_u32 {vr(QB)}, {QAL}, v7""")
        for s in range(1, 4):
            a(f"v_xor_b32 {vr(SA+s)}, {64*s}, {vr(SA)}\nv_xor_b32 {vr(QB+s)}, {64*s}, {vr(QB)}")
        a(f"""v_and_b32 v7, 1, {vG}
              v_lshl_add_u32 v77, v7, 2, {vRR}
              v_lshl_add_u32 v78, v77, 5, {vCC8}
              v_lshl_add_u32 v8, {vG}, 2, {vRR}
              v_lshl_add_u32 v7, v8, 10, v78
              s_lshl_b32 s3, {sW}, 8
              v_add_u32 {vr(PV)}, s3, v7""")
        for t in range(1, 8):
            a(f"v_xor_b32 {vr(PV+t)}, {32*t}, {vr(PV)}")
        a(f"""s_lshl_b32 s3, {sW}, 9
              s_add_u32 s3, s3, {QS}
              v_lshl_add_u32 v96, {vL}, 3, s3
              v_and_b32 v7, 1, {vN}
              v_lshlrev_b32 v8, 8, v7
              v_lshl_add_u32 v8, {vG}, 4, v8
              v_add_u32 v97, s3, v8
              v_lshlrev_b32 v7, 15, v7
              v_bfe_u32 v8, {vN}, 1, 1
              v_lshl_add_u32 v7, v8, 5, v7
              v_lshl_add_u32 v7, {vG}, 3, v7
              v_mov_b32 v79, {OOB}
              v_cmp_gt_u32 vcc, 4, {vN}
              v_cndmask_b32 v98, v79, v7, vcc
              s_lshl_b32 s49, {sH}, 10
              s_lshl_b32 s3, {sJ}, 8
              s_add_u32 s49, s49, s3
              s_lshl_b32 s3, {sW}, 6
              s_add_u32 s49, s49, s3
              s_add_u32 s49, s49, {QA_OFF}
              v_cmp_ne_u32 s[62:63], 0, v8
              s_mov_b32 s50, 0x3e0293ee""")
        self.poll(qloads, [vr(QR+k) for k in range(16)], "v7", "qp", issued=True)
        self.ts(4)
        a(f"""v_pk_add_f32 {vr(QR,2)}, {vr(QR,2)}, {vr(QR+4,2)}
              v_pk_add_f32 {vr(QR+2,2)}, {vr(QR+2,2)}, {vr(QR+6,2)}
              v_pk_add_f32 {vr(QR+8,2)}, {vr(QR+8,2)}, {vr(QR+12,2)}
              v_pk_add_f32 {vr(QR+10,2)}, {vr(QR+10,2)}, {vr(QR+14,2)}
              v_pk_add_f32 {vr(QR,2)}, {vr(QR,2)}, {vr(QR+8,2)}
              v_pk_add_f32 {vr(QR+2,2)}, {vr(QR+2,2)}, {vr(QR+10,2)}
              v_cvt_pk_bf16_f32 {vr(QR)}, {vr(QR)}, {vr(QR+1)}
              v_cvt_pk_bf16_f32 {vr(QR+1)}, {vr(QR+2)}, {vr(QR+3)}
              ds_write_b64 v96, {vr(QR,2)}
              s_waitcnt lgkmcnt(0)""")
        for s in range(4):
            a(f"ds_read_b128 {vr(QR+4*s,4)}, v97 offset:{64*s}", ("q", s))
        DQ = 100
        for s in range(4):
            a.wait_ds(("q", s))
            for tt in range(2):
                cin = "0" if s == 0 else vr(DQ+4*tt, 4)
                a(f"v_mfma_f32_16x16x32_bf16 {vr(DQ+4*tt,4)}, {vr(UK+16*tt+4*s,4)}, {vr(QR+4*s,4)}, {cin}")
        for k in range(4):
            a(f"v_cndmask_b32 {vr(DQ+k)}, {vr(DQ+k)}, {vr(DQ+4+k)}, s[62:63]")
        for k in range(4):
            a(f"v_mul_f32 {vr(DQ+k)}, s50, {vr(DQ+k)}")
        a(f"v_cvt_pk_bf16_f32 {vr(DQ)}, {vr(DQ)}, {vr(DQ+1)}\nv_cvt_pk_bf16_f32 {vr(DQ+1)}, {vr(DQ+2)}, {vr(DQ+3)}")
        a(f"buffer_store_dwordx2 {vr(DQ,2)}, v98, {WS}, s49 offen sc1", "qast")
        self.ts(5)
        a.wait_vm(("key", 15))
        for s in range(16):
            a(f"ds_read_b128 {ar(4*s,4)}, {vr(SA+(s&3))} offset:{(s>>2)*256}")
        a.wait_vm(("key", 31))
        self.ts(6)
        for s in range(16):
            a(f"ds_read_b128 {ar(64+4*s,4)}, {vr(SA+(s&3))} offset:{16384+(s>>2)*256}")
        self.flags_wait("v9", "flg2")
        QA = 24
        a(f"""s_lshl_b32 s48, {sB}, 15
              s_lshl_b32 s3, {sHG}, 14
              s_add_u32 s48, s48, s3
              s_lshl_b32 s3, {sW}, 12
              s_add_u32 s48, s48, s3
              s_add_u32 s48, s48, {QA_OFF}""")
        aloads = [f"buffer_load_dwordx4 {vr(QA+4*i,4)}, {vL16}, {WS}, s48 offen offset:{1024*i} sc1" for i in range(4)]
        for s in aloads:
            a(s, "qap")
        self.barrier()
        for ks in range(4):
            if ks == 2:
                for t in range(8):
                    a(f"v_add_u32 {vr(PV+t)}, 0x10000, {vr(PV+t)}")
            for t in range(8):
                for hh in range(2):
                    a(f"ds_read_b64_tr_b16 {ar(128+32*ks+4*t+2*hh,2)}, {vr(PV+t)} offset:{(32*(ks&1)+16*hh)*1024}")
        a(f"""s_and_b32 s3, {sW}, 1
              s_lshl_b32 s3, s3, 7
              v_xor_b32 v7, s3, {vL16}
              s_lshl_b32 s3, {sW}, 12
              s_add_u32 s3, s3, {QAL}
              v_add_u32 v100, s3, v7""")
        for i in range(1, 4):
            a(f"v_xor_b32 {vr(100+i)}, {32*i}, v100")
        a(f"""s_lshl_b32 s3, {sW}, 2
              s_add_u32 s3, s3, {MX}
              v_lshl_add_u32 v104, {vN}, 4, s3
              v_lshlrev_b32 v105, 4, {vN}
              v_add_u32 v105, {MX}, v105
              s_lshl_b32 s3, {sW}, 10
              s_add_u32 s3, s3, {PB}
              v_add_u32 v106, s3, {vL16}
              v_add_u32 v107, {PB}, {vL16}
              v_lshlrev_b32 v7, 16, {vN}
              v_lshl_add_u32 v108, {vG}, 4, v7
              s_lshl_b32 s52, {sHG}, 20
              s_lshl_b32 s3, {sW}, 14
              s_add_u32 s52, s52, s3
              s_lshl_b32 s3, {sB}, 11
              s_add_u32 s52, s52, s3
              s_lshl_b32 s3, {sKT}, 6
              s_add_u32 s52, s52, s3
              s_add_u32 s52, s52, {OP_OFF}
              s_add_u32 s53, s52, 4096
              s_add_u32 s54, s52, 8192
              s_add_u32 s55, s52, 12288
              v_lshlrev_b32 v7, 8, {vN}
              v_cmp_gt_u32 vcc, 16, v0
              v_cndmask_b32 v109, v79, v7, vcc
              s_lshl_b32 s56, {sHG}, 12
              s_lshl_b32 s3, {sB}, 7
              s_add_u32 s56, s56, s3
              s_lshl_b32 s3, {sKT}, 2
              s_add_u32 s56, s56, s3
              s_add_u32 s56, s56, {ML_OFF}
              v_mov_b32 v112, 0x3f803f80
              v_mov_b32 v113, 0x3f803f80
              v_mov_b32 v114, 0x3f803f80
              v_mov_b32 v115, 0x3f803f80""")
        VO = 116
        self.rows1152_voffs(VO)
        a(f"""s_mul_i32 s57, s12, {32*1152}
              s_mul_i32 s3, {sW}, 9216
              s_add_u32 s57, s57, s3
              s_add_u32 s58, s3, {WOL}
              s_lshl_b32 s59, {sW}, 13
              s_add_u32 s59, s59, {WUVL}""")
        self.poll(aloads, [vr(QA+k) for k in range(16)], "v7", "qap", issued=True)
        self.ts(7)
        for i in range(4):
            a(f"ds_write_b128 {vr(100+i)}, {vr(QA+4*i,4)} offset:{1024*i}")
        a("s_waitcnt lgkmcnt(0)")
        self.barrier()
        p3 = [("uv", i) for i in range(8)] + [("wo", i) for i in range(9)]
        def p3issue(k):
            kind, i = p3[k]
            if kind == "uv":
                a(f"s_add_u32 m0, s59, {i*1024}")
                if i:
                    a(f"s_add_u32 s44, s44, {4*8192}")
                else:
                    a("s_nop 0")
                a(f"buffer_load_dwordx4 {vA if i<4 else vB}, {R2}, s44 offen{self.nt('nt_w')} lds", ("p3", k))
            else:
                self.dma1152(R3, VO, "s57", "s58", "nt_w", ("p3", k), i)
        BQ = 128
        SD = 160
        for s in range(8):
            a(f"ds_read_b128 {vr(BQ+4*s,4)}, {vr(QB+(s&3))} offset:{(s>>2)*256}", ("bq", s))
        nxt = 0
        for s in range(16):
            a.wait_ds(("bq", s))
            for tt in range(2):
                cin = "0" if s == 0 else vr(SD+4*tt, 4)
                a(f"v_mfma_f32_16x16x32_bf16 {vr(SD+4*tt,4)}, {ar(64*tt+4*s,4)}, {vr(BQ+4*(s&7),4)}, {cin}")
            if s + 8 < 16:
                s2 = s + 8
                a(f"ds_read_b128 {vr(BQ+4*(s2&7),4)}, {vr(QB+(s2&3))} offset:{(s2>>2)*256}", ("bq", s2))
            if nxt < c["p3_first"]:
                p3issue(nxt); nxt += 1
        self.ts(8)
        a(f"""v_max3_f32 v7, {vr(SD)}, {vr(SD+1)}, {vr(SD+2)}
              v_max3_f32 v8, {vr(SD+3)}, {vr(SD+4)}, {vr(SD+5)}
              v_max3_f32 v7, v7, {vr(SD+6)}, {vr(SD+7)}
              v_max_f32 v7, v7, v8
              v_mov_b32 v8, v7
              v_permlane16_swap_b32 v7, v8
              v_max_f32 v7, v7, v8
              v_mov_b32 v8, v7
              v_permlane32_swap_b32 v7, v8
              v_max_f32 v7, v7, v8
              ds_write_b32 v104, v7
              s_waitcnt lgkmcnt(0)""")
        self.barrier()
        a(f"""ds_read_b128 v[168:171], v105
              s_waitcnt lgkmcnt(0)
              v_max3_f32 v110, v168, v169, v170
              v_max_f32 v110, v110, v171""")
        for k in range(8):
            a(f"v_sub_f32 {vr(SD+k)}, {vr(SD+k)}, v110")
        for k in range(8):
            a(f"v_exp_f32 {vr(SD+k)}, {vr(SD+k)}")
        for k in range(4):
            a(f"v_cvt_pk_bf16_f32 {vr(168+k)}, {vr(SD+2*k)}, {vr(SD+2*k+1)}")
        a("ds_write_b128 v106, v[168:171]\ns_waitcnt lgkmcnt(0)")
        self.barrier()
        PF = 128
        for ks in range(4):
            a(f"ds_read_b128 {vr(PF+4*ks,4)}, v107 offset:{1024*ks}", ("pf", ks))
        LD = 172
        OD = 176
        for ks in range(4):
            a.wait_ds(("pf", ks))
            cin = "0" if ks == 0 else vr(LD, 4)
            a(f"v_mfma_f32_16x16x32_bf16 {vr(LD,4)}, v[112:115], {vr(PF+4*ks,4)}, {cin}")
        def pvt(t):
            for ks in range(4):
                cin = "0" if ks == 0 else vr(OD+4*t, 4)
                a(f"v_mfma_f32_16x16x32_bf16 {vr(OD+4*t,4)}, {ar(128+32*ks+4*t,4)}, {vr(PF+4*ks,4)}, {cin}")
        def epi(u):
            b = OD + 8*u
            for k in range(4):
                a(f"v_pk_mul_f32 {vr(b+2*k,2)}, {vr(b+2*k,2)}, v[146:147]")
            for k in range(4):
                a(f"v_cvt_pk_bf16_f32 {vr(b+k)}, {vr(b+2*k)}, {vr(b+2*k+1)}")
            a(f"buffer_store_dwordx4 {vr(b,4)}, v108, {WS}, s{52+u} offen sc1", "opst")
        pvt(0); pvt(1)
        a(f"v_rcp_f32 v146, {vr(LD)}\nv_log_f32 v148, {vr(LD)}")
        pvt(2)
        a("v_mov_b32 v147, v146\nv_add_f32 v148, v148, v110")
        a(f"buffer_store_dword v148, v109, {WS}, s56 offen sc1", "mlst")
        epi(0)
        pvt(3); pvt(4)
        epi(1)
        pvt(5); pvt(6)
        epi(2)
        pvt(7)
        epi(3)
        self.ts(9)
        while nxt < len(p3):
            p3issue(nxt); nxt += 1
        OPR, MLR = 24, 40
        a(f"""s_lshl_b32 s48, s12, 14
              s_lshl_b32 s3, {sW}, 12
              s_add_u32 s48, s48, s3
              s_add_u32 s48, s48, {OP_OFF}
              s_add_u32 s51, s3, {OPL}
              v_and_b32 v7, 1, {vN}
              v_lshlrev_b32 v8, 7, v7
              v_lshl_add_u32 v100, {vG}, 4, v8
              v_cmp_eq_u32 s[62:63], 0, v7
              s_lshl_b32 s49, {sH}, 8
              s_add_u32 s49, s49, {ML_OFF}""")
        oloads = [f"buffer_load_dwordx4 {vr(OPR+4*i,4)}, {vL16}, {WS}, s48 offen offset:{1024*i} sc1" for i in range(4)]
        oloads += [f"buffer_load_dwordx4 {vr(MLR+4*i,4)}, v100, {WS}, s49 offen offset:{64*i} sc1" for i in range(2)]
        for s in oloads:
            a(s, "opp")
        a(f"""v_and_b32 v7, 1, {vG}
              v_lshlrev_b32 v8, 5, v7
              v_xor_b32 v101, v8, {vL16}
              v_add_u32 v101, s51, v101
              v_add_u32 v8, v8, {vCC8}
              v_lshl_add_u32 v10, {vG}, 2, {vRR}
              v_lshl_add_u32 v8, v10, 6, v8
              v_add_u32 v102, s51, v8
              v_xor_b32 v103, 32, v102
              v_lshlrev_b32 v8, 4, v7
              v_lshrrev_b32 v7, 1, {vG}
              v_lshl_add_u32 v8, v7, 2, v8
              v_add_u32 v8, v8, {vRR}
              v_lshl_add_u32 v8, v8, 8, v78
              v_add_u32 {vr(PV)}, s59, v8""")
        for t in range(1, 8):
            a(f"v_xor_b32 {vr(PV+t)}, {32*t}, {vr(PV)}")
        a(f"""v_lshrrev_b32 v7, 1, v77
              v_xor_b32 v7, {sW}, v7
              v_lshl_add_u32 v7, v7, 5, {vCC8}
              v_mul_u32_u24 v10, 1152, v10
              v_add_u32 v7, v7, v10
              v_add_u32 v104, {WOL}, v7
              v_and_b32 v7, 1, {vN}
              v_lshlrev_b32 v7, 7, v7
              v_lshl_add_u32 v7, {vG}, 4, v7
              v_cmp_gt_u32 vcc, 2, {vN}
              v_cndmask_b32 v105, v79, v7, vcc
              v_lshrrev_b32 v8, 1, {vN}
              v_lshl_add_u32 v106, v8, 8, v7
              v_lshlrev_b32 v7, 6, {vN}
              v_lshl_add_u32 v7, {vG}, 4, v7
              v_cndmask_b32 v107, v79, v7, vcc
              s_lshl_b32 s52, {sH}, 14
              s_add_u32 s52, s52, {CX_OFF}
              s_lshl_b32 s3, {sJ}, 12
              s_add_u32 s56, s52, s3
              s_lshl_b32 s3, {sJ}, 10
              s_add_u32 s52, s52, s3
              s_lshl_b32 s3, {sW}, 8
              s_add_u32 s52, s52, s3
              s_add_u32 s53, s52, 4096
              s_add_u32 s54, s52, 8192
              s_add_u32 s55, s52, 12288
              s_lshl_b32 s57, {sW}, 14
              s_lshl_b32 s3, s12, 7
              s_add_u32 s57, s57, s3
              s_add_u32 s57, s57, {SP_OFF}""")
        UV = 0
        a.wait_vm(("p3", 7))
        for t in range(8):
            for t2 in range(2):
                a(f"ds_read_b64_tr_b16 {ar(UV+4*t+2*t2,2)}, {vr(PV+t)} offset:{2048*t2}")
        a.wait_vm(("p3", 16))
        self.ts(10)
        self.barrier()
        WO = 32
        for u in range(9):
            for hh in range(2):
                a(f"ds_read_b64_tr_b16 {ar(WO+4*u+2*hh,2)}, v104 offset:{u*128+16*hh*1152}")
        self.poll(oloads, [vr(OPR+k) for k in range(24)], "v7", "opp", issued=True)
        self.ts(11)
        for i in range(4):
            a(f"ds_write_b128 v101, {vr(OPR+4*i,4)} offset:{1024*i}")
        m = MLR
        a(f"""v_max3_f32 v7, {vr(m)}, {vr(m+1)}, {vr(m+2)}
              v_max3_f32 v8, {vr(m+3)}, {vr(m+4)}, {vr(m+5)}
              v_max3_f32 v7, v7, {vr(m+6)}, {vr(m+7)}
              v_max_f32 v7, v7, v8
              v_mov_b32 v8, v7
              v_permlane16_swap_b32 v7, v8
              v_max_f32 v7, v7, v8
              v_mov_b32 v8, v7
              v_permlane32_swap_b32 v7, v8
              v_max_f32 v7, v7, v8
              s_waitcnt lgkmcnt(0)""")
        RF = 48
        for bs in range(2):
            for t in range(2):
                for hh in range(2):
                    a(f"ds_read_b64_tr_b16 {vr(RF+8*bs+4*t+2*hh,2)}, {vr(102+t)} offset:{(32*bs+16*hh)*64}")
        for k in range(8):
            a(f"v_sub_f32 {vr(m+k)}, {vr(m+k)}, v7")
        for k in range(8):
            a(f"v_exp_f32 {vr(m+k)}, {vr(m+k)}")
        a(f"""v_pk_add_f32 v[64:65], {vr(m,2)}, {vr(m+2,2)}
              v_pk_add_f32 v[66:67], {vr(m+4,2)}, {vr(m+6,2)}
              v_pk_add_f32 v[64:65], v[64:65], v[66:67]
              v_add_f32 v7, v64, v65
              v_mov_b32 v8, v7
              v_permlane16_swap_b32 v7, v8
              v_add_f32 v7, v7, v8
              v_mov_b32 v8, v7
              v_permlane32_swap_b32 v7, v8
              v_add_f32 v7, v7, v8
              v_rcp_f32 v66, v7""")
        for k in range(4):
            a(f"v_cvt_pk_bf16_f32 {vr(m+k)}, {vr(m+2*k)}, {vr(m+2*k+1)}")
        for k in range(4):
            a(f"v_cndmask_b32 {vr(68+k)}, 0, {vr(m+k)}, s[62:63]")
            a(f"v_cndmask_b32 {vr(72+k)}, {vr(m+k)}, 0, s[62:63]")
        a("v_mov_b32 v67, v66\ns_waitcnt lgkmcnt(0)")
        CD = 128
        for bs in range(2):
            for t in range(2):
                cin = "0" if bs == 0 else vr(CD+4*t, 4)
                a(f"v_mfma_f32_16x16x32_bf16 {vr(CD+4*t,4)}, {vr(RF+8*bs+4*t,4)}, {vr(68+4*bs,4)}, {cin}")
        for k in range(4):
            a(f"v_pk_mul_f32 {vr(CD+2*k,2)}, {vr(CD+2*k,2)}, v[66:67]")
        for k in range(4):
            a(f"v_cvt_pk_bf16_f32 {vr(CD+k)}, {vr(CD+2*k)}, {vr(CD+2*k+1)}")
        XD = 136
        for t in range(8):
            a(f"v_mfma_f32_16x16x32_bf16 {vr(XD+4*t,4)}, {ar(UV+4*t,4)}, {vr(CD,4)}, 0")
        for t in range(8):
            a(f"buffer_store_dwordx4 {vr(XD+4*t,4)}, v105, {WS}, s{52+(t>>1)} offen offset:{64*(t&1)} sc1", "cxst")
        self.ts(12)
        CR = 24
        cloads = [f"buffer_load_dwordx4 {vr(CR+8*pp+4*hh,4)}, v106, {WS}, s56 offen offset:{2048*pp+64*hh} sc1" for pp in range(2) for hh in range(2)]
        self.poll(cloads, [vr(CR+k) for k in range(16)], "v7", "cxp")
        self.ts(13)
        for k in range(4):
            a(f"v_pk_add_f32 {vr(CR+2*k,2)}, {vr(CR+2*k,2)}, {vr(CR+8+2*k,2)}")
        for r in (2, 4, 8):
            for k in range(8):
                a(f"v_add_f32_dpp {vr(CR+k)}, {vr(CR+k)}, {vr(CR+k)} row_ror:{r} row_mask:0xf bank_mask:0xf")
        for k in range(4):
            a(f"v_cvt_pk_bf16_f32 {vr(CR+k)}, {vr(CR+2*k)}, {vr(CR+2*k+1)}")
        a("s_waitcnt lgkmcnt(0)")
        SD3 = 176
        for u in range(9):
            a(f"v_mfma_f32_16x16x32_bf16 {vr(SD3+4*u,4)}, {ar(WO+4*u,4)}, {vr(CR,4)}, 0")
        for u in range(9):
            a(f"buffer_store_dwordx4 {vr(SD3+4*u,4)}, v107, {WS}, s57 offen sc1")
            if u < 8:
                a(f"s_add_u32 s57, s57, {4*16384}")
        self.ts(15)
        self.ts_flush()
        a.label("L_end")
        a("s_endpgm")

    def build(self):
        hdr = open("cdna_kernels/" + NAME + ".s.ref").read().split("\n")
        top = [l for l in hdr if l.startswith(";") and "@launch" not in l and "Override launch" not in l and "grid=ceil" not in l]
        a = self.a
        self.prologue()
        self.ga()
        self.gb()
        s = "\n".join(top) + "\n"
        s += f"; @launch grid=(256,1,1) block=(256,1,1) lds={LDS_SIZE}\n"
        s += f""".amdgcn_target "amdgcn-amd-amdhsa--gfx950"
.text
.globl {NAME}_kernel
.p2align 8
.type {NAME}_kernel,@function
{NAME}_kernel:
"""
        s += a.text()
        s += f""".section .rodata,"a"
.p2align 6
.amdhsa_kernel {NAME}_kernel
  .amdhsa_next_free_vgpr 512
  .amdhsa_next_free_sgpr 102
  .amdhsa_accum_offset 256
  .amdhsa_group_segment_fixed_size 0
  .amdhsa_kernarg_size 104
  .amdhsa_user_sgpr_count 2
  .amdhsa_user_sgpr_kernarg_segment_ptr 1
  .amdhsa_system_sgpr_workgroup_id_x 1
  .amdhsa_float_denorm_mode_32 3
.end_amdhsa_kernel
"""
        return s

if __name__ == "__main__":
    out = sys.argv[1]
    cfg = {}
    for kv in sys.argv[2:]:
        k, v = kv.split("=")
        cfg[k] = int(v)
    g = Gen(cfg)
    open(out, "w").write(g.build())
    print("wrote", out, "nops inserted:", g.a.nops)
```

```python
import sys
from asmlib import Asm

NAME = "recurrent_scan__compressed_kv_cla__geglu_ffn__decode"

DEF = dict(
    ts=0,
    nt_w=1,
    nt_ckv=1,
    pf=1,
    gb_q=18,
    f1_d1=6, f1_sw=16, f1_d2=12,
    f2_d1=3, f2_sw=9, f2_d2=12,
    p3_first=10,
    spin=60000,
    psleep=0,
)

Q_OFF  = 0x000000
QA_OFF = 0x020000
OP_OFF = 0x040000
CX_OFF = OP_OFF + 0x200000
SP_OFF = CX_OFF + 0x80000
YP_OFF = SP_OFF + 0x90000
H_OFF  = YP_OFF + 0x36000
ML_OFF = H_OFF + 0x4800
EP_OFF = ML_OFF + 0x4000
TS_OFF = 0x800000
WS_SIZE = 0x1000000
OOB = 0x7f000000

XN = 0
RED = 0x1000
FBASE = 0x2000
WQL = 0x1D000
LDS_SIZE = 0x26000
CKV = 0
QAL = 0x20000
MX = 0x24000
PB = 0x24400
QS = 0x25400
WUVL = 0
WOL = 0x8000
OPL = 0x12000

sW, sH, sJ = "s6", "s7", "s8"
WS = "s[16:19]"
R0, R1, R2, R3, R4 = "s[24:27]", "s[28:31]", "s[32:35]", "s[36:39]", "s[40:43]"
sCNT = "s60"
sT = "s61"
sTK = ["s96", "s97", "s98", "s99"]
sT4 = "s100"
vMF, vMB = "v254", "v255"
vL, vN, vG, vRR, vCC8, vL16 = "v1", "v2", "v3", "v4", "v5", "v6"

def vr(b, n=1):
    return f"v{b}" if n == 1 else f"v[{b}:{b+n-1}]"
def ar(b, n=1):
    return f"a{b}" if n == 1 else f"a[{b}:{b+n-1}]"
def F(b, n):
    return [(vr(b+k), "f") for k in range(n)]
def B(b, n):
    return [(vr(b+k), ("b", k & 3)) for k in range(n)]

class Gen:
    def __init__(self, cfg):
        self.cfg = dict(DEF)
        for k in cfg:
            assert k in DEF, k
        self.cfg.update(cfg)
        self.a = Asm()

    def ts(self, k):
        if self.cfg["ts"]:
            self.a(f"s_memrealtime s[{64+2*k}:{65+2*k}]\ns_waitcnt lgkmcnt(0)")

    def ts_flush(self):
        a = self.a
        if not self.cfg["ts"]:
            return
        a.c("diagnostic: store stamps")
        a(f"""s_lshl_b32 s3, s2, 2
              s_add_u32 s3, s3, {sW}
              s_lshl_b32 s3, s3, 7
              s_add_u32 s3, s3, {TS_OFF}
              v_mov_b32 v8, 0""")
        for k in range(16):
            a(f"v_mov_b32 v10, s{64+2*k}\nv_mov_b32 v11, s{65+2*k}")
            a(f"buffer_store_dwordx2 v[10:11], v8, {WS}, s3 offen offset:{8*k}")
            a("s_nop 1")

    def srd(self, reg, slot, size):
        base = int(reg[2:].split(":")[0])
        self.a(f"s_load_dwordx2 s[{base}:{base+1}], s[0:1], {slot*8}\ns_mov_b32 s{base+2}, {size}\ns_mov_b32 s{base+3}, 0x20000")

    def nt(self, k):
        return " nt" if self.cfg[k] else ""

    def check_regs(self, regs, tmp):
        a = self.a
        groups = {}
        for r, k in regs:
            groups.setdefault("b" if isinstance(k, tuple) else k, []).append((r, k))
        first = True
        for kind, lst in groups.items():
            acc = tmp if first else "v253"
            for i, (r, k) in enumerate(lst):
                t = sT if kind == "f" else (sT4 if kind == "w" else sTK[k[1]])
                if i == 0:
                    a(f"v_xor_b32 {acc}, {t}, {r}")
                else:
                    a(f"v_bitop3_b32 {acc}, {acc}, {r}, {t} bitop3:0xf6")
            if kind == "f":
                a(f"v_and_b32 {acc}, 0xff, {acc}")
            elif kind == "b":
                a(f"v_and_b32 {acc}, 0x10001, {acc}")
            if not first:
                a(f"v_or_b32 {tmp}, {tmp}, {acc}")
            first = False
        a(f"v_cmp_ne_u32 vcc, 0, {tmp}")

    def tagf(self, base, n):
        for k in range(n):
            self.a(f"v_and_or_b32 {vr(base+k)}, {vr(base+k)}, {vMF}, {sT}")

    def tagb(self, base, ks):
        for i, k in enumerate(ks):
            self.a(f"v_and_or_b32 {vr(base+i)}, {vr(base+i)}, {vMB}, {k}")

    def epoch_load(self):
        self.a(f"s_add_u32 s4, s16, {EP_OFF}\ns_addc_u32 s5, s17, 0\ns_load_dword {sT}, s[4:5], 0")

    def tags_setup(self):
        a = self.a
        a(f"""s_add_u32 {sT}, {sT}, 1
              s_and_b32 {sT}, {sT}, 0xff
              s_cmp_eq_u32 {sT}, 0xff
              s_cselect_b32 {sT}, 0, {sT}
              s_cmp_eq_u32 {sT}, 0x55
              s_addc_u32 {sT}, {sT}, 0
              s_cmp_eq_u32 {sT}, 0xaa
              s_addc_u32 {sT}, {sT}, 0
              s_cmp_eq_u32 {sT}, 0
              s_addc_u32 {sT}, {sT}, 0
              s_mul_i32 {sT4}, {sT}, 0x01010101""")
        for k in range(4):
            a(f"""s_bfe_u32 s3, {sT}, {(1 << 16) | (2*k+1)}
                  s_lshl_b32 s3, s3, 16
                  s_bfe_u32 {sTK[k]}, {sT}, {(1 << 16) | (2*k)}
                  s_or_b32 {sTK[k]}, {sTK[k]}, s3""")
        a(f"v_mov_b32 {vMF}, 0xffffff00\nv_mov_b32 {vMB}, 0xfffefffe")

    def poll(self, loads, regs, tmp, tag, issued=False):
        a = self.a
        if not issued:
            for s in loads:
                a(s, tag)
        a(f"s_mov_b32 {sCNT}, {self.cfg['spin']}")
        a.wait_vm(tag)
        top, ok = a.newlab("Lp"), a.newlab("Lok")
        a.label(top)
        self.check_regs(regs, tmp)
        a(f"s_cbranch_vccz {ok}")
        a(f"s_sub_u32 {sCNT}, {sCNT}, 1\ns_cbranch_scc1 {ok}")
        keep = list(a.vm)
        if self.cfg["psleep"]:
            a(f"s_sleep {self.cfg['psleep']}")
        for s in loads:
            a(s)
        a("s_waitcnt vmcnt(0)")
        a.vm = keep
        a(f"s_branch {top}")
        a.label(ok)

    def barrier(self):
        self.a("s_barrier")

    def rows1152_voffs(self, base):
        a = self.a
        a("s_movk_i32 s3, 1821")
        for i in range(9):
            a(f"""v_add_u32 v7, {64*i}, {vL}
                  v_mul_u32_u24 v8, s3, v7
                  v_lshrrev_b32 v8, 18, v8
                  v_lshlrev_b32 v8, 5, v8
                  v_lshlrev_b32 v7, 4, v7
                  v_xor_b32 v7, v7, v8
                  v_subrev_u32 {vr(base+i)}, {(i & 3) * 1024}, v7""")

    def dma1152(self, srd, vbase, s_mem, s_lds, ntk, tag, i):
        a = self.a
        if i % 4 == 0:
            a(f"s_add_u32 m0, {s_lds}, {i*1024}")
        a(f"buffer_load_dwordx4 {vr(vbase+i)}, {srd}, {s_mem} offen offset:{(i&3)*1024}{self.nt(ntk)} lds", tag)

    def red32(self, x, t):
        a = self.a
        for r in (8, 4, 2, 1):
            a(f"v_add_f32_dpp {x}, {x}, {x} row_ror:{r} row_mask:0xf bank_mask:0xf")
        a(f"v_mov_b32 {t}, {x}\nv_permlane16_swap_b32 {x}, {t}\nv_add_f32 {x}, {x}, {t}")

    def xrow(self, op, x, t):
        self.a(f"""v_mov_b32 {t}, {x}
                   v_permlane16_swap_b32 {x}, {t}
                   {op} {x}, {x}, {t}
                   v_mov_b32 {t}, {x}
                   v_permlane32_swap_b32 {x}, {t}
                   {op} {x}, {x}, {t}""")

    def stream(self, n, d1, sw, d2, issue, hooks):
        a = self.a
        for i in range(n):
            for f in hooks.get(i, []):
                f()
            d = d1 if i < sw else d2
            if i - d >= 0:
                a.wait_vm(("st", i - d))
            issue(i)
        for f in hooks.get(n, []):
            f()

    def prologue(self):
        a = self.a
        c = self.cfg
        a("s_cmp_ge_u32 s2, 256\ns_cbranch_scc1 L_end")
        if c["ts"]:
            for k in range(1, 16):
                a(f"s_mov_b64 s[{64+2*k}:{65+2*k}], 0")
        self.ts(0)
        self.srd(WS, 12, WS_SIZE)
        a(f"""s_lshr_b32 s10, s2, 3
              s_and_b32 s9, s2, 7
              v_lshrrev_b32 v7, 6, v0
              v_and_b32 {vL}, 63, v0
              v_readfirstlane_b32 {sW}, v7
              s_and_b32 s11, s10, 15
              s_lshr_b32 s3, s11, 2
              s_lshl_b32 {sH}, s9, 2
              s_add_u32 {sH}, {sH}, s3
              s_and_b32 {sJ}, s11, 3
              s_lshl_b32 s12, {sH}, 2
              s_add_u32 s12, s12, {sJ}""")
        if c["pf"]:
            a.c("pull the kernel's own code into L2 (16 lines per wave)")
            a("s_getpc_b64 s[4:5]")
            a.label("L_pc")
            a(f"""s_and_b32 s3, s10, 3
                  s_lshl_b32 s3, s3, 2
                  s_add_u32 s3, s3, {sW}
                  s_mul_i32 s3, s3, 1408
                  v_lshl_add_u32 v7, {vL}, 6, s3
                  v_min_u32 v7, L_end-L_pc, v7
                  s_mov_b64 exec, 0x3fffff""")
            a("global_load_dword v9, v7, s[4:5]", "pf")
            a("s_mov_b64 exec, -1")
        a(f"""v_and_b32 {vN}, 15, {vL}
              v_lshrrev_b32 {vG}, 4, {vL}
              v_lshrrev_b32 {vRR}, 2, {vN}
              v_and_b32 {vCC8}, 3, {vL}
              v_lshlrev_b32 {vCC8}, 3, {vCC8}
              v_lshlrev_b32 {vL16}, 4, {vL}""")
        a("s_cmp_ge_u32 s10, 16\ns_cbranch_scc1 L_GB")

    def ga(self):
        a = self.a
        pre_vm = list(a.vm)
        a.c("===== group A: q partial, then FFN roles =====")
        self.srd(R0, 0, 2304)
        self.srd(R1, 2, 576*8192)
        vXA, vA, vB = "v12", "v13", "v14"
        a(f"""v_lshrrev_b32 v7, 5, {vL}
              v_mul_u32_u24 v7, 1152, v7
              v_and_b32 v8, 31, {vL}
              v_lshl_add_u32 {vXA}, v8, 3, v7
              v_lshl_add_u32 v16, v8, 2, v7
              s_and_b32 s3, {sW}, 1
              s_lshl_b32 s3, s3, 7
              v_lshlrev_b32 v7, 5, {vG}
              v_lshlrev_b32 v8, 4, {vN}
              v_xor_b32 v7, v7, v8
              v_xor_b32 v7, s3, v7
              v_lshl_add_u32 {vA}, {vG}, 13, v7
              v_xor_b32 {vB}, 0x80, {vA}
              s_mul_i32 s44, {sJ}, {144*8192}
              s_mul_i32 s3, {sW}, {36*8192}
              s_add_u32 s44, s44, s3
              s_lshl_b32 s3, {sH}, 8
              s_add_u32 s44, s44, s3
              s_mul_i32 s45, {sW}, {36*256}
              s_add_u32 s45, s45, {WQL}
              s_waitcnt lgkmcnt(0)""")
        X = 24
        for k in range(4):
            a(f"buffer_load_dwordx2 {vr(X+2*k,2)}, {vXA}, {R0}, 0 offen offset:{256*k}", "x")
        a(f"buffer_load_dword {vr(X+8)}, v16, {R0}, 0 offen offset:1024", "x")
        for i in range(9):
            a(f"s_add_u32 m0, s45, {i*1024}")
            if i:
                a(f"s_add_u32 s44, s44, {4*8192}")
            a(f"buffer_load_dwordx4 {vA if i%2==0 else vB}, {R1}, s44 offen{self.nt('nt_w')} lds", "wq")
        self.ts(1)
        self.epoch_load()
        a("s_cmp_lt_u32 s11, 9\ns_cbranch_scc0 L_ga_notf1")
        save = (list(a.vm), list(a.ds))
        self.f1()
        a.label("L_ga_notf1")
        a.vm, a.ds = list(save[0]), list(save[1])
        a("s_cmp_lt_u32 s11, 15\ns_cbranch_scc0 L_ga_idle")
        self.f2()
        a.label("L_ga_idle")
        a.vm, a.ds = list(save[0]), list(save[1])
        self.p1a()
        self.ts(15)
        self.ts_flush()
        a("s_endpgm")
        a.vm = pre_vm
        a.ds = []

    def ln(self):
        a = self.a
        X, vXA = 24, "v12"
        U = 34
        for k in range(9):
            a(f"v_lshlrev_b32 {vr(U+2*k)}, 16, {vr(X+k)}\nv_and_b32 {vr(U+2*k+1)}, 0xffff0000, {vr(X+k)}")
        a(f"v_pk_add_f32 v[52:53], {vr(U,2)}, {vr(U+2,2)}")
        for k in range(2, 9):
            a(f"v_pk_add_f32 v[52:53], v[52:53], {vr(U+2*k,2)}")
        a("v_add_f32 v52, v52, v53")
        self.red32("v52", "v53")
        a("v_mul_f32 v52, 0x3ae38e39, v52")
        a("v_cvt_pk_bf16_f32 v54, v52, v52\nv_and_b32 v54, 0xffff0000, v54\nv_mov_b32 v55, v54\nv_mov_b32 v53, v52")
        D = 56
        for k in range(9):
            a(f"v_pk_add_f32 {vr(D+2*k,2)}, {vr(U+2*k,2)}, v[52:53] neg_lo:[0,1] neg_hi:[0,1]")
        a(f"v_pk_mul_f32 v[74:75], {vr(D,2)}, {vr(D,2)}")
        for k in range(1, 9):
            a(f"v_pk_fma_f32 v[74:75], {vr(D+2*k,2)}, {vr(D+2*k,2)}, v[74:75]")
        a("v_add_f32 v74, v74, v75")
        for k in range(9):
            a(f"v_pk_add_f32 {vr(D+2*k,2)}, {vr(U+2*k,2)}, v[54:55] neg_lo:[0,1] neg_hi:[0,1]")
        self.red32("v74", "v75")
        a("""v_mul_f32 v74, 0x3ae38e39, v74
             v_cvt_pk_bf16_f32 v74, v74, v74
             v_and_b32 v74, 0xffff0000, v74
             v_add_f32 v74, 0x3727c5ac, v74
             v_cvt_pk_bf16_f32 v74, v74, v74
             v_and_b32 v74, 0xffff0000, v74
             v_sqrt_f32 v74, v74
             v_cvt_pk_bf16_f32 v74, v74, v74
             v_and_b32 v74, 0xffff0000, v74
             v_rcp_f32 v74, v74""")
        for k in range(9):
            a(f"v_cvt_pk_bf16_f32 {vr(X+k)}, {vr(D+2*k)}, {vr(D+2*k+1)}")
        a("v_mov_b32 v75, v74")
        for k in range(9):
            a(f"v_lshlrev_b32 {vr(U+2*k)}, 16, {vr(X+k)}\nv_and_b32 {vr(U+2*k+1)}, 0xffff0000, {vr(X+k)}")
        for k in range(9):
            a(f"v_pk_mul_f32 {vr(U+2*k,2)}, {vr(U+2*k,2)}, v[74:75]")
        for k in range(9):
            a(f"v_cvt_pk_bf16_f32 {vr(X+k)}, {vr(U+2*k)}, {vr(U+2*k+1)}")
        for k in range(4):
            a(f"ds_write_b64 {vXA}, {vr(X+2*k,2)} offset:{XN+256*k}")
        a(f"ds_write_b32 v16, {vr(X+8)} offset:{XN+1024}")

    def p1a(self):
        a = self.a
        a.wait_vm("x")
        self.ts(2)
        self.ln()
        self.ts(3)
        vT0, vT1, vXB, vQS = "v76", "v77", "v78", "v79"
        a(f"""v_and_b32 v7, 1, {vG}
              v_lshl_add_u32 v80, v7, 2, {vRR}
              s_lshl_b32 s3, {sW}, 1
              v_xor_b32 v7, s3, v80
              v_lshl_add_u32 v7, v7, 5, {vCC8}
              v_lshl_add_u32 v8, {vG}, 2, {vRR}
              v_lshl_add_u32 v7, v8, 8, v7
              v_add_u32 {vT0}, {WQL}, v7
              v_xor_b32 {vT1}, 32, {vT0}
              v_and_b32 v7, 1, {vN}
              v_mul_u32_u24 v7, 1152, v7
              v_lshl_add_u32 v81, {vG}, 3, v7
              s_mul_i32 s3, {sJ}, 288
              v_add_u32 {vXB}, s3, v81
              s_lshl_b32 s3, s12, 10
              s_lshl_b32 s46, {sW}, 7
              s_add_u32 s3, s3, s46
              v_lshlrev_b32 v7, 9, {vN}
              v_lshl_add_u32 v7, {vG}, 4, v7
              v_add_u32 v7, s3, v7
              v_mov_b32 v82, {OOB}
              v_cmp_gt_u32 vcc, 2, {vN}
              v_cndmask_b32 {vQS}, v82, v7, vcc
              s_waitcnt lgkmcnt(0)""")
        XB = 84
        for s in range(4):
            a(f"ds_read2_b64 {vr(XB+4*s,4)}, {vXB} offset0:{8*s} offset1:{8*s+4}")
        a(f"ds_read_b64 {vr(XB+16,2)}, {vXB} offset:256")
        self.tags_setup()
        a.wait_vm("wq")
        self.ts(4)
        self.barrier()
        W = 104
        for s in range(5):
            for t, vt in enumerate((vT0, vT1)):
                b = W + 18*t + 4*s
                a(f"ds_read_b64_tr_b16 {vr(b,2)}, {vt} offset:{32*s*256}", f"wq{s}")
                if s < 4:
                    a(f"ds_read_b64_tr_b16 {vr(b+2,2)}, {vt} offset:{(32*s+16)*256}", f"wq{s}")
        Dq = 140
        for s in range(5):
            a.wait_ds(f"wq{s}")
            for t in range(2):
                b = W + 18*t + 4*s
                cin = "0" if s == 0 else vr(Dq+4*t, 4)
                if s < 4:
                    a(f"v_mfma_f32_16x16x32_bf16 {vr(Dq+4*t,4)}, {vr(b,4)}, {vr(XB+4*s,4)}, {cin}")
                else:
                    a(f"v_mfma_f32_16x16x16_bf16 {vr(Dq+4*t,4)}, {vr(b,2)}, {vr(XB+16,2)}, {cin}")
        for t in range(2):
            self.tagf(Dq+4*t, 4)
            a(f"buffer_store_dwordx4 {vr(Dq+4*t,4)}, {vQS}, {WS}, 0 offen offset:{64*t} sc1", "qst")
        self.ts(5)

    def f1(self):
        a = self.a
        c = self.cfg
        a.c("----- F1: gate/up columns, h publish, final reduce -----")
        self.srd(R2, 7, 576*9216)
        self.srd(R3, 8, 576*9216)
        self.srd(R4, 10, 2304)
        sF = "s13"
        a(f"""s_mul_i32 {sF}, s9, 9
              s_add_u32 {sF}, {sF}, s11
              s_mul_i32 s48, {sW}, {144*9216}
              s_lshl_b32 s3, {sF}, 7
              s_add_u32 s48, s48, s3
              s_lshl_b32 s49, {sW}, 13
              s_add_u32 s49, s49, {FBASE}
              s_lshl_b32 s50, {sW}, 12
              s_add_u32 s50, s50, 0x22000
              v_lshrrev_b32 v7, 3, {vL}
              v_mul_u32_u24 v7, 9216, v7
              v_and_b32 v8, 7, {vL}
              v_lshlrev_b32 v8, 4, v8
              v_lshlrev_b32 v150, 5, {vG}
              v_xor_b32 v8, v8, v150
              v_add_u32 v150, v7, v8
              s_waitcnt lgkmcnt(0)""")
        vF = "v150"
        ops = [(s, m, i) for s in range(5) for m in range(2) for i in range(4 if s < 4 else 2)]
        def issue(k):
            s, m, i = ops[k]
            if s < 4:
                a(f"s_add_u32 m0, s49, {s*0x8000 + m*4096 + i*1024}")
            else:
                a(f"s_add_u32 m0, s50, {m*2048 + i*1024}")
            a(f"s_add_u32 s51, s48, {(32*s+8*i)*9216}")
            a(f"buffer_load_dwordx4 {vF}, {R2 if m==0 else R3}, s51 offen{self.nt('nt_w')} lds", ("st", k))
        XB = 152
        VT = 170
        ACC = 176
        FR = 208
        def setup():
            a(f"s_mul_i32 s3, {sW}, 288\nv_add_u32 v7, s3, v81")
            for s in range(4):
                a(f"ds_read2_b64 {vr(XB+4*s,4)}, v7 offset0:{8*s} offset1:{8*s+4}")
            a(f"ds_read_b64 {vr(XB+16,2)}, v7 offset:256")
            a(f"""v_lshrrev_b32 v7, 1, v80
                  v_lshl_add_u32 v7, v7, 5, {vCC8}
                  v_lshl_add_u32 v8, {vG}, 2, {vRR}
                  v_lshl_add_u32 v7, v8, 7, v7
                  v_add_u32 {vr(VT)}, s49, v7""")
            for t in range(1, 4):
                a(f"v_xor_b32 {vr(VT+t)}, {32*t}, {vr(VT)}")
        def compute(s):
            last = max(k for k, o in enumerate(ops) if o[0] == s)
            a.wait_vm(("st", last))
            for m in range(2):
                for t in range(4):
                    b = FR + 16*m + 4*t
                    mo = m*4096 if s < 4 else m*2048
                    a(f"ds_read_b64_tr_b16 {vr(b,2)}, {vr(VT+t)} offset:{mo}", ("f", m, t))
                    if s < 4:
                        a(f"ds_read_b64_tr_b16 {vr(b+2,2)}, {vr(VT+t)} offset:{mo+2048}", ("f", m, t))
            if s < 3:
                for t in range(4):
                    a(f"v_add_u32 {vr(VT+t)}, 0x8000, {vr(VT+t)}")
            elif s == 3:
                a(f"s_sub_u32 s3, s50, s49\ns_sub_u32 s3, s3, {3*0x8000}")
                for t in range(4):
                    a(f"v_add_u32 {vr(VT+t)}, s3, {vr(VT+t)}")
            for m in range(2):
                for t in range(4):
                    b = FR + 16*m + 4*t
                    d = ACC + 16*m + 4*t
                    a.wait_ds(("f", m, t))
                    cin = "0" if s == 0 else vr(d, 4)
                    if s < 4:
                        a(f"v_mfma_f32_16x16x32_bf16 {vr(d,4)}, {vr(b,4)}, {vr(XB+4*s,4)}, {cin}")
                    else:
                        a(f"v_mfma_f32_16x16x16_bf16 {vr(d,4)}, {vr(b,2)}, {vr(XB+16,2)}, {cin}")
        d1, sw, d2 = c["f1_d1"], c["f1_sw"], c["f1_d2"]
        assert d1 < 24
        def h_p1a():
            self.p1a()
            self.barrier()
            setup()
        hooks = {d1: [h_p1a]}
        for s in range(4):
            k = min(8*(s+1) + (d1 if 8*(s+1) + d1 < sw else d2), 36)
            hooks.setdefault(max(k, d1 + 1), []).append(lambda s=s: compute(s))
        self.stream(36, d1, sw, d2, issue, hooks)
        self.ts(6)
        a(f"""s_lshr_b32 s14, {sF}, 1
              s_lshl_b32 s3, s14, 5
              v_bfe_u32 v7, {vL}, 2, 1
              v_mul_u32_u24 v7, 1152, v7
              v_add3_u32 v240, v7, {vCC8}, s3""")
        a(f"buffer_load_dwordx2 v[242:243], v240, {R0}, 0 offen", "xres")
        compute(4)
        self.ts(7)
        a(f"""s_lshl_b32 s3, {sW}, 10
              s_add_u32 s3, s3, {RED}
              v_lshlrev_b32 v7, 4, {vN}
              v_lshl_add_u32 v7, {vG}, 5, v7
              v_add_u32 v7, s3, v7
              s_mov_b32 exec_lo, 0x00030003
              s_mov_b32 exec_hi, 0x00030003""")
        for m in range(2):
            for t in range(4):
                a(f"ds_write_b128 v7, {vr(ACC+16*m+4*t,4)} offset:{m*512+t*128}")
        a("s_mov_b64 exec, -1")
        a(f"v_lshlrev_b32 v7, 3, {vL}\ns_waitcnt lgkmcnt(0)")
        self.barrier()
        a(f"s_cmp_eq_u32 {sW}, 0\ns_cbranch_scc0 L_f1_nopub")
        for m in range(2):
            for w in range(4):
                a(f"ds_read_b64 {vr(FR+8*m+2*w,2)}, v7 offset:{RED+w*1024+m*512}")
        a(f"""v_bfe_u32 v8, {vL}, 1, 1
              v_mul_u32_u24 v8, 9216, v8
              v_lshrrev_b32 v10, 5, {vL}
              v_lshl_add_u32 v8, v10, 6, v8
              v_lshl_add_u32 v8, {vRR}, 4, v8
              v_and_b32 v10, 1, {vG}
              v_lshl_add_u32 v8, v10, 3, v8
              v_and_b32 v11, 1, {vL}
              v_lshl_add_u32 v8, v11, 2, v8
              v_lshl_add_u32 v10, v10, 1, v11
              v_lshlrev_b32 v10, 1, v10
              v_lshrrev_b32 v10, v10, {sT}
              v_bfe_u32 v11, v10, 1, 1
              v_and_b32 v10, 1, v10
              v_lshl_or_b32 v11, v11, 16, v10
              s_lshl_b32 s3, {sF}, 7
              s_add_u32 s3, s3, {H_OFF}
              s_waitcnt lgkmcnt(0)""")
        for m in range(2):
            b = FR + 8*m
            a(f"""v_pk_add_f32 {vr(b,2)}, {vr(b,2)}, {vr(b+2,2)}
                  v_pk_add_f32 {vr(b+4,2)}, {vr(b+4,2)}, {vr(b+6,2)}""")
        for m in range(2):
            b = FR + 8*m
            a(f"v_pk_add_f32 {vr(b,2)}, {vr(b,2)}, {vr(b+4,2)}")
        g0, g1, u0, u1 = vr(FR), vr(FR+1), vr(FR+8), vr(FR+9)
        t0, t1 = vr(FR+2), vr(FR+3)
        a(f"""v_cvt_pk_bf16_f32 {t0}, {g0}, {g1}
              v_cvt_pk_bf16_f32 {t1}, {u0}, {u1}
              v_lshlrev_b32 {g0}, 16, {t0}
              v_and_b32 {g1}, 0xffff0000, {t0}
              v_lshlrev_b32 {u0}, 16, {t1}
              v_and_b32 {u1}, 0xffff0000, {t1}
              s_mov_b32 s52, 0xbdd2d3e8
              v_mov_b32 {vr(FR+4)}, 0xc0135761
              v_mul_f32 {t0}, {g0}, {g0}
              v_mul_f32 {t1}, {g1}, {g1}
              v_fma_f32 {t0}, {t0}, s52, {vr(FR+4)}
              v_fma_f32 {t1}, {t1}, s52, {vr(FR+4)}
              v_mul_f32 {t0}, {t0}, {g0}
              v_mul_f32 {t1}, {t1}, {g1}
              v_exp_f32 {t0}, {t0}
              v_exp_f32 {t1}, {t1}
              v_add_f32 {t0}, 1.0, {t0}
              v_add_f32 {t1}, 1.0, {t1}
              v_rcp_f32 {t0}, {t0}
              v_rcp_f32 {t1}, {t1}
              v_mul_f32 {t0}, {t0}, {g0}
              v_mul_f32 {t1}, {t1}, {g1}
              v_cvt_pk_bf16_f32 {t0}, {t0}, {t1}
              v_and_b32 {t1}, 0xffff0000, {t0}
              v_lshlrev_b32 {t0}, 16, {t0}
              v_mul_f32 {t0}, {t0}, {u0}
              v_mul_f32 {t1}, {t1}, {u1}
              v_cvt_pk_bf16_f32 {t0}, {t0}, {t1}
              v_and_or_b32 {t0}, {t0}, {vMB}, v11""")
        a(f"buffer_store_dword {t0}, v8, {WS}, s3 offen sc1")
        a.label("L_f1_nopub")
        self.ts(8)
        a(f"s_bitcmp0_b32 {sF}, 0\ns_cbranch_scc0 L_f1_exit")
        self.final()
        a.label("L_f1_exit")
        self.ts(15)
        self.ts_flush()
        a("s_endpgm")

    def final(self):
        a = self.a
        a.c("----- final: reduce partials of one 16-column tile -----")
        S, Y = 208, 224
        a(f"""s_lshl_b32 s44, s14, 14
              s_lshl_b32 s3, {sW}, 12
              s_add_u32 s44, s44, s3
              s_add_u32 s44, s44, {SP_OFF}
              s_mul_i32 s45, s14, 6144
              s_mul_i32 s3, {sW}, 1536
              s_add_u32 s45, s45, s3
              s_add_u32 s45, s45, {YP_OFF}
              v_and_b32 v10, 0x1ff, {vL16}
              s_mov_b32 {sCNT}, {self.cfg['spin']}
              s_mov_b32 s46, 1
              s_mov_b32 s47, 1""")
        top, nos, noy, ok = a.newlab("Lq"), a.newlab("Lq"), a.newlab("Lq"), a.newlab("Lq")
        a.label(top)
        a(f"s_cmp_eq_u32 s46, 0\ns_cbranch_scc1 {nos}")
        for i in range(4):
            a(f"buffer_load_dwordx4 {vr(S+4*i,4)}, {vL16}, {WS}, s44 offen offset:{1024*i} sc1")
        a.label(nos)
        a(f"s_cmp_eq_u32 s47, 0\ns_cbranch_scc1 {noy}")
        a(f"buffer_load_dwordx4 {vr(Y,4)}, {vL16}, {WS}, s45 offen sc1")
        a(f"buffer_load_dwordx4 {vr(Y+4,4)}, v10, {WS}, s45 offen offset:1024 sc1")
        a.label(noy)
        a("s_waitcnt vmcnt(0)")
        self.check_regs(F(S, 16), "v7")
        a("s_cmp_lg_u64 vcc, 0\ns_cselect_b32 s46, 1, 0")
        self.check_regs(F(Y, 8), "v7")
        a("s_cmp_lg_u64 vcc, 0\ns_cselect_b32 s47, 1, 0")
        a(f"s_or_b32 s3, s46, s47\ns_cbranch_scc0 {ok}")
        a(f"s_sub_u32 {sCNT}, {sCNT}, 1\ns_cbranch_scc0 {top}")
        a.label(ok)
        self.ts(9)
        a("s_mov_b32 exec_lo, 0")
        for k in range(4):
            a(f"v_mov_b32 {vr(Y+4+k)}, 0")
        a("s_mov_b32 exec_lo, -1")
        for i in (0, 2):
            a(f"v_pk_add_f32 {vr(S+4*i,2)}, {vr(S+4*i,2)}, {vr(S+4*i+4,2)}\nv_pk_add_f32 {vr(S+4*i+2,2)}, {vr(S+4*i+2,2)}, {vr(S+4*i+6,2)}")
        a(f"v_pk_add_f32 {vr(Y,2)}, {vr(Y,2)}, {vr(Y+4,2)}\nv_pk_add_f32 {vr(Y+2,2)}, {vr(Y+2,2)}, {vr(Y+6,2)}")
        a(f"v_pk_add_f32 {vr(S,2)}, {vr(S,2)}, {vr(S+8,2)}\nv_pk_add_f32 {vr(S+2,2)}, {vr(S+2,2)}, {vr(S+10,2)}")
        for k in range(4):
            a(f"v_permlane32_swap_b32 {vr(S+k)}, {vr(Y+k)}")
        a(f"v_pk_add_f32 {vr(S,2)}, {vr(S,2)}, {vr(Y,2)}\nv_pk_add_f32 {vr(S+2,2)}, {vr(S+2,2)}, {vr(Y+2,2)}")
        for k in range(4):
            a(f"v_add_f32_dpp {vr(S+k)}, {vr(S+k)}, {vr(S+k)} row_ror:8 row_mask:0xf bank_mask:0xf")
        a(f"""s_lshl_b32 s3, {sW}, 9
              s_add_u32 s3, s3, {RED}
              v_and_b32 v7, 7, {vL}
              v_lshlrev_b32 v7, 4, v7
              v_lshl_add_u32 v8, {vG}, 7, v7
              v_add_u32 v8, s3, v8""")
        a(f"ds_write_b128 v8, {vr(S,4)}")
        a("s_waitcnt lgkmcnt(0)")
        self.barrier()
        a(f"s_cmp_eq_u32 {sW}, 0\ns_cbranch_scc0 L_f1_exit")
        a(f"""v_lshrrev_b32 v8, 3, {vL}
              v_and_b32 v10, 1, v8
              v_lshrrev_b32 v8, 1, v8
              v_lshlrev_b32 v8, 9, v8
              v_lshl_add_u32 v8, v10, 7, v8
              v_add_u32 v8, v8, v7""")
        a(f"ds_read_b128 {vr(S,4)}, v8 offset:{RED}")
        a(f"ds_read_b128 {vr(Y,4)}, v8 offset:{RED+256}")
        a("s_waitcnt lgkmcnt(0)")
        for k in range(4):
            a(f"v_permlane32_swap_b32 {vr(S+k)}, {vr(Y+k)}")
        a(f"v_pk_add_f32 {vr(S,2)}, {vr(S,2)}, {vr(Y,2)}\nv_pk_add_f32 {vr(S+2,2)}, {vr(S+2,2)}, {vr(Y+2,2)}")
        for k in range(4):
            a(f"v_add_f32_dpp {vr(S+k)}, {vr(S+k)}, {vr(S+k)} row_ror:8 row_mask:0xf bank_mask:0xf")
        for k in range(4):
            a(f"v_mov_b32 {vr(Y+k)}, {vr(S+k)}")
        for k in range(4):
            a(f"v_permlane16_swap_b32 {vr(S+k)}, {vr(Y+k)}")
        a(f"v_pk_add_f32 {vr(S,2)}, {vr(S,2)}, {vr(Y,2)}\nv_pk_add_f32 {vr(S+2,2)}, {vr(S+2,2)}, {vr(Y+2,2)}")
        for k in range(4):
            a(f"v_mov_b32 {vr(Y+k)}, {vr(S+k)}")
        for k in range(4):
            a(f"v_permlane32_swap_b32 {vr(S+k)}, {vr(Y+k)}")
        T = 232
        a(f"""v_cvt_pk_bf16_f32 {vr(T)}, {vr(Y)}, {vr(Y+1)}
              v_cvt_pk_bf16_f32 {vr(T+1)}, {vr(Y+2)}, {vr(Y+3)}
              v_cvt_pk_bf16_f32 {vr(T+2)}, {vr(S)}, {vr(S+1)}
              v_cvt_pk_bf16_f32 {vr(T+3)}, {vr(S+2)}, {vr(S+3)}""")
        for k in range(2):
            a(f"v_lshlrev_b32 {vr(Y+2*k)}, 16, {vr(T+k)}\nv_and_b32 {vr(Y+2*k+1)}, 0xffff0000, {vr(T+k)}")
        for k in range(4):
            a(f"v_mul_f32 {vr(S+4+k)}, 0xbfb8aa3b, {vr(Y+k)}")
        for k in range(4):
            a(f"v_exp_f32 {vr(S+4+k)}, {vr(S+4+k)}")
        for k in range(2):
            a(f"v_lshlrev_b32 {vr(S+2*k)}, 16, {vr(T+2+k)}\nv_and_b32 {vr(S+2*k+1)}, 0xffff0000, {vr(T+2+k)}")
        for k in range(4):
            a(f"v_add_f32 {vr(S+4+k)}, 1.0, {vr(S+4+k)}")
        for k in range(4):
            a(f"v_rcp_f32 {vr(S+4+k)}, {vr(S+4+k)}")
        for k in range(4):
            a(f"v_mul_f32 {vr(Y+k)}, {vr(Y+k)}, {vr(S+4+k)}")
        a(f"v_cvt_pk_bf16_f32 {vr(T)}, {vr(Y)}, {vr(Y+1)}\nv_cvt_pk_bf16_f32 {vr(T+1)}, {vr(Y+2)}, {vr(Y+3)}")
        for k in range(2):
            a(f"v_lshlrev_b32 {vr(Y+2*k)}, 16, {vr(T+k)}\nv_and_b32 {vr(Y+2*k+1)}, 0xffff0000, {vr(T+k)}")
        for k in range(4):
            a(f"v_mul_f32 {vr(Y+k)}, {vr(Y+k)}, {vr(S+k)}")
        a(f"v_cvt_pk_bf16_f32 {vr(T)}, {vr(Y)}, {vr(Y+1)}\nv_cvt_pk_bf16_f32 {vr(T+1)}, {vr(Y+2)}, {vr(Y+3)}")
        for k in range(2):
            a(f"v_lshlrev_b32 {vr(Y+2*k)}, 16, {vr(T+k)}\nv_and_b32 {vr(Y+2*k+1)}, 0xffff0000, {vr(T+k)}")
            a(f"v_lshlrev_b32 {vr(S+2*k)}, 16, {vr(242+k)}\nv_and_b32 {vr(S+2*k+1)}, 0xffff0000, {vr(242+k)}")
        for k in range(4):
            a(f"v_add_f32 {vr(Y+k)}, {vr(Y+k)}, {vr(S+k)}")
        a(f"""v_cvt_pk_bf16_f32 {vr(T)}, {vr(Y)}, {vr(Y+1)}
              v_cvt_pk_bf16_f32 {vr(T+1)}, {vr(Y+2)}, {vr(Y+3)}
              s_mov_b64 exec, 0xff""")
        a(f"buffer_store_dwordx2 {vr(T,2)}, v240, {R4}, 0 offen")
        a("s_cmp_eq_u32 s14, 0\ns_cbranch_scc0 L_f1_noep")
        a(f"s_mov_b64 exec, 1\nv_mov_b32 v7, {EP_OFF}\nv_mov_b32 v8, {sT}")
        a(f"buffer_store_dword v8, v7, {WS}, 0 offen sc1")
        a.label("L_f1_noep")
        a("s_mov_b64 exec, -1")

    def f2(self):
        a = self.a
        c = self.cfg
        a.c("----- F2: down projection rows -----")
        self.srd(R2, 9, 4608*1152)
        sF = "s13"
        VO = 150
        a(f"""s_mul_i32 {sF}, s9, 6
              s_add_u32 {sF}, {sF}, s11
              s_sub_u32 {sF}, {sF}, 9
              s_mul_i32 s48, {sF}, {96*1152}
              s_mul_i32 s3, {sW}, 9216
              s_add_u32 s48, s48, s3
              s_add_u32 s49, s3, {FBASE}""")
        self.rows1152_voffs(VO)
        a("s_waitcnt lgkmcnt(0)")
        def issue(k):
            s, i = divmod(k, 9)
            if i == 0 and s > 0:
                a(f"s_add_u32 s48, s48, {4*9216}\ns_add_u32 s49, s49, {4*9216}")
            self.dma1152(R2, VO, "s48", "s49", "nt_w", ("st", k), i)
        vA0, vA1, vHA, vYS = "v160", "v161", "v162", "v163"
        HB = 164
        FR = 0
        def setup():
            a(f"""v_lshrrev_b32 v7, 1, v80
                  v_xor_b32 v7, {sW}, v7
                  v_lshl_add_u32 v7, v7, 5, {vCC8}
                  v_lshl_add_u32 v8, {vG}, 2, {vRR}
                  v_mul_u32_u24 v8, 1152, v8
                  v_add_u32 v7, v7, v8
                  v_add_u32 {vA0}, {FBASE}, v7
                  v_add_u32 {vA1}, {FBASE + 64*1152}, v7
                  v_and_b32 v7, 1, {vN}
                  v_mul_u32_u24 v7, 9216, v7
                  v_lshl_add_u32 {vHA}, {vG}, 4, v7
                  s_mul_i32 s50, {sF}, 192
                  s_add_u32 s50, s50, {H_OFF}
                  v_lshlrev_b32 v7, 6, {vN}
                  v_lshl_add_u32 v7, {vG}, 4, v7
                  v_cmp_gt_u32 vcc, 2, {vN}
                  v_cndmask_b32 {vYS}, v82, v7, vcc
                  s_mul_i32 s51, {sW}, 6144
                  s_lshl_b32 s3, {sF}, 7
                  s_add_u32 s51, s51, s3
                  s_add_u32 s51, s51, {YP_OFF}""")
        def pre(s):
            a.wait_vm(("st", 9*s+8))
            self.barrier()
            for u in range(9):
                for hh in range(2):
                    va = vA0 if s < 2 else vA1
                    off = u*128 + ((32*s if s < 2 else 0) + 16*hh)*1152
                    a(f"ds_read_b64_tr_b16 {ar(FR+36*s+4*u+2*hh,2)}, {va} offset:{off}", ("fr", s, u))
        d1, sw, d2 = c["f2_d1"], c["f2_sw"], c["f2_d2"]
        def h_p1a():
            self.p1a()
            setup()
        hooks = {d1: [h_p1a]}
        for s in range(2):
            k = min(9*(s+1) + (d1 if 9*(s+1) + d1 < sw else d2), 27)
            hooks.setdefault(max(k, d1 + 1), []).append(lambda s=s: pre(s))
        self.stream(27, d1, sw, d2, issue, hooks)
        self.ts(6)
        loads = [f"buffer_load_dwordx4 {vr(HB+4*s,4)}, {vHA}, {WS}, s50 offen offset:{64*s} sc1" for s in range(3)]
        for s in loads:
            a(s, "hp")
        pre(2)
        self.ts(7)
        self.poll(loads, B(HB, 12), "v7", "hp", issued=True)
        self.ts(8)
        ACC = 176
        a("s_waitcnt lgkmcnt(0)")
        def st(u):
            self.tagf(ACC+4*u, 4)
            a(f"buffer_store_dwordx4 {vr(ACC+4*u,4)}, {vYS}, {WS}, s51 offen sc1")
            if u < 8:
                a(f"s_add_u32 s51, s51, {4*6144}")
        for u in range(9):
            for s in range(3):
                cin = "0" if s == 0 else vr(ACC+4*u, 4)
                a(f"v_mfma_f32_16x16x32_bf16 {vr(ACC+4*u,4)}, {ar(FR+36*s+4*u,4)}, {vr(HB+4*s,4)}, {cin}")
            if u >= 2:
                st(u-2)
        st(7); st(8)
        self.ts(15)
        self.ts_flush()
        a("s_endpgm")

    def gb(self):
        a = self.a
        c = self.cfg
        a.label("L_GB")
        a.c("===== group B: absorbed query, attention core, value/out projections =====")
        self.srd(R0, 3, 512*8192)
        self.srd(R1, 1, 2*4096*1024)
        self.srd(R2, 4, 512*8192)
        self.srd(R3, 5, 4096*1152)
        sB, sKT, sHG = "s13", "s14", "s15"
        vA, vB = "v12", "v13"
        VK = 16
        a(f"""s_lshl_b32 s3, s9, 3
              s_lshr_b32 {sKT}, s11, 1
              s_add_u32 s3, s3, {sKT}
              s_lshr_b32 {sB}, s3, 5
              s_and_b32 {sKT}, s3, 31
              s_and_b32 {sHG}, s11, 1
              v_lshlrev_b32 v7, 5, {vG}
              v_lshlrev_b32 v8, 4, {vN}
              v_xor_b32 v7, v7, v8
              v_lshl_add_u32 {vA}, {vG}, 13, v7
              v_xor_b32 {vB}, 0x80, {vA}
              s_lshl_b32 s44, {sJ}, 20
              s_lshl_b32 s3, {sW}, 18
              s_add_u32 s44, s44, s3
              s_lshl_b32 s3, {sH}, 8
              s_add_u32 s44, s44, s3
              s_lshl_b32 s45, {sW}, 15
              s_lshl_b32 s46, {sB}, 22
              s_lshl_b32 s3, {sKT}, 17
              s_add_u32 s46, s46, s3
              s_add_u32 s46, s46, s45""")
        for k in range(8):
            a(f"v_xor_b32 {vr(VK+k)}, {32*k}, {vL16}")
        a("s_mov_b32 s47, s44\ns_waitcnt lgkmcnt(0)")
        for i in range(8):
            a(f"s_add_u32 m0, s45, {CKV + (24+i)*1024}")
            if i:
                a(f"s_add_u32 s47, s47, {4*8192}")
            a(f"buffer_load_dwordx4 {vA if i%2==0 else vB}, {R0}, s47 offen{self.nt('nt_w')} lds", "wuk")
        def key(i):
            if i % 4 == 0:
                a(f"s_add_u32 m0, s45, {CKV + i*1024}\ns_add_u32 s47, s46, {i*1024}")
            a(f"buffer_load_dwordx4 {vr(VK+(i&7))}, {R1}, s47 offen offset:{(i&3)*1024}{self.nt('nt_ckv')} lds", ("key", i))
        QR = 24
        qloads = [f"buffer_load_dwordx4 {vr(QR+4*p,4)}, {vL16}, {WS}, s48 offen offset:{1024*p} sc1" for p in range(4)]
        UK = 40
        XS = 72
        def uk_pre():
            a.wait_vm("wuk")
            a(f"""v_lshrrev_b32 v7, 1, {vG}
                  v_and_b32 v8, 7, {vN}
                  v_xor_b32 v7, v7, v8
                  v_lshlrev_b32 v7, 5, v7
                  v_and_b32 v8, 1, {vG}
                  v_lshl_add_u32 v76, v8, 4, v7
                  v_lshl_add_u32 v7, {vN}, 8, v76
                  s_add_u32 s3, s45, {CKV + 24*1024}
                  v_add_u32 {vr(XS)}, s3, v7""")
            for s in range(1, 4):
                a(f"v_xor_b32 {vr(XS+s)}, {64*s}, {vr(XS)}")
            for tt in range(2):
                for s in range(4):
                    a(f"ds_read_b128 {vr(UK+16*tt+4*s,4)}, {vr(XS+s)} offset:{4096*tt}")
            a("s_waitcnt lgkmcnt(0)")
            self.tags_setup()
        self.ts(1)
        self.epoch_load()
        a(f"s_lshl_b32 s48, {sH}, 12")
        for i in range(33):
            if i == c["gb_q"]:
                for s in qloads:
                    a(s, "qp")
                self.ts(2)
            if i == 24:
                uk_pre()
            if i < 32:
                key(i)
        self.ts(3)
        SA, QB, PV = 80, 84, 88
        a(f"""v_lshl_add_u32 v7, {vN}, 10, v76
              v_add_u32 {vr(SA)}, s45, v7
              v_add_u32 {vr(QB)}, {QAL}, v7""")
        for s in range(1, 4):
            a(f"v_xor_b32 {vr(SA+s)}, {64*s}, {vr(SA)}\nv_xor_b32 {vr(QB+s)}, {64*s}, {vr(QB)}")
        a(f"""v_and_b32 v7, 1, {vG}
              v_lshl_add_u32 v77, v7, 2, {vRR}
              v_lshl_add_u32 v78, v77, 5, {vCC8}
              v_lshl_add_u32 v8, {vG}, 2, {vRR}
              v_lshl_add_u32 v7, v8, 10, v78
              s_lshl_b32 s3, {sW}, 8
              v_add_u32 {vr(PV)}, s3, v7""")
        for t in range(1, 8):
            a(f"v_xor_b32 {vr(PV+t)}, {32*t}, {vr(PV)}")
        a(f"""s_lshl_b32 s3, {sW}, 9
              s_add_u32 s3, s3, {QS}
              v_lshl_add_u32 v96, {vL}, 3, s3
              v_and_b32 v7, 1, {vN}
              v_lshlrev_b32 v8, 8, v7
              v_lshl_add_u32 v8, {vG}, 4, v8
              v_add_u32 v97, s3, v8
              v_lshlrev_b32 v7, 15, v7
              v_bfe_u32 v8, {vN}, 1, 1
              v_lshl_add_u32 v7, v8, 5, v7
              v_lshl_add_u32 v7, {vG}, 3, v7
              v_mov_b32 v79, {OOB}
              v_cmp_gt_u32 vcc, 4, {vN}
              v_cndmask_b32 v98, v79, v7, vcc
              s_lshl_b32 s49, {sH}, 10
              s_lshl_b32 s3, {sJ}, 8
              s_add_u32 s49, s49, s3
              s_lshl_b32 s3, {sW}, 6
              s_add_u32 s49, s49, s3
              s_add_u32 s49, s49, {QA_OFF}
              v_cmp_ne_u32 s[62:63], 0, v8
              s_mov_b32 s50, 0x3e0293ee
              v_and_b32 v7, 1, {vG}
              v_cmp_eq_u32 vcc, 0, v7
              v_mov_b32 v7, {sTK[0]}
              v_mov_b32 v8, {sTK[2]}
              v_cndmask_b32 v110, v8, v7, vcc
              v_mov_b32 v7, {sTK[1]}
              v_mov_b32 v8, {sTK[3]}
              v_cndmask_b32 v111, v8, v7, vcc""")
        self.poll(qloads, F(QR, 16), "v7", "qp", issued=True)
        self.ts(4)
        a(f"""v_pk_add_f32 {vr(QR,2)}, {vr(QR,2)}, {vr(QR+4,2)}
              v_pk_add_f32 {vr(QR+2,2)}, {vr(QR+2,2)}, {vr(QR+6,2)}
              v_pk_add_f32 {vr(QR+8,2)}, {vr(QR+8,2)}, {vr(QR+12,2)}
              v_pk_add_f32 {vr(QR+10,2)}, {vr(QR+10,2)}, {vr(QR+14,2)}
              v_pk_add_f32 {vr(QR,2)}, {vr(QR,2)}, {vr(QR+8,2)}
              v_pk_add_f32 {vr(QR+2,2)}, {vr(QR+2,2)}, {vr(QR+10,2)}
              v_cvt_pk_bf16_f32 {vr(QR)}, {vr(QR)}, {vr(QR+1)}
              v_cvt_pk_bf16_f32 {vr(QR+1)}, {vr(QR+2)}, {vr(QR+3)}
              ds_write_b64 v96, {vr(QR,2)}
              s_waitcnt lgkmcnt(0)""")
        for s in range(4):
            a(f"ds_read_b128 {vr(QR+4*s,4)}, v97 offset:{64*s}", ("q", s))
        DQ = 100
        for s in range(4):
            a.wait_ds(("q", s))
            for tt in range(2):
                cin = "0" if s == 0 else vr(DQ+4*tt, 4)
                a(f"v_mfma_f32_16x16x32_bf16 {vr(DQ+4*tt,4)}, {vr(UK+16*tt+4*s,4)}, {vr(QR+4*s,4)}, {cin}")
        for k in range(4):
            a(f"v_cndmask_b32 {vr(DQ+k)}, {vr(DQ+k)}, {vr(DQ+4+k)}, s[62:63]")
        for k in range(4):
            a(f"v_mul_f32 {vr(DQ+k)}, s50, {vr(DQ+k)}")
        a(f"v_cvt_pk_bf16_f32 {vr(DQ)}, {vr(DQ)}, {vr(DQ+1)}\nv_cvt_pk_bf16_f32 {vr(DQ+1)}, {vr(DQ+2)}, {vr(DQ+3)}")
        self.tagb(DQ, ["v110", "v111"])
        a(f"buffer_store_dwordx2 {vr(DQ,2)}, v98, {WS}, s49 offen sc1", "qast")
        self.ts(5)
        a.wait_vm(("key", 15))
        for s in range(16):
            a(f"ds_read_b128 {ar(4*s,4)}, {vr(SA+(s&3))} offset:{(s>>2)*256}")
        a.wait_vm(("key", 31))
        self.ts(6)
        QA = 24
        a(f"""s_lshl_b32 s48, {sB}, 15
              s_lshl_b32 s3, {sHG}, 14
              s_add_u32 s48, s48, s3
              s_lshl_b32 s3, {sW}, 12
              s_add_u32 s48, s48, s3
              s_add_u32 s48, s48, {QA_OFF}""")
        aloads = [f"buffer_load_dwordx4 {vr(QA+4*i,4)}, {vL16}, {WS}, s48 offen offset:{1024*i} sc1" for i in range(4)]
        for s in aloads:
            a(s, "qap")
        for s in range(16):
            a(f"ds_read_b128 {ar(64+4*s,4)}, {vr(SA+(s&3))} offset:{16384+(s>>2)*256}")
        self.barrier()
        for ks in range(4):
            if ks == 2:
                for t in range(8):
                    a(f"v_add_u32 {vr(PV+t)}, 0x10000, {vr(PV+t)}")
            for t in range(8):
                for hh in range(2):
                    a(f"ds_read_b64_tr_b16 {ar(128+32*ks+4*t+2*hh,2)}, {vr(PV+t)} offset:{(32*(ks&1)+16*hh)*1024}")
        a(f"""s_and_b32 s3, {sW}, 1
              s_lshl_b32 s3, s3, 7
              v_xor_b32 v7, s3, {vL16}
              s_lshl_b32 s3, {sW}, 12
              s_add_u32 s3, s3, {QAL}
              v_add_u32 v100, s3, v7""")
        for i in range(1, 4):
            a(f"v_xor_b32 {vr(100+i)}, {32*i}, v100")
        a(f"""s_lshl_b32 s3, {sW}, 2
              s_add_u32 s3, s3, {MX}
              v_lshl_add_u32 v104, {vN}, 4, s3
              v_lshlrev_b32 v105, 4, {vN}
              v_add_u32 v105, {MX}, v105
              s_lshl_b32 s3, {sW}, 10
              s_add_u32 s3, s3, {PB}
              v_add_u32 v106, s3, {vL16}
              v_add_u32 v107, {PB}, {vL16}
              v_lshlrev_b32 v7, 16, {vN}
              v_lshl_add_u32 v108, {vG}, 4, v7
              s_lshl_b32 s52, {sHG}, 20
              s_lshl_b32 s3, {sW}, 14
              s_add_u32 s52, s52, s3
              s_lshl_b32 s3, {sB}, 11
              s_add_u32 s52, s52, s3
              s_lshl_b32 s3, {sKT}, 6
              s_add_u32 s52, s52, s3
              s_add_u32 s52, s52, {OP_OFF}
              s_add_u32 s53, s52, 4096
              s_add_u32 s54, s52, 8192
              s_add_u32 s55, s52, 12288
              v_lshlrev_b32 v7, 9, {vN}
              v_cmp_gt_u32 vcc, 16, v0
              v_cndmask_b32 v109, v79, v7, vcc
              s_lshl_b32 s56, {sHG}, 13
              s_lshl_b32 s3, {sB}, 8
              s_add_u32 s56, s56, s3
              s_lshl_b32 s3, {sKT}, 3
              s_add_u32 s56, s56, s3
              s_add_u32 s56, s56, {ML_OFF}
              v_mov_b32 v112, 0x3f803f80
              v_mov_b32 v113, 0x3f803f80
              v_mov_b32 v114, 0x3f803f80
              v_mov_b32 v115, 0x3f803f80""")
        VO = 116
        self.rows1152_voffs(VO)
        a(f"""s_mul_i32 s57, s12, {32*1152}
              s_mul_i32 s3, {sW}, 9216
              s_add_u32 s57, s57, s3
              s_add_u32 s58, s3, {WOL}
              s_lshl_b32 s59, {sW}, 13
              s_add_u32 s59, s59, {WUVL}""")
        self.poll(aloads, B(QA, 16), "v7", "qap", issued=True)
        self.ts(7)
        for i in range(4):
            a(f"ds_write_b128 {vr(100+i)}, {vr(QA+4*i,4)} offset:{1024*i}")
        a("s_waitcnt lgkmcnt(0)")
        self.barrier()
        p3 = [("uv", i) for i in range(8)] + [("wo", i) for i in range(9)]
        def p3issue(k):
            kind, i = p3[k]
            if kind == "uv":
                a(f"s_add_u32 m0, s59, {i*1024}")
                if i:
                    a(f"s_add_u32 s44, s44, {4*8192}")
                a(f"buffer_load_dwordx4 {vA if i<4 else vB}, {R2}, s44 offen{self.nt('nt_w')} lds", ("p3", k))
            else:
                self.dma1152(R3, VO, "s57", "s58", "nt_w", ("p3", k), i)
        BQ = 128
        SD = 160
        for s in range(8):
            a(f"ds_read_b128 {vr(BQ+4*s,4)}, {vr(QB+(s&3))} offset:{(s>>2)*256}", ("bq", s))
        nxt = 0
        for s in range(16):
            a.wait_ds(("bq", s))
            for tt in range(2):
                cin = "0" if s == 0 else vr(SD+4*tt, 4)
                a(f"v_mfma_f32_16x16x32_bf16 {vr(SD+4*tt,4)}, {ar(64*tt+4*s,4)}, {vr(BQ+4*(s&7),4)}, {cin}")
            if s + 8 < 16:
                s2 = s + 8
                a(f"ds_read_b128 {vr(BQ+4*(s2&7),4)}, {vr(QB+(s2&3))} offset:{(s2>>2)*256}", ("bq", s2))
            if nxt < c["p3_first"]:
                p3issue(nxt); nxt += 1
        self.ts(8)
        a(f"""v_max3_f32 v7, {vr(SD)}, {vr(SD+1)}, {vr(SD+2)}
              v_max3_f32 v8, {vr(SD+3)}, {vr(SD+4)}, {vr(SD+5)}
              v_max3_f32 v7, v7, {vr(SD+6)}, {vr(SD+7)}
              v_max_f32 v7, v7, v8""")
        self.xrow("v_max_f32", "v7", "v8")
        a("ds_write_b32 v104, v7\ns_waitcnt lgkmcnt(0)")
        self.barrier()
        a(f"""ds_read_b128 v[168:171], v105
              s_waitcnt lgkmcnt(0)
              v_max3_f32 v110, v168, v169, v170
              v_max_f32 v110, v110, v171""")
        for k in range(8):
            a(f"v_sub_f32 {vr(SD+k)}, {vr(SD+k)}, v110")
        for k in range(8):
            a(f"v_exp_f32 {vr(SD+k)}, {vr(SD+k)}")
        for k in range(4):
            a(f"v_cvt_pk_bf16_f32 {vr(168+k)}, {vr(SD+2*k)}, {vr(SD+2*k+1)}")
        a("ds_write_b128 v106, v[168:171]\ns_waitcnt lgkmcnt(0)")
        self.barrier()
        PF = 128
        for ks in range(4):
            a(f"ds_read_b128 {vr(PF+4*ks,4)}, v107 offset:{1024*ks}", ("pf", ks))
        LD = 172
        OD = 176
        for ks in range(4):
            a.wait_ds(("pf", ks))
            cin = "0" if ks == 0 else vr(LD, 4)
            a(f"v_mfma_f32_16x16x32_bf16 {vr(LD,4)}, v[112:115], {vr(PF+4*ks,4)}, {cin}")
        def pvt(t):
            for ks in range(4):
                cin = "0" if ks == 0 else vr(OD+4*t, 4)
                a(f"v_mfma_f32_16x16x32_bf16 {vr(OD+4*t,4)}, {ar(128+32*ks+4*t,4)}, {vr(PF+4*ks,4)}, {cin}")
        def epi(u):
            b = OD + 8*u
            for k in range(4):
                a(f"v_pk_mul_f32 {vr(b+2*k,2)}, {vr(b+2*k,2)}, v[146:147]")
            for k in range(4):
                a(f"v_cvt_pk_bf16_f32 {vr(b+k)}, {vr(b+2*k)}, {vr(b+2*k+1)}")
            self.tagb(b, sTK)
            a(f"buffer_store_dwordx4 {vr(b,4)}, v108, {WS}, s{52+u} offen sc1", "opst")
        pvt(0); pvt(1)
        a(f"v_rcp_f32 v146, {vr(LD)}\nv_log_f32 v148, {vr(LD)}")
        pvt(2)
        a(f"v_mov_b32 v147, v146\nv_add_f32 v148, v148, v110\nv_mov_b32 v149, {sT4}")
        a(f"buffer_store_dwordx2 v[148:149], v109, {WS}, s56 offen sc1", "mlst")
        epi(0)
        pvt(3); pvt(4)
        epi(1)
        pvt(5); pvt(6)
        epi(2)
        pvt(7)
        epi(3)
        self.ts(9)
        while nxt < len(p3):
            p3issue(nxt); nxt += 1
        OPR, MLR, MLW = 24, 40, 208
        a(f"""s_lshl_b32 s48, s12, 14
              s_lshl_b32 s3, {sW}, 12
              s_add_u32 s48, s48, s3
              s_add_u32 s48, s48, {OP_OFF}
              s_add_u32 s51, s3, {OPL}
              v_and_b32 v7, 1, {vN}
              v_lshlrev_b32 v8, 8, v7
              v_lshl_add_u32 v100, {vG}, 5, v8
              v_cmp_eq_u32 s[62:63], 0, v7
              s_lshl_b32 s49, {sH}, 9
              s_add_u32 s49, s49, {ML_OFF}""")
        oloads = [f"buffer_load_dwordx4 {vr(OPR+4*i,4)}, {vL16}, {WS}, s48 offen offset:{1024*i} sc1" for i in range(4)]
        oloads += [f"buffer_load_dwordx4 {vr(MLW+4*i,4)}, v100, {WS}, s49 offen offset:{128*(i>>1)+16*(i&1)} sc1" for i in range(4)]
        for s in oloads:
            a(s, "opp")
        a(f"""v_and_b32 v7, 1, {vG}
              v_lshlrev_b32 v8, 5, v7
              v_xor_b32 v101, v8, {vL16}
              v_add_u32 v101, s51, v101
              v_add_u32 v8, v8, {vCC8}
              v_lshl_add_u32 v10, {vG}, 2, {vRR}
              v_lshl_add_u32 v8, v10, 6, v8
              v_add_u32 v102, s51, v8
              v_xor_b32 v103, 32, v102
              v_lshlrev_b32 v8, 4, v7
              v_lshrrev_b32 v7, 1, {vG}
              v_lshl_add_u32 v8, v7, 2, v8
              v_add_u32 v8, v8, {vRR}
              v_lshl_add_u32 v8, v8, 8, v78
              v_add_u32 {vr(PV)}, s59, v8""")
        for t in range(1, 8):
            a(f"v_xor_b32 {vr(PV+t)}, {32*t}, {vr(PV)}")
        a(f"""v_lshrrev_b32 v7, 1, v77
              v_xor_b32 v7, {sW}, v7
              v_lshl_add_u32 v7, v7, 5, {vCC8}
              v_mul_u32_u24 v10, 1152, v10
              v_add_u32 v7, v7, v10
              v_add_u32 v104, {WOL}, v7
              v_and_b32 v7, 1, {vN}
              v_lshlrev_b32 v7, 7, v7
              v_lshl_add_u32 v7, {vG}, 4, v7
              v_cmp_gt_u32 vcc, 2, {vN}
              v_cndmask_b32 v105, v79, v7, vcc
              v_lshrrev_b32 v8, 1, {vN}
              v_lshl_add_u32 v106, v8, 8, v7
              v_lshlrev_b32 v7, 6, {vN}
              v_lshl_add_u32 v7, {vG}, 4, v7
              v_cndmask_b32 v107, v79, v7, vcc
              s_lshl_b32 s52, {sH}, 14
              s_add_u32 s52, s52, {CX_OFF}
              s_lshl_b32 s3, {sJ}, 12
              s_add_u32 s56, s52, s3
              s_lshl_b32 s3, {sJ}, 10
              s_add_u32 s52, s52, s3
              s_lshl_b32 s3, {sW}, 8
              s_add_u32 s52, s52, s3
              s_add_u32 s53, s52, 4096
              s_add_u32 s54, s52, 8192
              s_add_u32 s55, s52, 12288
              s_lshl_b32 s57, {sW}, 14
              s_lshl_b32 s3, s12, 7
              s_add_u32 s57, s57, s3
              s_add_u32 s57, s57, {SP_OFF}""")
        UV = 0
        a.wait_vm(("p3", 7))
        for t in range(8):
            for t2 in range(2):
                a(f"ds_read_b64_tr_b16 {ar(UV+4*t+2*t2,2)}, {vr(PV+t)} offset:{2048*t2}")
        a.wait_vm(("p3", 16))
        self.ts(10)
        self.barrier()
        WO = 32
        for u in range(9):
            for hh in range(2):
                a(f"ds_read_b64_tr_b16 {ar(WO+4*u+2*hh,2)}, v104 offset:{u*128+16*hh*1152}")
        self.poll(oloads, B(OPR, 16) + [(vr(MLW+2*k+1), "w") for k in range(8)], "v7", "opp", issued=True)
        self.ts(11)
        for i in range(4):
            a(f"ds_write_b128 v101, {vr(OPR+4*i,4)} offset:{1024*i}")
        m = MLR
        a(f"""v_max3_f32 v7, {vr(MLW)}, {vr(MLW+2)}, {vr(MLW+4)}
              v_max3_f32 v8, {vr(MLW+6)}, {vr(MLW+8)}, {vr(MLW+10)}
              v_max3_f32 v7, v7, {vr(MLW+12)}, {vr(MLW+14)}
              v_max_f32 v7, v7, v8""")
        self.xrow("v_max_f32", "v7", "v8")
        a("s_waitcnt lgkmcnt(0)")
        RF = 48
        for bs in range(2):
            for t in range(2):
                for hh in range(2):
                    a(f"ds_read_b64_tr_b16 {vr(RF+8*bs+4*t+2*hh,2)}, {vr(102+t)} offset:{(32*bs+16*hh)*64}")
        for k in range(8):
            a(f"v_sub_f32 {vr(m+k)}, {vr(MLW+2*k)}, v7")
        for k in range(8):
            a(f"v_exp_f32 {vr(m+k)}, {vr(m+k)}")
        a(f"""v_pk_add_f32 v[64:65], {vr(m,2)}, {vr(m+2,2)}
              v_pk_add_f32 v[66:67], {vr(m+4,2)}, {vr(m+6,2)}
              v_pk_add_f32 v[64:65], v[64:65], v[66:67]
              v_add_f32 v7, v64, v65""")
        self.xrow("v_add_f32", "v7", "v8")
        a("v_rcp_f32 v66, v7")
        for k in range(4):
            a(f"v_cvt_pk_bf16_f32 {vr(m+k)}, {vr(m+2*k)}, {vr(m+2*k+1)}")
        for k in range(4):
            a(f"v_cndmask_b32 {vr(68+k)}, 0, {vr(m+k)}, s[62:63]")
            a(f"v_cndmask_b32 {vr(72+k)}, {vr(m+k)}, 0, s[62:63]")
        a("v_mov_b32 v67, v66\ns_waitcnt lgkmcnt(0)")
        CD = 128
        for bs in range(2):
            for t in range(2):
                cin = "0" if bs == 0 else vr(CD+4*t, 4)
                a(f"v_mfma_f32_16x16x32_bf16 {vr(CD+4*t,4)}, {vr(RF+8*bs+4*t,4)}, {vr(68+4*bs,4)}, {cin}")
        for k in range(4):
            a(f"v_pk_mul_f32 {vr(CD+2*k,2)}, {vr(CD+2*k,2)}, v[66:67]")
        for k in range(4):
            a(f"v_cvt_pk_bf16_f32 {vr(CD+k)}, {vr(CD+2*k)}, {vr(CD+2*k+1)}")
        XD = 136
        for t in range(8):
            a(f"v_mfma_f32_16x16x32_bf16 {vr(XD+4*t,4)}, {ar(UV+4*t,4)}, {vr(CD,4)}, 0")
        for t in range(8):
            self.tagf(XD+4*t, 4)
            a(f"buffer_store_dwordx4 {vr(XD+4*t,4)}, v105, {WS}, s{52+(t>>1)} offen offset:{64*(t&1)} sc1", "cxst")
        self.ts(12)
        CR = 24
        cloads = [f"buffer_load_dwordx4 {vr(CR+8*pp+4*hh,4)}, v106, {WS}, s56 offen offset:{2048*pp+64*hh} sc1" for pp in range(2) for hh in range(2)]
        self.poll(cloads, F(CR, 16), "v7", "cxp")
        self.ts(13)
        for k in range(4):
            a(f"v_pk_add_f32 {vr(CR+2*k,2)}, {vr(CR+2*k,2)}, {vr(CR+8+2*k,2)}")
        for r in (2, 4, 8):
            for k in range(8):
                a(f"v_add_f32_dpp {vr(CR+k)}, {vr(CR+k)}, {vr(CR+k)} row_ror:{r} row_mask:0xf bank_mask:0xf")
        for k in range(4):
            a(f"v_cvt_pk_bf16_f32 {vr(CR+k)}, {vr(CR+2*k)}, {vr(CR+2*k+1)}")
        a("s_waitcnt lgkmcnt(0)")
        SD3 = 176
        for u in range(9):
            a(f"v_mfma_f32_16x16x32_bf16 {vr(SD3+4*u,4)}, {ar(WO+4*u,4)}, {vr(CR,4)}, 0")
        for u in range(9):
            self.tagf(SD3+4*u, 4)
            a(f"buffer_store_dwordx4 {vr(SD3+4*u,4)}, v107, {WS}, s57 offen sc1")
            if u < 8:
                a(f"s_add_u32 s57, s57, {4*16384}")
        self.ts(15)
        self.ts_flush()
        a.label("L_end")
        a("s_endpgm")

    def build(self):
        hdr = open("cdna_kernels/" + NAME + ".s.ref").read().split("\n")
        top = [l for l in hdr if l.startswith(";") and "@launch" not in l and "Override launch" not in l and "grid=ceil" not in l]
        a = self.a
        self.prologue()
        self.ga()
        self.gb()
        s = "\n".join(top) + "\n"
        s += f"; @launch grid=(256,1,1) block=(256,1,1) lds={LDS_SIZE}\n"
        s += f""".amdgcn_target "amdgcn-amd-amdhsa--gfx950"
.text
.globl {NAME}_kernel
.p2align 8
.type {NAME}_kernel,@function
{NAME}_kernel:
"""
        s += a.text()
        s += f""".section .rodata,"a"
.p2align 6
.amdhsa_kernel {NAME}_kernel
  .amdhsa_next_free_vgpr 512
  .amdhsa_next_free_sgpr 102
  .amdhsa_accum_offset 256
  .amdhsa_group_segment_fixed_size 0
  .amdhsa_kernarg_size 104
  .amdhsa_user_sgpr_count 2
  .amdhsa_user_sgpr_kernarg_segment_ptr 1
  .amdhsa_system_sgpr_workgroup_id_x 1
  .amdhsa_float_denorm_mode_32 3
.end_amdhsa_kernel
"""
        return s

if __name__ == "__main__":
    out = sys.argv[1]
    cfg = {}
    for kv in sys.argv[2:]:
        k, v = kv.split("=")
        cfg[k] = int(v)
    g = Gen(cfg)
    open(out, "w").write(g.build())
    print("wrote", out, "nops inserted:", g.a.nops)
```

```python
import sys
from asmlib import Asm

NAME = "recurrent_scan__compressed_kv_cla__geglu_ffn__decode"

DEF = dict(
    ts=0,
    nt_w=1,
    nt_ckv=1,
    pf=1,
    uk_ln=3,
    q_at=2,
    f_d1=12, f_sw=18, f_d2=12,
    o_d1=8, o_sw=18, o_d2=12,
    f_touch=20, f_lag=12,
    f_pre=0,
    gb_d1=12, gb_sw=12, gb_d2=32,
    uv_pos=0,
    rot=0,
    uv_at=16,
    uv_early=0,
    ml_pos=4,
    op_sync=1, pv_fill=2,
    kslow=24,
    fast=1,
    spin=60000,
    nob=0,
    nof=0,
)

QF_OFF = 0x000000
CF_OFF = 0x020000
PF_OFF = 0x040000
SLOW   = 0x500000
QA_OFF = 0x100000
ML_OFF = 0x110000
SP_OFF = 0x120000
YP_OFF = 0x148000
OP_OFF = 0x200000
EP_OFF = 0x400000
TS_OFF = 0x800000
WS_SIZE = 0x1000000
OOB = 0x7f000000

XN = 0
QL = 0xA00
FBASE = 0x2000
WUKL = 0x15000
WQL = 0x1D000
LDS_SIZE = 0x26000
CKV = 0
QAL = 0x20000
MX = 0x24000
PB = 0x24400
CXL = 0x25400
WUVL = 0
WOL = 0x8000
OPL = 0x14000

sW, sH, sJ, sX, sA, sP = "s6", "s7", "s8", "s9", "s11", "s12"
WS = "s[16:19]"
R0, R1, R2, R3, R4 = "s[24:27]", "s[28:31]", "s[32:35]", "s[36:39]", "s[40:43]"
sCNT, sMASK = "s60", "s20"
sT = "s61"
sTK = ["s96", "s97", "s98", "s99"]
sT4 = "s100"
M1, M2, M4 = "s[62:63]", "s[22:23]", "s[58:59]"
vMF, vMB, vSEL, vOOB = "v254", "v255", "v252", "v251"
vL, vN, vG, vRR, vCC8, vL16 = "v1", "v2", "v3", "v4", "v5", "v6"
vR7, vX78, vXI, vXO = "v250", "v249", "v248", "v247"

def vr(b, n=1):
    return f"v{b}" if n == 1 else f"v[{b}:{b+n-1}]"
def ar(b, n=1):
    return f"a{b}" if n == 1 else f"a[{b}:{b+n-1}]"
def F(b, n):
    return [(vr(b+k), "f") for k in range(n)]
def B(b, n):
    return [(vr(b+k), ("b", k & 3)) for k in range(n)]
MM = "v_mfma_f32_16x16x32_bf16"

class Gen:
    def __init__(self, cfg):
        self.cfg = dict(DEF)
        for k in cfg:
            assert k in DEF, k
        self.cfg.update(cfg)
        self.a = Asm()

    def ts(self, k):
        if self.cfg["ts"] == 1 or (self.cfg["ts"] == 2 and k in (0, 15)):
            self.a(f"s_memrealtime s[{64+2*k}:{65+2*k}]\ns_waitcnt lgkmcnt(0)")

    def cnt(self, k):
        if self.cfg["ts"] == 1:
            self.a(f"s_sub_u32 s{64+2*k}, {self.cfg['spin']+1}, {sCNT}\ns_mov_b32 s{65+2*k}, 0")

    def end(self):
        a = self.a
        self.ts(15)
        if self.cfg["ts"]:
            a.c("diagnostic: store stamps")
            a(f"""s_mov_b64 exec, -1
                  s_lshl_b32 s3, s2, 2
                  s_add_u32 s3, s3, {sW}
                  s_lshl_b32 s3, s3, 7
                  s_add_u32 s3, s3, {TS_OFF}
                  v_mov_b32 v8, 0""")
            for k in range(16):
                a(f"v_mov_b32 v10, s{64+2*k}\nv_mov_b32 v11, s{65+2*k}")
                a(f"buffer_store_dwordx2 v[10:11], v8, {WS}, s3 offen offset:{8*k}")
                a("s_nop 1")
        a("s_endpgm")

    def srd(self, reg, slot, size):
        base = int(reg[2:].split(":")[0])
        self.a(f"s_load_dwordx2 s[{base}:{base+1}], s[0:1], {slot*8}\ns_mov_b32 s{base+2}, {size}\ns_mov_b32 s{base+3}, 0x20000")

    def nt(self, k):
        return " nt" if self.cfg[k] else ""

    def check_regs(self, regs, tmp):
        a = self.a
        kind = regs[0][1]
        kind = "b" if isinstance(kind, tuple) else kind
        for i, (r, k) in enumerate(regs):
            t = sT if kind == "f" else (sT4 if kind == "w" else sTK[k[1]])
            if i == 0:
                a(f"v_xor_b32 {tmp}, {t}, {r}")
            else:
                a(f"v_bitop3_b32 {tmp}, {tmp}, {r}, {t} bitop3:0xf6")
        if kind == "f":
            a(f"v_and_b32 {tmp}, 0xff, {tmp}")
        elif kind == "b":
            a(f"v_and_b32 {tmp}, 0x10001, {tmp}")
        a(f"v_cmp_ne_u32 vcc, 0, {tmp}")

    def tagf(self, base, n):
        for k in range(n):
            self.a(f"v_and_or_b32 {vr(base+k)}, {vr(base+k)}, {vMF}, {sT}")

    def packb(self, dsts, srcs, ks, tmps):
        a = self.a
        for d, (lo, hi) in zip(dsts, srcs):
            a(f"v_perm_b32 {d}, {hi}, {lo}, {vSEL}")
        for d, k, t in zip(dsts, ks, tmps):
            a(f"v_bitop3_b32 {t}, {d}, {k}, {vMB} bitop3:0x28")
        for d, t in zip(dsts, tmps):
            a(f"v_add_u32 {d}, {d}, {t}")

    def merge(self, d, n):
        a = self.a
        for k in range(4):
            a(f"v_cndmask_b32 {vr(d+k)}, {vr(d+k)}, {vr(d+4+k)}, {M2}")
        if n == 4:
            for k in range(4):
                a(f"v_cndmask_b32 {vr(d+8+k)}, {vr(d+8+k)}, {vr(d+12+k)}, {M2}")
        if n >= 3:
            for k in range(4):
                a(f"v_cndmask_b32 {vr(d+k)}, {vr(d+k)}, {vr(d+8+k)}, {M4}")

    def epoch_load(self):
        self.a(f"s_add_u32 s4, s16, {EP_OFF}\ns_addc_u32 s5, s17, 0\ns_load_dword {sT}, s[4:5], 0")

    def tags_setup(self):
        a = self.a
        a(f"""s_add_u32 {sT}, {sT}, 1
              s_and_b32 {sT}, {sT}, 0xff
              s_cmp_eq_u32 {sT}, 0xff
              s_cselect_b32 {sT}, 0, {sT}
              s_cmp_eq_u32 {sT}, 0x55
              s_addc_u32 {sT}, {sT}, 0
              s_cmp_eq_u32 {sT}, 0xaa
              s_addc_u32 {sT}, {sT}, 0
              s_cmp_eq_u32 {sT}, 0
              s_addc_u32 {sT}, {sT}, 0
              s_mul_i32 {sT4}, {sT}, 0x01010101""")
        for k in range(4):
            a(f"""s_bfe_u32 s3, {sT}, {(1 << 16) | (2*k+1)}
                  s_lshl_b32 s3, s3, 16
                  s_bfe_u32 {sTK[k]}, {sT}, {(1 << 16) | (2*k)}
                  s_or_b32 {sTK[k]}, {sTK[k]}, s3""")

    def common_setup(self):
        self.a(f"""v_mov_b32 {vMF}, 0xffffff00
              v_mov_b32 {vMB}, 0x00010001
              v_mov_b32 {vSEL}, 0x07060302
              v_mov_b32 {vOOB}, {OOB}
              v_and_b32 v7, 1, {vN}
              v_cmp_ne_u32 {M1}, 0, v7
              v_and_b32 v8, 2, {vN}
              v_cmp_ne_u32 {M2}, 0, v8
              v_and_b32 v10, 4, {vN}
              v_cmp_ne_u32 {M4}, 0, v10
              v_lshlrev_b32 v7, 7, v7
              v_lshl_add_u32 v7, v8, 5, v7
              v_lshl_add_u32 v7, {vG}, 4, v7
              v_cmp_gt_u32 vcc, 4, {vN}
              v_cndmask_b32 {vXO}, {vOOB}, v7, vcc
              v_lshlrev_b32 v7, 5, {vCC8}
              v_lshl_add_u32 v7, v10, 5, v7
              v_lshrrev_b32 v8, 3, {vN}
              v_lshl_add_u32 v7, v8, 6, v7
              v_lshl_add_u32 {vXI}, {vG}, 4, v7
              v_and_b32 v7, 1, {vG}
              v_lshl_add_u32 {vR7}, v7, 2, {vRR}
              v_lshl_add_u32 {vX78}, {vR7}, 5, {vCC8}""")

    def poll(self, groups, tmp, tag, issued=False):
        a = self.a
        if not issued:
            for loads, _ in groups:
                for s in loads:
                    a(s, tag)
        a(f"s_mov_b32 {sCNT}, {self.cfg['spin']}")
        a.wait_vm(tag)
        top, ok = a.newlab("Lp"), a.newlab("Lok")
        keep = list(a.vm)
        if len(groups) == 1:
            a.label(top)
            self.check_regs(groups[0][1], tmp)
            a(f"s_cbranch_vccz {ok}")
            a(f"s_sub_u32 {sCNT}, {sCNT}, 1\ns_cbranch_scc1 {ok}")
            for s in groups[0][0]:
                a(s)
            a(f"s_waitcnt vmcnt(0)\ns_branch {top}")
        else:
            self.check_regs([r for _, regs in groups for r in regs], tmp)
            a(f"s_mov_b32 {sMASK}, {(1 << len(groups)) - 1}")
            a(f"s_cbranch_vccz {ok}")
            a.label(top)
            for i, (loads, regs) in enumerate(groups):
                nx, cl = a.newlab("Ln"), a.newlab("Lc")
                a(f"s_bitcmp0_b32 {sMASK}, {i}\ns_cbranch_scc1 {nx}")
                self.check_regs(regs, tmp)
                a(f"s_cbranch_vccz {cl}")
                for s in loads:
                    a(s)
                a(f"s_branch {nx}")
                a.label(cl)
                a(f"s_bitset0_b32 {sMASK}, {i}")
                a.label(nx)
            a(f"s_cmp_eq_u32 {sMASK}, 0\ns_cbranch_scc1 {ok}")
            a(f"s_waitcnt vmcnt(0)\ns_sub_u32 {sCNT}, {sCNT}, 1\ns_cbranch_scc0 {top}")
        a.vm = keep
        a.label(ok)

    def poll2(self, mk, vaddr, regs, tag, slow_store=None, every=2):
        a = self.a
        K = self.cfg["spin"] - self.cfg["kslow"]
        a(f"s_mov_b32 {sCNT}, {self.cfg['spin']}")
        a.wait_vm(tag)
        top, ok, ns = a.newlab("Lp"), a.newlab("Lok"), a.newlab("Lns")
        keep = list(a.vm)
        a.label(top)
        self.check_regs(regs, "v7")
        a(f"s_cbranch_vccz {ok}")
        a(f"s_sub_u32 {sCNT}, {sCNT}, 1\ns_cbranch_scc1 {ok}")
        if self.cfg["fast"]:
            if slow_store:
                a(f"s_cmp_eq_u32 {sCNT}, {K}\ns_cbranch_scc0 {ns}")
                a(slow_store)
                a.label(ns)
            a(f"""s_cmp_le_u32 {sCNT}, {K}
                  s_cselect_b32 s3, {sCNT}, 1
                  s_and_b32 s3, s3, {every-1}
                  s_cselect_b32 s3, 0, {SLOW}
                  v_add_u32 v8, s3, {vaddr}""")
            for s in mk("v8"):
                a(s)
        else:
            for s in mk(vaddr):
                a(s)
        a(f"s_waitcnt vmcnt(0)\ns_branch {top}")
        a.vm = keep
        a.label(ok)

    def xpub(self, d, soff, tag):
        self.tagf(d, 4)
        if self.cfg["fast"]:
            self.a(f"buffer_store_dwordx4 {vr(d,4)}, {vXO}, {WS}, {soff} offen", tag)
            return f"s_add_u32 s3, {soff}, {SLOW}\nbuffer_store_dwordx4 {vr(d,4)}, {vXO}, {WS}, s3 offen sc1"
        self.a(f"buffer_store_dwordx4 {vr(d,4)}, {vXO}, {WS}, {soff} offen sc1", tag)
        return None

    def xsum(self, r, vlds):
        a = self.a
        for q in ("[1,0,3,2]", "[2,3,0,1]"):
            for k in range(4):
                a(f"v_add_f32_dpp {vr(r+k)}, {vr(r+k)}, {vr(r+k)} quad_perm:{q} row_mask:0xf bank_mask:0xf")
        a(f"v_cvt_pk_bf16_f32 {vr(r)}, {vr(r)}, {vr(r+1)}\nv_cvt_pk_bf16_f32 {vr(r+1)}, {vr(r+2)}, {vr(r+3)}")
        a(f"ds_write_b64 {vlds}, {vr(r,2)}\ns_waitcnt lgkmcnt(0)")

    def xlds_addr(self, dst, base):
        self.a(f"""s_lshl_b32 s3, {sW}, 6
                   s_add_u32 s3, s3, {base}
                   v_bfe_u32 v7, {vN}, 2, 1
                   v_lshlrev_b32 v7, 8, v7
                   v_lshrrev_b32 v8, 3, {vN}
                   v_lshl_add_u32 v7, v8, 5, v7
                   v_lshl_add_u32 v7, {vG}, 3, v7
                   v_add_u32 {dst}, s3, v7""")

    def barrier(self):
        self.a("s_barrier")

    def rows384_voffs(self, base, stride):
        a = self.a
        a(f"s_movk_i32 s3, 2731\ns_movk_i32 s4, {stride - 384}")
        for i in range(3):
            a(f"""v_add_u32 v7, {64*i}, {vL}
                  v_mul_u32_u24 v8, s3, v7
                  v_lshrrev_b32 v8, 16, v8
                  v_lshrrev_b32 v10, 1, v8
                  v_lshlrev_b32 v10, 5, v10
                  v_xor_b32 v10, v10, {vL16}
                  v_mad_u32_u24 {vr(base+i)}, v8, s4, v10""")

    def rows1152_voffs(self, base):
        a = self.a
        a("s_movk_i32 s3, 1821")
        for i in range(9):
            a(f"""v_add_u32 v7, {64*i}, {vL}
                  v_mul_u32_u24 v8, s3, v7
                  v_lshrrev_b32 v8, 18, v8
                  v_lshlrev_b32 v8, 5, v8
                  v_xor_b32 v8, v8, {vL16}
                  v_add_u32 {vr(base+i)}, {(i & 12) * 1024}, v8""")

    def tile384_addr(self, dst, base, row=384):
        self.a(f"""v_lshrrev_b32 v7, 1, {vR7}
                   v_xor_b32 v7, {sW}, v7
                   v_lshl_add_u32 v7, v7, 5, {vCC8}
                   v_lshl_add_u32 v8, {vG}, 2, {vRR}
                   v_mul_u32_u24 v8, {row}, v8
                   v_add_u32 v7, v7, v8
                   v_add_u32 {dst}, {base}, v7""")

    def out3_addr(self, dst, shift):
        self.a(f"""v_lshrrev_b32 v7, 1, {vN}
                   v_mul_u32_u24 v7, {4*shift}, v7
                   v_and_b32 v8, 1, {vN}
                   v_lshl_add_u32 v7, v8, 6, v7
                   v_lshl_add_u32 v7, {vG}, 4, v7
                   v_cmp_gt_u32 vcc, 6, {vN}
                   v_cndmask_b32 {dst}, {vOOB}, v7, vcc""")

    def red32(self, op, x, t):
        a = self.a
        for r in (8, 4, 2, 1):
            a(f"{op}_dpp {x}, {x}, {x} row_ror:{r} row_mask:0xf bank_mask:0xf")
        a(f"v_mov_b32 {t}, {x}\nv_permlane16_swap_b32 {x}, {t}\n{op} {x}, {x}, {t}")

    def xrow(self, op, x, t):
        self.a(f"""v_mov_b32 {t}, {x}
                   v_permlane16_swap_b32 {x}, {t}
                   {op} {x}, {x}, {t}
                   v_mov_b32 {t}, {x}
                   v_permlane32_swap_b32 {x}, {t}
                   {op} {x}, {x}, {t}""")

    def stream(self, n, d1, sw, d2, issue, hooks, per=3):
        a = self.a
        self.q = []
        for i in range(n + 1):
            for f in hooks.get(i, []):
                while self.q:
                    self.q.pop(0)()
                f()
            if i == n:
                break
            d = d1 if i < sw else d2
            if i - d >= 0:
                a.wait_vm(("st", i - d))
            issue(i)
            for _ in range(per):
                if self.q:
                    self.q.pop(0)()
        while self.q:
            self.q.pop(0)()

    def prologue(self):
        a = self.a
        c = self.cfg
        a("s_cmp_ge_u32 s2, 256\ns_cbranch_scc1 L_end")
        self.srd(R1, 2, 576*8192)
        self.srd(R3, 1, 2*4096*1024)
        self.srd(R0, 0, 2304)
        self.srd(R2, 3, 512*8192)
        self.srd(WS, 12, WS_SIZE)
        if c["ts"]:
            for k in range(1, 16):
                a(f"s_mov_b64 s[{64+2*k}:{65+2*k}], 0")
            a("s_memrealtime s[64:65]")
        a(f"""s_lshr_b32 s10, s2, 3
              s_and_b32 {sX}, s2, 7
              v_lshrrev_b32 v7, 6, v0
              v_and_b32 {vL}, 63, v0
              v_readfirstlane_b32 {sW}, v7
              s_and_b32 {sA}, s10, 15
              s_lshl_b32 {sP}, {sX}, 4
              s_add_u32 {sP}, {sP}, {sA}
              s_lshr_b32 {sH}, {sP}, 2
              s_and_b32 {sJ}, {sA}, 3""")
        if c["pf"]:
            a.c("pull the kernel's own code into L2")
            a("s_getpc_b64 s[4:5]")
            a.label("L_pc")
            a(f"""s_and_b32 s3, s10, 3
                  s_lshl_b32 s3, s3, 2
                  s_add_u32 s3, s3, {sW}
                  s_mul_i32 s3, s3, 1152
                  v_lshl_add_u32 v7, {vL}, 6, s3
                  v_min_u32 v7, L_end-L_pc, v7
                  s_mov_b64 exec, 0x3ffff""")
            a("global_load_dword v9, v7, s[4:5]", "pf")
            a("s_mov_b64 exec, -1")
        a(f"""v_and_b32 {vN}, 15, {vL}
              v_lshrrev_b32 {vG}, 4, {vL}
              v_lshlrev_b32 {vL16}, 4, {vL}""")
        a("s_cmp_ge_u32 s10, 16\ns_cbranch_scc1 L_GB")

    def lane_late(self):
        self.a(f"""v_lshrrev_b32 {vRR}, 2, {vN}
                   v_and_b32 {vCC8}, 3, {vL}
                   v_lshlrev_b32 {vCC8}, 3, {vCC8}""")

    def wuk(self, i):
        a = self.a
        a(f"s_add_u32 m0, s21, {i*1024}")
        if i:
            a(f"s_add_u32 s47, s47, {4*8192}")
        a(f"buffer_load_dwordx4 {'v17' if i%2==0 else 'v18'}, {R2}, s47 offen{self.nt('nt_w')} lds", ("wuk", i))

    def ln(self):
        a = self.a
        X, vXA = 24, "v12"
        U = 34
        for k in range(9):
            a(f"v_lshlrev_b32 {vr(U+2*k)}, 16, {vr(X+k)}\nv_and_b32 {vr(U+2*k+1)}, 0xffff0000, {vr(X+k)}")
        a(f"v_pk_add_f32 v[52:53], {vr(U,2)}, {vr(U+2,2)}\nv_pk_add_f32 v[54:55], {vr(U+4,2)}, {vr(U+6,2)}")
        for k in range(4, 8, 2):
            a(f"v_pk_add_f32 v[52:53], v[52:53], {vr(U+2*k,2)}\nv_pk_add_f32 v[54:55], v[54:55], {vr(U+2*k+2,2)}")
        a(f"v_pk_add_f32 v[52:53], v[52:53], {vr(U+16,2)}\nv_pk_add_f32 v[52:53], v[52:53], v[54:55]\nv_add_f32 v52, v52, v53")
        self.red32("v_add_f32", "v52", "v53")
        a("v_mul_f32 v52, 0x3ae38e39, v52")
        a("v_cvt_pk_bf16_f32 v54, v52, v52\nv_mov_b32 v53, v52\nv_and_b32 v54, 0xffff0000, v54\nv_mov_b32 v55, v54")
        D = 56
        for k in range(9):
            a(f"v_pk_add_f32 {vr(D+2*k,2)}, {vr(U+2*k,2)}, v[52:53] neg_lo:[0,1] neg_hi:[0,1]")
        a(f"v_pk_mul_f32 v[74:75], {vr(D,2)}, {vr(D,2)}\nv_pk_mul_f32 v[76:77], {vr(D+2,2)}, {vr(D+2,2)}")
        for k in range(2, 9):
            t = "v[74:75]" if k % 2 == 0 else "v[76:77]"
            a(f"v_pk_fma_f32 {t}, {vr(D+2*k,2)}, {vr(D+2*k,2)}, {t}")
        a("v_pk_add_f32 v[74:75], v[74:75], v[76:77]\nv_add_f32 v74, v74, v75")
        fill = [f"v_pk_add_f32 {vr(D+2*k,2)}, {vr(U+2*k,2)}, v[54:55] neg_lo:[0,1] neg_hi:[0,1]" for k in range(9)]
        fill += [f"v_cvt_pk_bf16_f32 {vr(X+k)}, {vr(D+2*k)}, {vr(D+2*k+1)}" for k in range(9)]
        for k in range(9):
            fill += [f"v_lshlrev_b32 {vr(U+2*k)}, 16, {vr(X+k)}", f"v_and_b32 {vr(U+2*k+1)}, 0xffff0000, {vr(X+k)}"]
        chain = [f"v_add_f32_dpp v74, v74, v74 row_ror:{r} row_mask:0xf bank_mask:0xf" for r in (8, 4, 2, 1)]
        chain += ["v_mov_b32 v75, v74", "v_permlane16_swap_b32 v74, v75", "v_add_f32 v74, v74, v75",
                  "v_mul_f32 v74, 0x3ae38e39, v74", "v_cvt_pk_bf16_f32 v74, v74, v74", "v_and_b32 v74, 0xffff0000, v74",
                  "v_add_f32 v74, 0x3727c5ac, v74", "v_cvt_pk_bf16_f32 v74, v74, v74", "v_and_b32 v74, 0xffff0000, v74",
                  "v_sqrt_f32 v74, v74", "v_cvt_pk_bf16_f32 v74, v74, v74", "v_and_b32 v74, 0xffff0000, v74",
                  "v_rcp_f32 v74, v74", "v_mov_b32 v75, v74"]
        for ins in chain:
            for _ in range(2):
                if fill:
                    a(fill.pop(0))
            a(ins)
        for ins in fill:
            a(ins)
        for k in range(9):
            a(f"v_pk_mul_f32 {vr(U+2*k,2)}, {vr(U+2*k,2)}, v[74:75]")
        for k in range(9):
            a(f"v_cvt_pk_bf16_f32 {vr(X+k)}, {vr(U+2*k)}, {vr(U+2*k+1)}")
            if k % 2 == 1:
                a(f"ds_write_b64 {vXA}, {vr(X+k-1,2)} offset:{XN+128*(k-1)}")
        a(f"ds_write_b32 v16, {vr(X+8)} offset:{XN+1024}")

    def ga(self):
        a = self.a
        c = self.cfg
        pre_vm = list(a.vm)
        a.c("===== group A: q, absorbed query, then FFN roles =====")
        vXA, vA, vB = "v12", "v13", "v14"
        a(f"""v_lshrrev_b32 v7, 5, {vL}
              v_mul_u32_u24 v7, 1152, v7
              v_and_b32 v8, 31, {vL}
              v_lshl_add_u32 {vXA}, v8, 3, v7
              v_lshl_add_u32 v16, v8, 2, v7
              s_and_b32 s3, {sW}, 1
              s_lshl_b32 s3, s3, 7
              v_lshlrev_b32 v7, 5, {vG}
              v_lshlrev_b32 v8, 4, {vN}
              v_xor_b32 v7, v7, v8
              v_lshl_add_u32 v17, {vG}, 13, v7
              v_xor_b32 v18, 0x80, v17
              v_xor_b32 {vA}, s3, v17
              v_xor_b32 {vB}, 0x80, {vA}
              s_mul_i32 s44, {sJ}, {144*8192}
              s_mul_i32 s3, {sW}, {36*8192}
              s_add_u32 s44, s44, s3
              s_lshl_b32 s46, {sH}, 8
              s_add_u32 s44, s44, s46
              s_mul_i32 s45, {sW}, {36*256}
              s_add_u32 s45, s45, {WQL}
              s_lshl_b32 s47, {sJ}, 20
              s_lshl_b32 s3, {sW}, 18
              s_add_u32 s47, s47, s3
              s_add_u32 s47, s47, s46
              s_lshl_b32 s21, {sW}, 13
              s_add_u32 s21, s21, {WUKL}
              s_waitcnt lgkmcnt(0)""")
        X = 24
        for k in range(4):
            a(f"buffer_load_dwordx2 {vr(X+2*k,2)}, {vXA}, {R0}, 0 offen offset:{256*k}", "x")
        a(f"buffer_load_dword {vr(X+8)}, v16, {R0}, 0 offen offset:1024", "x")
        self.epoch_load()
        for i in range(9):
            a(f"s_add_u32 m0, s45, {i*1024}")
            if i:
                a(f"s_add_u32 s44, s44, {4*8192}")
            a(f"buffer_load_dwordx4 {vA if i%2==0 else vB}, {R1}, s44 offen{self.nt('nt_w')} lds", "wq")
        a(f"""s_lshl_b32 s48, {sH}, 12
              s_lshl_b32 s3, {sW}, 10
              s_add_u32 s48, s48, s3
              s_lshl_b32 s3, {sJ}, 8
              s_add_u32 s49, s48, s3""")
        self.ts(1)
        self.lane_late()
        self.common_setup()
        vT0, vT1, vXB = "v78", "v79", "v80"
        XS = 82
        a(f"""s_lshl_b32 s3, {sW}, 6
              v_xor_b32 v7, s3, {vX78}
              v_lshl_add_u32 v8, {vG}, 2, {vRR}
              v_lshl_add_u32 v7, v8, 8, v7
              v_add_u32 {vT0}, {WQL}, v7
              v_xor_b32 {vT1}, 32, {vT0}
              v_and_b32 v7, 1, {vN}
              v_mul_u32_u24 v8, 1152, v7
              v_lshl_add_u32 v81, {vG}, 3, v8
              s_mul_i32 s3, {sJ}, 288
              v_add_u32 {vXB}, s3, v81
              v_lshlrev_b32 v8, 8, v7
              v_lshl_add_u32 v8, {vG}, 4, v8
              v_add_u32 v87, {QL}, v8
              v_lshlrev_b32 v7, 15, v7
              v_lshrrev_b32 v8, 1, {vN}
              v_lshl_add_u32 v7, v8, 5, v7
              v_lshl_add_u32 v7, {vG}, 3, v7
              v_cmp_gt_u32 vcc, 8, {vN}
              v_cndmask_b32 v88, {vOOB}, v7, vcc
              v_lshrrev_b32 v7, 1, {vG}
              v_and_b32 v8, 7, {vN}
              v_xor_b32 v7, v7, v8
              v_lshlrev_b32 v7, 5, v7
              v_and_b32 v8, 1, {vG}
              v_lshl_add_u32 v7, v8, 4, v7
              v_lshl_add_u32 v7, {vN}, 8, v7
              s_lshl_b32 s3, {sW}, 14
              s_add_u32 s3, s3, {WUKL}
              v_add_u32 {vr(XS)}, s3, v7
              s_lshl_b32 s50, {sP}, 8
              s_lshl_b32 s3, {sW}, 7
              s_add_u32 s50, s50, s3
              s_add_u32 s50, s50, {QA_OFF}
              s_mov_b32 s51, 0x3e0293ee""")
        for s in range(1, 4):
            a(f"v_xor_b32 {vr(XS+s)}, {64*s}, {vr(XS)}")
        self.xlds_addr("v86", QL)
        a("s_waitcnt lgkmcnt(0)")
        self.tags_setup()
        a(f"""v_and_b32 v7, 1, {vG}
              v_cmp_eq_u32 vcc, 0, v7
              v_mov_b32 v7, {sTK[0]}
              v_mov_b32 v8, {sTK[2]}
              v_cndmask_b32 v90, v8, v7, vcc
              v_mov_b32 v7, {sTK[1]}
              v_mov_b32 v8, {sTK[3]}
              v_cndmask_b32 v91, v8, v7, vcc""")
        for i in range(c["uk_ln"]):
            self.wuk(i)
        a.wait_vm("x")
        self.ts(2)
        self.ln()
        if c["fast"]:
            a(f"buffer_load_dword v9, {vL16}, {WS}, s48 offen sc1", "touch")
        for i in range(c["uk_ln"], 8):
            self.wuk(i)
        self.srd(R1, 7, 576*9216)
        self.srd(R3, 8, 576*9216)
        self.srd(R2, 9, 4608*1152)
        a("s_mov_b32 s43, 0x20000")
        a("s_waitcnt lgkmcnt(0)")
        self.ts(3)
        XB = 92
        for s in range(4):
            a(f"ds_read2_b64 {vr(XB+4*s,4)}, {vXB} offset0:{8*s} offset1:{8*s+4}")
        a(f"ds_read_b64 {vr(XB+16,2)}, {vXB} offset:256")
        a.wait_vm("wq")
        self.ts(4)
        self.barrier()
        W = 112
        def rdq(s):
            for t, vt in enumerate((vT0, vT1)):
                b = W + 18*t + 4*s
                a(f"ds_read_b64_tr_b16 {vr(b,2)}, {vt} offset:{32*s*256}", f"wq{s}")
                if s < 4:
                    a(f"ds_read_b64_tr_b16 {vr(b+2,2)}, {vt} offset:{(32*s+16)*256}", f"wq{s}")
        for s in range(3):
            rdq(s)
        Dq = 148
        for s in range(5):
            a.wait_ds(f"wq{s}")
            for t in range(2):
                b = W + 18*t + 4*s
                cin = "0" if s == 0 else vr(Dq+4*t, 4)
                if s < 4:
                    a(f"{MM} {vr(Dq+4*t,4)}, {vr(b,4)}, {vr(XB+4*s,4)}, {cin}")
                else:
                    a(f"v_mfma_f32_16x16x16_bf16 {vr(Dq+4*t,4)}, {vr(b,2)}, {vr(XB+16,2)}, {cin}")
            if s + 3 < 5:
                rdq(s + 3)
        self.merge(Dq, 2)
        slow = self.xpub(Dq, "s49", "qst")
        self.ts(5)
        QR, UK = 24, 0
        mk = lambda v: [f"buffer_load_dwordx4 {vr(QR,4)}, {v}, {WS}, s48 offen sc1"]
        a.wait_vm(("wuk", 7 - c["q_at"]) if c["fast"] else "qst")
        a(mk(vXI)[0], "qp")
        a.wait_vm(("wuk", 7))
        self.ts(10)
        self.barrier()
        sk1 = a.newlab("Lsk")
        a(f"s_cmp_ge_u32 {sW}, 2\ns_cbranch_scc1 {sk1}")
        for tt in range(4):
            for s in range(4):
                a(f"ds_read_b128 {ar(UK+16*tt+4*s,4)}, {vr(XS+s)} offset:{4096*tt}")
        a.label(sk1)
        self.poll2(mk, vXI, F(QR, 4), "qp", slow)
        self.ts(11)
        self.cnt(13)
        self.xsum(QR, "v86")
        self.barrier()
        sk2 = a.newlab("Lsk")
        a(f"s_cmp_ge_u32 {sW}, 2\ns_cbranch_scc1 {sk2}")
        for s in range(4):
            a(f"ds_read_b128 {vr(QR+4*s,4)}, v87 offset:{64*s}", ("q", s))
        D = 112
        for s in range(4):
            a.wait_ds(("q", s))
            for tt in range(4):
                cin = "0" if s == 0 else vr(D+4*tt, 4)
                a(f"{MM} {vr(D+4*tt,4)}, {ar(UK+16*tt+4*s,4)}, {vr(QR+4*s,4)}, {cin}")
        self.merge(D, 4)
        for k in range(4):
            a(f"v_mul_f32 {vr(D+k)}, s51, {vr(D+k)}")
        self.packb([vr(D), vr(D+1)], [(vr(D), vr(D+1)), (vr(D+2), vr(D+3))], ["v90", "v91"], [vr(D+4), vr(D+5)])
        a(f"buffer_store_dwordx2 {vr(D,2)}, v88, {WS}, s50 offen sc1")
        self.ts(12)
        a.label(sk2)
        a(f"s_cmp_lt_u32 {sA}, 12\ns_cbranch_scc0 L_ga_po")
        self.ff()
        a.label("L_ga_po")
        self.po()
        a.vm = pre_vm
        a.ds = []

    def ff(self):
        a = self.a
        c = self.cfg
        a.c("----- FF: gate/up partials (144 rows x 192 columns), activation, down projection (144 rows x 192 columns) -----")
        sCT, sKQ = "s13", sJ
        VO, VD = 150, 153
        a(f"""s_lshr_b32 {sCT}, {sA}, 2
              s_mul_i32 s48, {sKQ}, {144*9216}
              s_mul_i32 s3, {sX}, 1152
              s_add_u32 s48, s48, s3
              s_mul_i32 s14, {sCT}, 384
              s_add_u32 s48, s48, s14
              s_and_b32 s15, {sW}, 1
              s_mul_i32 s3, s15, {8*9216}
              s_add_u32 s50, s48, s3
              s_add_u32 s50, s50, {128*9216}
              s_mul_i32 s3, {sW}, {8*9216}
              s_add_u32 s48, s48, s3
              s_mul_i32 s49, {sW}, 3072
              s_add_u32 s49, s49, {FBASE}""")
        self.rows384_voffs(VO, 9216)
        D0 = 4*24576 + 12288
        ops = [("g", s, m, i) for s in range(4) for m in range(2) for i in range(3)] + [("h", 4, 0, i) for i in range(3)]
        ops += [("d", s, 0, i) for s in range(5) for i in range(3)]
        def issue(k):
            kind, s, m, i = ops[k]
            if c["nof"]:
                a(f"buffer_load_dword v9, {vOOB}, {R2}, 0 offen", ("st", k))
                return
            if kind == "g":
                if i == 0:
                    a(f"s_add_u32 m0, s49, {s*24576 + m*12288}")
                    if m == 0 and s > 0:
                        a(f"s_add_u32 s48, s48, {32*9216}")
                a(f"buffer_load_dwordx4 {vr(VO+i)}, {R1 if m==0 else R3}, s48 offen offset:{1024*i}{self.nt('nt_w')} lds", ("st", k))
            elif kind == "h":
                if i == 0:
                    a(f"s_add_u32 m0, s49, {4*24576}")
                a(f"buffer_load_dwordx4 {vr(VO+i)}, {R4}, s50 offen offset:{1024*i}{self.nt('nt_w')} lds", ("st", k))
            else:
                if i == 0:
                    if s < 4:
                        a(f"s_add_u32 m0, s49, {D0 + s*12288 if s < 3 else 0}")
                        if s:
                            a(f"s_add_u32 s51, s51, {32*1152}")
                    else:
                        a(f"s_add_u32 m0, s57, 12288")
                a(f"buffer_load_dwordx4 {vr(VD+i)}, {R2}, {'s51' if s < 4 else 's21'} offen offset:{1024*i}{self.nt('nt_w')} lds", ("st", k))
        XB = 160
        VT, vPS, vPA, vHW, vHR, vYS, VT2 = "v156", "v157", "v158", "v159", "v178", "v179", "v111"
        ACC = 180
        FR = 204
        PR = 24
        HB = 56
        mk = lambda v: [f"buffer_load_dwordx4 {vr(PR+4*k,4)}, {v}, {WS}, s{68+k if not c['ts'] else (44, 45, 46, 47, 4, 5, 10, 101)[k]} offen sc1".replace("s(", "s") for k in range(8)]
        SO = [f"s{68+k}" if not c["ts"] else f"s{(44, 45, 46, 47, 4, 5, 10, 101)[k]}" for k in range(8)]
        def setup():
            a(f"s_mul_i32 s3, {sKQ}, 288\nv_add_u32 v7, s3, v81")
            for s in range(4):
                a(f"ds_read2_b64 {vr(XB+4*s,4)}, v7 offset0:{8*s} offset1:{8*s+4}")
            a(f"ds_read_b64 {vr(XB+16,2)}, v7 offset:256")
            self.tile384_addr(VT, FBASE)
            self.rows384_voffs(VD, 1152)
            self.out3_addr(vPS, 128)
            self.out3_addr(vYS, 4096)
            a(f"""v_mov_b32 {VT2}, {VT}
                  s_cmp_lt_u32 {sW}, 2
                  s_cselect_b64 s[40:41], s[28:29], s[36:37]
                  s_mov_b32 s42, {576*9216}
                  s_lshl_b32 s56, {sX}, 2
                  s_add_u32 s56, s56, {sKQ}
                  s_mul_i32 s51, s56, {144*1152}
                  s_add_u32 s51, s51, s14
                  s_mul_i32 s3, s15, {8*1152}
                  s_add_u32 s21, s51, s3
                  s_add_u32 s21, s21, {128*1152}
                  s_mul_i32 s3, {sW}, {8*1152}
                  s_add_u32 s51, s51, s3
                  s_mul_i32 s57, s15, 3072
                  s_add_u32 s57, s57, {FBASE}
                  s_mul_i32 s52, s56, {2*4608}
                  s_mul_i32 s3, {sCT}, {12*128}
                  s_add_u32 s52, s52, s3
                  s_lshl_b32 s3, {sW}, 7
                  s_add_u32 s52, s52, s3
                  s_add_u32 s52, s52, {PF_OFF}
                  s_add_u32 s53, s52, 4608
                  s_add_u32 s54, s52, {SLOW}
                  s_add_u32 s55, s53, {SLOW}
                  s_lshl_b32 s56, s56, 7
                  s_mul_i32 s3, {sCT}, {12*4096}
                  s_add_u32 s56, s56, s3
                  s_lshl_b32 s3, {sW}, 12
                  s_add_u32 s56, s56, s3
                  s_add_u32 s56, s56, {YP_OFF}
                  v_lshrrev_b32 v7, 3, {vL}
                  v_lshl_add_u32 v7, v7, 2, {sW}
                  v_mov_b32 v8, {sW}
                  v_cmp_gt_u32 vcc, 9, v7
                  v_cndmask_b32 v7, v8, v7, vcc
                  v_and_b32 v8, 7, {vL}
                  v_lshlrev_b32 v8, 4, v8
                  v_lshl_add_u32 {vPA}, v7, 7, v8
                  v_bfe_u32 v8, {vL}, 2, 1
                  v_mul_u32_u24 v8, 320, v8
                  v_lshl_add_u32 v8, v7, 5, v8
                  v_add_u32 v8, v8, {vCC8}
                  v_add_u32 {vHW}, {QL}, v8
                  v_and_b32 v7, 1, {vN}
                  v_mul_u32_u24 v7, 320, v7
                  v_lshl_add_u32 v7, {vG}, 3, v7
                  v_add_u32 {vHR}, {QL}, v7
                  s_mul_i32 {SO[0]}, {sX}, {8*4608}
                  s_mul_i32 s3, {sKQ}, {9*128}
                  s_add_u32 {SO[0]}, {SO[0]}, s3
                  s_add_u32 {SO[0]}, {SO[0]}, {PF_OFF}
                  v_mov_b32 v232, 0xbdd2d3e8
                  v_mov_b32 v233, 0xbdd2d3e8
                  v_mov_b32 v234, 0xc0135761
                  v_mov_b32 v235, 0xc0135761""")
            for k in range(1, 8):
                a(f"s_add_u32 {SO[k]}, {SO[0]}, {4608*k}")
        def touch():
            if c["fast"]:
                for k in range(8):
                    a(f"buffer_load_dword v9, {vPA}, {WS}, {SO[k]} offen sc1", "touch")
        def compute(s):
            a.wait_vm(("st", 6*s+5 if s < 4 else 26))
            self.barrier()
            for m in range(2):
                for u in range(3):
                    if s < 4:
                        for hh in range(2):
                            a(f"ds_read_b64_tr_b16 {vr(FR+12*m+4*u+2*hh,2)}, {VT} offset:{(s&1)*24576+m*12288+hh*6144+u*128}", ("f", m, u))
                    else:
                        a(f"ds_read_b64_tr_b16 {vr(FR+12*m+4*u,2)}, {VT} offset:{m*6144+u*128}", ("f", m, u))
            if s in (1, 3):
                a(f"v_add_u32 {VT}, {2*24576}, {VT}")
            def mm(m, u):
                d = ACC + 12*m + 4*u
                a.wait_ds(("f", m, u))
                if s < 4:
                    a(f"{MM} {vr(d,4)}, {vr(FR+12*m+4*u,4)}, {vr(XB+4*s,4)}, {'0' if s == 0 else vr(d,4)}")
                else:
                    a(f"v_mfma_f32_16x16x16_bf16 {vr(d,4)}, {vr(FR+12*m+4*u,2)}, {vr(XB+16,2)}, {vr(d,4)}")
            for m in range(2):
                for u in range(3):
                    if s < 4:
                        self.q += ([lambda: None] * 3 if m + u == 0 else []) + [lambda m=m, u=u: mm(m, u)]
                    else:
                        mm(m, u)
            if s == 4:
                self.ts(7)
                for m in range(2):
                    d = ACC + 12*m
                    self.merge(d, 3)
                    self.tagf(d, 4)
                    if c["fast"]:
                        a(f"buffer_store_dwordx4 {vr(d,4)}, {vPS}, {WS}, s{52+m} offen")
                for m in range(2):
                    a(f"buffer_store_dwordx4 {vr(ACC+12*m,4)}, {vPS}, {WS}, s{(54 if c['fast'] else 52)+m} offen sc1")
                self.ts(8)
        d1, sw, d2 = c["f_d1"], c["f_sw"], c["f_d2"]
        hooks = {c["f_pre"]: [self.barrier]}
        hooks.setdefault(min(d1, 12), []).append(setup)
        hooks.setdefault(c["f_touch"], []).append(touch)
        for s in range(5):
            n = 6*(s+1) if s < 4 else 27
            k = min(n + min(c['f_lag'], d1 if n + d1 < sw else d2), 42)
            assert s > 1 or k <= 36
            hooks.setdefault(k, []).append(lambda s=s: compute(s))
        self.stream(42, d1, sw, d2, issue, hooks)
        for s in mk(vPA):
            a(s, "hp")
        a.wait_vm(("st", 41))
        self.ts(6)
        self.barrier()
        for s in (3, 4):
            for u in range(3):
                for hh in range(2 if s < 4 else 1):
                    a(f"ds_read_b64_tr_b16 {ar(12*s+4*u+2*hh,2)}, {VT2} offset:{(s-3)*12288+hh*6144+u*128}")
        for s in range(3):
            for u in range(3):
                for hh in range(2):
                    a(f"ds_read_b64_tr_b16 {ar(12*s+4*u+2*hh,2)}, {VT} offset:{12288+s*12288+hh*6144+u*128}")
        self.poll2(mk, vPA, F(PR, 32), "hp", every=8)
        self.ts(9)
        self.cnt(14)
        G, U, T = PR, PR+4, PR+8
        for k in range(4):
            a(f"v_pk_add_f32 {vr(PR+2*k,2)}, {vr(PR+2*k,2)}, {vr(PR+8+2*k,2)}\nv_pk_add_f32 {vr(PR+16+2*k,2)}, {vr(PR+16+2*k,2)}, {vr(PR+24+2*k,2)}")
        for k in range(4):
            a(f"v_pk_add_f32 {vr(PR+2*k,2)}, {vr(PR+2*k,2)}, {vr(PR+16+2*k,2)}")
        for k in range(4):
            a(f"v_cvt_pk_bf16_f32 {vr(T+k)}, {vr(PR+2*k)}, {vr(PR+2*k+1)}")
        for k in range(4):
            a(f"v_lshlrev_b32 {vr(PR+2*k)}, 16, {vr(T+k)}\nv_and_b32 {vr(PR+2*k+1)}, 0xffff0000, {vr(T+k)}")
        for k in range(2):
            a(f"v_pk_mul_f32 {vr(T+2*k,2)}, {vr(G+2*k,2)}, {vr(G+2*k,2)}")
        for k in range(2):
            a(f"v_pk_fma_f32 {vr(T+2*k,2)}, {vr(T+2*k,2)}, v[232:233], v[234:235]")
        for k in range(2):
            a(f"v_pk_mul_f32 {vr(T+2*k,2)}, {vr(T+2*k,2)}, {vr(G+2*k,2)}")
        for k in range(4):
            a(f"v_exp_f32 {vr(T+k)}, {vr(T+k)}")
        for k in range(4):
            a(f"v_add_f32 {vr(T+k)}, 1.0, {vr(T+k)}")
        for k in range(4):
            a(f"v_rcp_f32 {vr(T+k)}, {vr(T+k)}")
        for k in range(2):
            a(f"v_pk_mul_f32 {vr(T+2*k,2)}, {vr(T+2*k,2)}, {vr(G+2*k,2)}")
        for k in range(2):
            a(f"v_cvt_pk_bf16_f32 {vr(T+4+k)}, {vr(T+2*k)}, {vr(T+2*k+1)}")
        for k in range(2):
            a(f"v_lshlrev_b32 {vr(T+2*k)}, 16, {vr(T+4+k)}\nv_and_b32 {vr(T+2*k+1)}, 0xffff0000, {vr(T+4+k)}")
        for k in range(2):
            a(f"v_pk_mul_f32 {vr(T+2*k,2)}, {vr(T+2*k,2)}, {vr(U+2*k,2)}")
        for k in range(2):
            a(f"v_cvt_pk_bf16_f32 {vr(T+4+k)}, {vr(T+2*k)}, {vr(T+2*k+1)}")
        a(f"ds_write_b64 {vHW}, {vr(T+4,2)}\ns_waitcnt lgkmcnt(0)")
        self.barrier()
        for s in range(4):
            a(f"ds_read2_b64 {vr(HB+4*s,4)}, {vHR} offset0:{8*s} offset1:{8*s+4}", ("hb", s))
        a(f"ds_read_b64 {vr(HB+16,2)}, {vHR} offset:256", ("hb", 4))
        Y = 204
        for s in range(5):
            a.wait_ds(("hb", s))
            for u in range(3):
                if s < 4:
                    a(f"{MM} {vr(Y+4*u,4)}, {ar(12*s+4*u,4)}, {vr(HB+4*s,4)}, {'0' if s == 0 else vr(Y+4*u,4)}")
                else:
                    a(f"v_mfma_f32_16x16x16_bf16 {vr(Y+4*u,4)}, {ar(12*s+4*u,2)}, {vr(HB+16,2)}, {vr(Y+4*u,4)}")
        self.merge(Y, 3)
        self.tagf(Y, 4)
        a(f"buffer_store_dwordx4 {vr(Y,4)}, {vYS}, {WS}, s56 offen sc1")
        self.end()

    def po(self):
        a = self.a
        c = self.cfg
        a.c("----- PO: output projection of one head -----")
        VO = 150
        self.srd(R1, 5, 4096*1152)
        a(f"""s_lshl_b32 s13, {sX}, 2
              s_add_u32 s13, s13, {sJ}
              s_mul_i32 s48, s13, {128*1152}
              s_mul_i32 s49, {sW}, 9216
              s_add_u32 s48, s48, s49
              s_add_u32 s49, s49, {FBASE}""")
        self.rows1152_voffs(VO)
        a("s_waitcnt lgkmcnt(0)")
        self.barrier()
        def issue(k):
            s, i = divmod(k, 9)
            if i % 4 == 0:
                a(f"s_add_u32 m0, s49, {s*36864 + i*1024}")
            if i == 0 and s:
                a(f"s_add_u32 s48, s48, 36864")
            a(f"buffer_load_dwordx4 {vr(VO+i)}, {R1}, s48 offen offset:{1024*(i&3)}{self.nt('nt_w')} lds", ("st", k))
        VT, vSS, vCW, vCR = "v160", "v161", "v162", "v163"
        CR = 24
        mk = lambda v: [f"buffer_load_dwordx4 {vr(CR,4)}, {v}, {WS}, s50 offen sc1"]
        def setup():
            self.tile384_addr(VT, FBASE, 1152)
            self.out3_addr(vSS, 4096)
            self.xlds_addr(vCW, QL)
            a(f"""v_and_b32 v7, 1, {vN}
                  v_lshlrev_b32 v7, 8, v7
                  v_lshl_add_u32 v7, {vG}, 3, v7
                  v_add_u32 {vCR}, {QL}, v7
                  s_lshl_b32 s50, s13, 12
                  s_lshl_b32 s3, {sW}, 10
                  s_add_u32 s50, s50, s3
                  s_add_u32 s50, s50, {CF_OFF}
                  s_lshl_b32 s52, {sW}, 12
                  s_lshl_b32 s3, s13, 7
                  s_add_u32 s52, s52, s3
                  s_add_u32 s52, s52, {SP_OFF}
                  s_add_u32 s53, s52, {12*4096}
                  s_add_u32 s54, s52, {24*4096}""")
            if c["fast"]:
                a(f"buffer_load_dword v9, {vL16}, {WS}, s50 offen sc1", "touch")
        def pre(s):
            a.wait_vm(("st", 9*s+8))
            self.barrier()
            for u in range(9):
                for hh in range(2):
                    a(f"ds_read_b64_tr_b16 {ar(36*s+4*u+2*hh,2)}, {VT} offset:{hh*16*1152+u*128}")
            if s < 3:
                a(f"v_add_u32 {VT}, 36864, {VT}")
        d1, sw, d2 = c["o_d1"], c["o_sw"], c["o_d2"]
        hooks = {min(d1, 12): [setup]}
        for s in range(3):
            k = min(9*(s+1) + min(c["f_lag"], d1 if 9*(s+1) + d1 < sw else d2), 36)
            hooks.setdefault(k, []).append(lambda s=s: pre(s))
        self.stream(36, d1, sw, d2, issue, hooks)
        pre(3)
        self.ts(6)
        a(mk(vXI)[0], "cxp")
        self.poll2(mk, vXI, F(CR, 4), "cxp", every=16)
        self.ts(9)
        self.xsum(CR, vCW)
        self.barrier()
        for s in range(4):
            a(f"ds_read2_b64 {vr(CR+4*s,4)}, {vCR} offset0:{8*s} offset1:{8*s+4}", ("cb", s))
        D = 176
        fill = []
        for q in range(3):
            for s in range(4):
                if q == 0:
                    a.wait_ds(("cb", s))
                for u in range(3*q, 3*q+3):
                    a(f"{MM} {vr(D+4*u,4)}, {ar(36*s+4*u,4)}, {vr(CR+4*s,4)}, {'0' if s == 0 else vr(D+4*u,4)}")
                    if s >= 1:
                        for _ in range(2):
                            if fill:
                                a(fill.pop(0))
            d = D + 12*q
            fill = [f"v_cndmask_b32 {vr(d+k)}, {vr(d+k)}, {vr(d+4+k)}, {M2}" for k in range(4)]
            fill += [f"v_cndmask_b32 {vr(d+k)}, {vr(d+k)}, {vr(d+8+k)}, {M4}" for k in range(4)]
            fill += [f"v_and_or_b32 {vr(d+k)}, {vr(d+k)}, {vMF}, {sT}" for k in range(4)]
            fill += [f"buffer_store_dwordx4 {vr(d,4)}, {vSS}, {WS}, s{52+q} offen sc1"]
        for ins in fill:
            a(ins)
        self.end()

    def final(self):
        a = self.a
        a.c("----- final: one wave reduces the partials of one 16-column tile -----")
        S, Y, T = 128, 144, 160
        a(f"""s_lshl_b32 s44, s56, 12
              s_add_u32 s45, s44, {YP_OFF}
              s_add_u32 s44, s44, {SP_OFF}""")
        gs = [([f"buffer_load_dwordx4 {vr(S+4*i,4)}, {vL16}, {WS}, s44 offen offset:{1024*i} sc1"], F(S+4*i, 4)) for i in range(4)]
        gy = [([f"buffer_load_dwordx4 {vr(Y+4*i,4)}, {vL16}, {WS}, s45 offen offset:{1024*i} sc1"], F(Y+4*i, 4)) for i in range(4)]
        self.poll(gs + gy, "v7", "fs")
        self.ts(13)
        for b in (S, Y):
            for i in (0, 2):
                a(f"v_pk_add_f32 {vr(b+4*i,2)}, {vr(b+4*i,2)}, {vr(b+4*i+4,2)}\nv_pk_add_f32 {vr(b+4*i+2,2)}, {vr(b+4*i+2,2)}, {vr(b+4*i+6,2)}")
        for b in (S, Y):
            a(f"v_pk_add_f32 {vr(b,2)}, {vr(b,2)}, {vr(b+8,2)}\nv_pk_add_f32 {vr(b+2,2)}, {vr(b+2,2)}, {vr(b+10,2)}")
        for k in range(4):
            a(f"v_permlane32_swap_b32 {vr(S+k)}, {vr(Y+k)}")
        a(f"v_pk_add_f32 {vr(S,2)}, {vr(S,2)}, {vr(Y,2)}\nv_pk_add_f32 {vr(S+2,2)}, {vr(S+2,2)}, {vr(Y+2,2)}")
        for k in range(2):
            a(f"v_permlane16_swap_b32 {vr(S+k)}, {vr(S+2+k)}")
        a(f"v_pk_add_f32 {vr(S,2)}, {vr(S,2)}, {vr(S+2,2)}")
        for k in range(2):
            a(f"v_add_f32_dpp {vr(S+k)}, {vr(S+k)}, {vr(S+k)} row_ror:8 row_mask:0xf bank_mask:0xf")
        a(f"v_cvt_pk_bf16_f32 {vr(T)}, {vr(S)}, {vr(S+1)}\nv_mov_b32 {vr(T+1)}, {vr(T)}\nv_permlane32_swap_b32 {vr(T)}, {vr(T+1)}")
        a(f"""v_lshlrev_b32 {vr(Y)}, 16, {vr(T+1)}
              v_and_b32 {vr(Y+1)}, 0xffff0000, {vr(T+1)}
              v_mul_f32 {vr(S+2)}, 0xbfb8aa3b, {vr(Y)}
              v_mul_f32 {vr(S+3)}, 0xbfb8aa3b, {vr(Y+1)}
              v_exp_f32 {vr(S+2)}, {vr(S+2)}
              v_exp_f32 {vr(S+3)}, {vr(S+3)}
              v_lshlrev_b32 {vr(S)}, 16, {vr(T)}
              v_and_b32 {vr(S+1)}, 0xffff0000, {vr(T)}
              v_add_f32 {vr(S+2)}, 1.0, {vr(S+2)}
              v_add_f32 {vr(S+3)}, 1.0, {vr(S+3)}
              v_rcp_f32 {vr(S+2)}, {vr(S+2)}
              v_rcp_f32 {vr(S+3)}, {vr(S+3)}
              v_and_b32 v7, 1, {vG}
              v_cmp_ne_u32 vcc, 0, v7
              v_mul_f32 {vr(Y)}, {vr(Y)}, {vr(S+2)}
              v_mul_f32 {vr(Y+1)}, {vr(Y+1)}, {vr(S+3)}
              v_cndmask_b32 v242, v242, v243, vcc
              v_cvt_pk_bf16_f32 {vr(T)}, {vr(Y)}, {vr(Y+1)}
              v_lshl_add_u32 v240, v7, 2, v240
              v_lshlrev_b32 {vr(Y)}, 16, {vr(T)}
              v_and_b32 {vr(Y+1)}, 0xffff0000, {vr(T)}
              v_mul_f32 {vr(Y)}, {vr(Y)}, {vr(S)}
              v_mul_f32 {vr(Y+1)}, {vr(Y+1)}, {vr(S+1)}
              v_lshlrev_b32 {vr(S)}, 16, v242
              v_cvt_pk_bf16_f32 {vr(T)}, {vr(Y)}, {vr(Y+1)}
              v_and_b32 {vr(S+1)}, 0xffff0000, v242
              v_lshlrev_b32 {vr(Y)}, 16, {vr(T)}
              v_and_b32 {vr(Y+1)}, 0xffff0000, {vr(T)}
              v_add_f32 {vr(Y)}, {vr(Y)}, {vr(S)}
              v_add_f32 {vr(Y+1)}, {vr(Y+1)}, {vr(S+1)}
              v_cvt_pk_bf16_f32 {vr(T)}, {vr(Y)}, {vr(Y+1)}
              s_mov_b64 exec, 0x00ff00ff""")
        a(f"buffer_store_dword {vr(T)}, v240, {R1}, 0 offen")
        a("s_cmp_eq_u32 s56, 0\ns_cbranch_scc0 L_gb_exit")
        a(f"s_mov_b64 exec, 1\nv_mov_b32 v7, {EP_OFF}\nv_mov_b32 v8, {sT}")
        a(f"buffer_store_dword v8, v7, {WS}, 0 offen sc1")

    def gb(self):
        a = self.a
        c = self.cfg
        a.label("L_GB")
        if c["nob"]:
            a("s_waitcnt lgkmcnt(0)")
            self.end()
        a.c("===== group B: attention core, value/out projections =====")
        self.srd(R4, 4, 512*8192)
        sB, sKT, sHG = "s13", "s14", "s15"
        vA, vB = "v12", "v13"
        VK = 16
        a(f"""s_lshr_b32 s3, {sP}, 1
              s_lshl_b32 s46, s3, 17
              s_lshr_b32 {sB}, s3, 5
              s_and_b32 {sKT}, s3, 31
              s_and_b32 {sHG}, {sA}, 1
              s_lshl_b32 s45, {sW}, 15
              s_add_u32 s46, s46, s45
              s_lshl_b32 s3, {sHG}, 14
              s_and_b32 s3, s3, {0x4000 if c['rot'] else 0}
              s_add_u32 s52, s45, s3
              s_add_u32 s53, s46, s3
              s_xor_b32 s10, s3, 0x4000
              s_add_u32 s54, s45, s10
              s_add_u32 s55, s46, s10
              s_lshl_b32 s44, {sJ}, 20
              s_lshl_b32 s3, {sW}, 18
              s_add_u32 s44, s44, s3
              s_lshl_b32 s3, {sH}, 8
              s_add_u32 s44, s44, s3
              s_lshl_b32 s3, {sW}, 6
              v_lshlrev_b32 v8, 4, {vN}
              v_xor_b32 v7, s3, v8
              v_lshl_add_u32 {vA}, {vG}, 13, v7
              v_xor_b32 {vB}, 32, {vA}""")
        for k in range(8):
            a(f"v_xor_b32 {vr(VK+k)}, {32*k}, {vL16}")
        a("s_waitcnt lgkmcnt(0)")
        seq = [("k", i) for i in range(c["uv_at"])] + [("u", i) for i in range(8 if c["uv_early"] else 0)] + [("k", i) for i in range(c["uv_at"], 32)]
        def issue(n):
            kind, i = seq[n]
            if kind == "u":
                a(f"s_add_u32 m0, s54, {i*1024}")
                if i:
                    a(f"s_add_u32 s44, s44, {4*8192}")
                a(f"buffer_load_dwordx4 {vA if i<4 else vB}, {R4}, s44 offen{self.nt('nt_w')} lds", ("st", n))
                return
            if i % 4 == 0 or seq[n-1][0] == "u":
                a(f"s_add_u32 m0, {'s52' if i < 16 else 's54'}, {CKV + (i&12)*1024}\ns_add_u32 s47, {'s53' if i < 16 else 's55'}, {(i&12)*1024}")
            a(f"buffer_load_dwordx4 {vr(VK+(i&7))}, {R3}, s47 offen offset:{(i&3)*1024}{self.nt('nt_ckv')} lds", ("st", n))
        SA, QB, PV, VO = 80, 84, 88, 116
        def setup1():
            self.ts(1)
            self.epoch_load()
            self.srd(R1, 10, 2304)
            self.lane_late()
            self.common_setup()
            a(f"""v_lshrrev_b32 v7, 1, {vR7}
                  v_lshlrev_b32 v7, 15, v7
                  v_and_b32 v8, 1, {vRR}
                  v_lshl_add_u32 v7, v8, 12, v7
                  v_lshrrev_b32 v8, 1, {vG}
                  v_lshl_add_u32 v7, v8, 8, v7
                  s_lshl_b32 s3, {sW}, 6
                  v_xor_b32 v8, s3, {vX78}
                  v_add3_u32 v96, v7, v8, s10
                  v_xor_b32 v97, 32, v96
                  v_lshrrev_b32 v7, 1, {vG}
                  v_and_b32 v8, 7, {vN}
                  v_xor_b32 v7, v7, v8
                  v_lshlrev_b32 v7, 5, v7
                  v_and_b32 v8, 1, {vG}
                  v_lshl_add_u32 v7, v8, 4, v7
                  v_lshl_add_u32 v7, {vN}, 10, v7
                  v_add_u32 {vr(SA)}, s45, v7
                  v_add_u32 {vr(QB)}, {QAL}, v7""")
            for s in range(1, 4):
                a(f"v_xor_b32 {vr(SA+s)}, {64*s}, {vr(SA)}\nv_xor_b32 {vr(QB+s)}, {64*s}, {vr(QB)}")
            a(f"""v_lshl_add_u32 v8, {vG}, 2, {vRR}
                  v_lshl_add_u32 v7, v8, 10, {vX78}
                  s_lshl_b32 s3, {sW}, 8
                  v_add_u32 {vr(PV)}, s3, v7""")
            for t in range(1, 8):
                a(f"v_xor_b32 {vr(PV+t)}, {32*t}, {vr(PV)}")
            a(f"""s_and_b32 s3, {sW}, 1
                  s_lshl_b32 s3, s3, 7
                  v_xor_b32 v7, s3, {vL16}
                  s_lshl_b32 s3, {sW}, 12
                  s_add_u32 s3, s3, {QAL}
                  v_add_u32 v100, s3, v7""")
            for i in range(1, 4):
                a(f"v_xor_b32 {vr(100+i)}, {32*i}, v100")
            a(f"""s_lshl_b32 s3, {sW}, 2
                  s_add_u32 s3, s3, {MX}
                  v_lshl_add_u32 v104, {vN}, 4, s3
                  v_lshlrev_b32 v105, 4, {vN}
                  v_lshrrev_b32 v8, 4, v0
                  v_cmp_eq_u32 vcc, v8, {vRR}
                  v_cndmask_b32 v109, {vOOB}, v105, vcc
                  v_add_u32 v105, {MX}, v105
                  s_lshl_b32 s3, {sW}, 10
                  s_add_u32 s3, s3, {PB}
                  v_add_u32 v106, s3, {vL16}
                  v_add_u32 v107, {PB}, {vL16}
                  v_lshlrev_b32 v7, 18, {vG}
                  v_lshl_add_u32 v108, {vN}, 4, v7
                  s_lshl_b32 s56, {sP}, 8
                  s_add_u32 s56, s56, {ML_OFF}
                  s_lshl_b32 s48, {sB}, 15
                  s_lshl_b32 s3, {sHG}, 14
                  s_add_u32 s48, s48, s3
                  s_lshl_b32 s3, {sW}, 12
                  s_add_u32 s48, s48, s3
                  s_add_u32 s48, s48, {QA_OFF}
                  v_mov_b32 v112, 0x3f803f80
                  v_mov_b32 v113, 0x3f803f80
                  v_mov_b32 v114, 0x3f803f80
                  v_mov_b32 v115, 0x3f803f80""")
            a(f"""s_lshl_b32 s51, {sW}, 13
                  s_add_u32 s51, s51, {WUVL}
                  s_lshl_b32 s49, {sH}, 12
                  s_lshl_b32 s3, {sW}, 10
                  s_add_u32 s49, s49, s3
                  s_add_u32 s49, s49, {CF_OFF}
                  s_lshl_b32 s3, {sJ}, 8
                  s_add_u32 s50, s49, s3
                  s_waitcnt lgkmcnt(0)""")
            self.tags_setup()
        UVV = 40
        def uvpre():
            a.wait_vm(("st", c["uv_at"] + 7))
            self.barrier()
            for t in range(2):
                for kk in range(4):
                    for tt in range(2):
                        a(f"ds_read_b64_tr_b16 {vr(UVV+16*t+4*kk+2*tt,2)}, {vr(96+t)} offset:{(4*kk+2*tt)*256}")
            a("s_waitcnt lgkmcnt(0)")
            self.barrier()
        self.stream(len(seq), c["gb_d1"], c["gb_sw"], c["gb_d2"], issue, {min(12, c["gb_d1"]): [setup1], 24: [uvpre] if c["uv_early"] else []})
        self.ts(3)
        a(f"""s_lshr_b32 s52, {sP}, 1
                  s_lshl_b32 s52, s52, 8
                  s_lshl_b32 s3, {sHG}, 20
                  s_add_u32 s52, s52, s3
                  s_lshl_b32 s3, {sW}, 14
                  s_add_u32 s52, s52, s3
                  s_add_u32 s52, s52, {OP_OFF}
                  s_add_u32 s53, s52, 0x10000
                  s_add_u32 s54, s52, 0x20000
                  s_add_u32 s55, s52, 0x30000""")
        if not c["rot"]:
            a.wait_vm(("st", len(seq)-17))
            for s in range(16):
                a(f"ds_read_b128 {ar(4*s,4)}, {vr(SA+(s&3))} offset:{(s>>2)*256}")
        a.wait_vm(("st", len(seq)-1))
        self.ts(6)
        QA = 24
        agroups = [([f"buffer_load_dwordx4 {vr(QA+4*i,4)}, {vL16}, {WS}, s48 offen offset:{1024*i} sc1"], B(QA+4*i, 4)) for i in range(4)]
        for loads, _ in agroups:
            a(loads[0], "qap")
        self.barrier()
        for s in range(0 if c['rot'] else 16, 32):
            a(f"ds_read_b128 {ar(4*s,4)}, {vr(SA+(s&3))} offset:{16384*(s>>4)+((s&15)>>2)*256}")
        for ks in range(4):
            if ks == 2:
                for t in range(8):
                    a(f"v_add_u32 {vr(PV+t)}, 0x10000, {vr(PV+t)}")
            for t in range(8):
                for hh in range(2):
                    a(f"ds_read_b64_tr_b16 {ar(128+32*ks+4*t+2*hh,2)}, {vr(PV+t)} offset:{(32*(ks&1)+16*hh)*1024}")
        def uv(i):
            a(f"s_add_u32 m0, s51, {i*1024}")
            if i:
                a(f"s_add_u32 s44, s44, {4*8192}")
            a(f"buffer_load_dwordx4 {vA if i<4 else vB}, {R4}, s44 offen{self.nt('nt_w')} lds", ("uv", i))
        if c["uv_pos"] == 1:
            a("s_waitcnt lgkmcnt(0)")
            self.barrier()
            for i in range(8):
                uv(i)
        self.poll(agroups, "v7", "qap", issued=True)
        self.ts(7)
        self.cnt(2)
        for i in range(4):
            a(f"ds_write_b128 {vr(100+i)}, {vr(QA+4*i,4)} offset:{1024*i}")
        a("s_waitcnt lgkmcnt(0)")
        self.barrier()
        BQ = 128
        SD = 160
        for s in range(8):
            a(f"ds_read_b128 {vr(BQ+4*s,4)}, {vr(QB+(s&3))} offset:{(s>>2)*256}", ("bq", s))
        nxt = 0
        for s in range(16):
            a.wait_ds(("bq", s))
            for tt in range(2):
                a(f"{MM} {vr(SD+4*tt,4)}, {ar(64*tt+4*s,4)}, {vr(BQ+4*(s&7),4)}, {'0' if s == 0 else vr(SD+4*tt,4)}")
            if s + 8 < 16:
                s2 = s + 8
                a(f"ds_read_b128 {vr(BQ+4*(s2&7),4)}, {vr(QB+(s2&3))} offset:{(s2>>2)*256}", ("bq", s2))
            if not c["uv_early"] and c["uv_pos"] == 0 and s % 2 == 0:
                uv(s // 2)
        self.ts(8)
        a(f"""v_max3_f32 v7, {vr(SD)}, {vr(SD+1)}, {vr(SD+2)}
              v_max3_f32 v8, {vr(SD+4)}, {vr(SD+5)}, {vr(SD+6)}
              v_max3_f32 v7, v7, {vr(SD+3)}, {vr(SD+7)}
              v_max_f32 v7, v7, v8""")
        self.xrow("v_max_f32", "v7", "v8")
        a("ds_write_b32 v104, v7")
        a("s_waitcnt lgkmcnt(0)")
        self.barrier()
        a(f"""ds_read_b128 v[168:171], v105
              s_waitcnt lgkmcnt(0)
              v_max3_f32 v144, v168, v169, v170
              v_max_f32 v144, v144, v171""")
        for k in range(8):
            a(f"v_sub_f32 {vr(SD+k)}, {vr(SD+k)}, v144")
        for k in range(8):
            a(f"v_exp_f32 {vr(SD+k)}, {vr(SD+k)}")
            if k % 2 == 1 and k > 1:
                a(f"v_cvt_pk_bf16_f32 {vr(168+k//2-1)}, {vr(SD+k-3)}, {vr(SD+k-2)}")
        a(f"v_cvt_pk_bf16_f32 v171, {vr(SD+6)}, {vr(SD+7)}")
        a("ds_write_b128 v106, v[168:171]")
        a("s_waitcnt lgkmcnt(0)")
        self.barrier()
        PF = 128
        for ks in range(4):
            a(f"ds_read_b128 {vr(PF+4*ks,4)}, v107 offset:{1024*ks}", ("pf", ks))
        LD = 172
        OD = 176
        SR = 208
        mf = []
        for t in range(8):
            for ks in range(4):
                mf.append((f"{MM} {vr(OD+4*t,4)}, {vr(PF+4*ks,4)}, {ar(128+32*ks+4*t,4)}, {'0' if ks == 0 else vr(OD+4*t,4)}", ("pf", ks) if t == 0 else None))
        ml = [(f"{MM} {vr(LD,4)}, {vr(PF+4*ks,4)}, v[112:115], {'0' if ks == 0 else vr(LD,4)}", None) for ks in range(4)]
        mf = mf[:28] + ml + mf[28:] if c["ml_pos"] < 4 else mf + ml
        fill = [(0, f"v_mov_b32 v146, {sT4}"), (0, f"v_mov_b32 v147, {sT4}")]
        for u in range(4):
            b = OD + 8*u
            e = 8*(u+1) + 3
            for r in range(4):
                fill.append((e, f"v_perm_b32 {vr(SR+4*r+u)}, {vr(b+4+r)}, {vr(b+r)}, {vSEL}"))
            for r in range(4):
                fill.append((e, f"v_bitop3_b32 {vr(b+r)}, {vr(SR+4*r+u)}, {sTK[u]}, {vMB} bitop3:0x28"))
            for r in range(4):
                fill.append((e, f"v_add_u32 {vr(SR+4*r+u)}, {vr(SR+4*r+u)}, {vr(b+r)}"))
        npv = 0
        for i, (ins, w) in enumerate(mf):
            if w:
                a.wait_ds(w)
            a(ins)
            k = 0
            while fill and fill[0][0] <= i and k < c["pv_fill"] and not (c["ml_pos"] < 4 and fill[0][0] == 35):
                a(fill.pop(0)[1]); k += 1
        def mlst():
            a(f"""v_cndmask_b32 v145, {vr(LD)}, {vr(LD+1)}, {M1}
                  v_cndmask_b32 v148, {vr(LD+2)}, {vr(LD+3)}, {M1}
                  v_cndmask_b32 v145, v145, v148, {M2}""")
            a(f"buffer_store_dwordx4 v[144:147], v109, {WS}, s56 offen sc1", "opst")
        if c["ml_pos"] < 0:
            mlst()
        for _, ins in fill:
            a(ins)
        for r in range(5):
            if r == c["ml_pos"]:
                mlst()
            if r < 4:
                a(f"buffer_store_dwordx4 {vr(SR+4*r,4)}, v108, {WS}, s{52+r} offen sc1", "opst")
        self.ts(9)
        OPR, MLW = 24, 40
        WL = MX
        a(f"""s_lshl_b32 s48, {sP}, 14
              s_lshl_b32 s3, {sW}, 12
              s_add_u32 s48, s48, s3
              s_add_u32 s48, s48, {OP_OFF}
              s_add_u32 s52, s3, {OPL}
              v_lshlrev_b32 v100, 9, {vL}
              s_lshl_b32 s53, {sH}, 4
              s_add_u32 s53, s53, {ML_OFF}
              s_lshl_b32 s3, {sW}, 7
              s_add_u32 s3, s3, {WL}
              v_lshl_add_u32 v98, {vL}, 1, s3
              v_and_b32 v7, 1, {vN}
              v_lshlrev_b32 v8, 6, v7
              v_lshl_add_u32 v8, {vG}, 3, v8
              v_add_u32 v99, s3, v8
              v_lshlrev_b32 v8, 5, {vG}
              v_xor_b32 v101, v8, {vL16}
              v_add_u32 v101, s52, v101
              v_xor_b32 v102, 0x80, v101
              v_lshl_add_u32 v10, {vG}, 2, {vRR}
              v_lshl_add_u32 v8, v10, 8, {vX78}
              v_add_u32 {vr(PV)}, {OPL}, v8""")
        for t in range(1, 8):
            a(f"v_xor_b32 {vr(PV+t)}, {32*t}, {vr(PV)}")
        a(f"""s_lshr_b32 s56, {sP}, 1
              s_lshl_b32 s3, s56, 5
              v_bfe_u32 v7, {vL}, 2, 1
              v_mul_u32_u24 v7, 1152, v7
              v_add3_u32 v240, v7, {vCC8}, s3""")
        a(f"buffer_load_dwordx2 v[242:243], v240, {R0}, 0 offen", "xres")
        ogroups = [([f"buffer_load_dwordx4 {vr(OPR+4*i,4)}, {vL16}, {WS}, s48 offen offset:{1024*i} sc1"], B(OPR+4*i, 4)) for i in range(4)]
        mgroup = [([f"buffer_load_dwordx3 {vr(MLW,3)}, v100, {WS}, s53 offen sc1"], [(vr(MLW+2), "w")])]
        UV, WO = 0, 32
        if c["uv_early"]:
            for k in range(32):
                a(f"v_accvgpr_write_b32 {ar(UV+k)}, {vr(UVV+k)}")
        else:
            a(f"""v_and_b32 v7, 1, {vG}
                  v_lshlrev_b32 v7, 6, v7
                  v_lshl_add_u32 v7, {vRR}, 4, v7
                  v_lshrrev_b32 v8, 1, {vG}
                  v_add_u32 v7, v7, v8
                  s_lshl_b32 s3, {sW}, 6
                  v_xor_b32 v8, s3, {vX78}
                  v_lshl_add_u32 v96, v7, 8, v8
                  v_xor_b32 v97, 32, v96""")
            a.wait_vm(("uv", 7))
            self.barrier()
            for t in range(2):
                for kk in range(4):
                    for tt in range(2):
                        a(f"ds_read_b64_tr_b16 {ar(UV+16*t+4*kk+2*tt,2)}, {vr(96+t)} offset:{WUVL+(4*kk+2*tt)*256}")
        if c["op_sync"]:
            a("s_waitcnt vmcnt(0)")
        self.ts(10)
        self.poll(mgroup, "v7", "mlp")
        self.ts(14)
        for loads, _ in ogroups:
            a(loads[0], "opp")
        a(f"v_mov_b32 v7, {vr(MLW)}")
        self.red32("v_max_f32", "v7", "v8")
        a(f"""v_sub_f32 v7, {vr(MLW)}, v7
              v_exp_f32 v10, v7
              s_nop 0
              v_mul_f32 v7, v10, {vr(MLW+1)}""")
        self.red32("v_add_f32", "v7", "v8")
        a(f"""v_rcp_f32 v7, v7
              v_mul_f32 v7, v7, v10
              v_cvt_pk_bf16_f32 v7, v7, v7
              ds_write_b16 v98, v7
              s_waitcnt lgkmcnt(0)
              ds_read2_b64 v[44:47], v99 offset0:0 offset1:4
              s_waitcnt lgkmcnt(0)""")
        for k in range(4):
            a(f"v_cndmask_b32 {vr(68+k)}, {vr(44+k)}, 0, {M1}")
            a(f"v_cndmask_b32 {vr(72+k)}, 0, {vr(44+k)}, {M1}")
        self.poll(ogroups, "v7", "opp", issued=True)
        self.ts(11)
        self.cnt(4)
        for i in range(4):
            a(f"ds_write_b128 {vr(101+(i&1))}, {vr(OPR+4*i,4)} offset:{1024*i}")
        a("s_waitcnt lgkmcnt(0)")
        self.barrier()
        RF = 128
        def rd(t):
            for bs in range(2):
                for hh in range(2):
                    a(f"ds_read_b64_tr_b16 {vr(RF+8*t+4*bs+2*hh,2)}, {vr(PV+t)} offset:{(32*bs+16*hh)*256}", ("rf", t))
        for t in range(3):
            rd(t)
        CD = 192
        CB = 48
        XD = 224
        def cvt(u):
            a(f"v_cvt_pk_bf16_f32 {vr(CB+2*u)}, {vr(CD+4*u)}, {vr(CD+4*u+1)}\nv_cvt_pk_bf16_f32 {vr(CB+2*u+1)}, {vr(CD+4*u+2)}, {vr(CD+4*u+3)}")
        def mm(kk):
            for t in range(2):
                a(f"{MM} {vr(XD+4*t,4)}, {ar(UV+16*t+4*kk,4)}, {vr(CB+4*kk,4)}, {'0' if kk == 0 else vr(XD+4*t,4)}")
        for t in range(8):
            a.wait_ds(("rf", t))
            for bs in range(2):
                a(f"{MM} {vr(CD+4*t,4)}, {vr(RF+8*t+4*bs,4)}, {vr(68+4*bs,4)}, {'0' if bs == 0 else vr(CD+4*t,4)}")
            if t + 3 < 8:
                rd(t + 3)
            if t >= 2:
                cvt(t - 2)
        mm(0); mm(1); mm(2); cvt(6); cvt(7); mm(3)
        self.merge(XD, 2)
        slow = self.xpub(XD, "s50", "cxst")
        if slow:
            a(slow)
        self.ts(12)
        a(f"""s_and_b32 s3, {sP}, 1
              s_or_b32 s3, s3, {sW}
              s_cbranch_scc1 L_gb_exit
              s_cmp_ge_u32 {sP}, 72
              s_cbranch_scc1 L_gb_exit""")
        self.final()
        a.label("L_gb_exit")
        if c["ts"]:
            self.end()
        a.label("L_end")
        a("s_endpgm")

    def build(self):
        hdr = open("cdna_kernels/" + NAME + ".s.ref").read().split("\n")
        top = [l for l in hdr if l.startswith(";") and "@launch" not in l and "Override launch" not in l and "grid=ceil" not in l]
        a = self.a
        self.prologue()
        self.ga()
        self.gb()
        s = "\n".join(top) + "\n"
        s += f"; @launch grid=(256,1,1) block=(256,1,1) lds={LDS_SIZE}\n"
        s += f""".amdgcn_target "amdgcn-amd-amdhsa--gfx950"
.text
.globl {NAME}_kernel
.p2align 8
.type {NAME}_kernel,@function
{NAME}_kernel:
"""
        s += a.text()
        s += f""".section .rodata,"a"
.p2align 6
.amdhsa_kernel {NAME}_kernel
  .amdhsa_next_free_vgpr 512
  .amdhsa_next_free_sgpr 102
  .amdhsa_accum_offset 256
  .amdhsa_group_segment_fixed_size 0
  .amdhsa_kernarg_size 104
  .amdhsa_user_sgpr_count 2
  .amdhsa_user_sgpr_kernarg_segment_ptr 1
  .amdhsa_system_sgpr_workgroup_id_x 1
  .amdhsa_float_denorm_mode_32 3
.end_amdhsa_kernel
"""
        return s

if __name__ == "__main__":
    out = sys.argv[1]
    cfg = {}
    for kv in sys.argv[2:]:
        k, v = kv.split("=")
        cfg[k] = int(v)
    g = Gen(cfg)
    open(out, "w").write(g.build())
    print("wrote", out, "nops inserted:", g.a.nops)
```

```python
import sys
from asmlib import Asm

NAME = "recurrent_scan__compressed_kv_cla__geglu_ffn__decode"

DEF = dict(
    ts=0,
    nt_w=1,
    nt_ckv=1,
    pf=1,
    uk_ln=3,
    q_at=2,
    f_d1=12, f_sw=18, f_d2=12,
    o_d1=8, o_sw=18, o_d2=12,
    f_touch=20, f_lag=12,
    f_pre=0,
    gb_d1=12, gb_sw=12, gb_d2=32,
    uv_pos=0,
    rot=0,
    uv_at=16,
    uv_early=0,
    ml_pos=4,
    op_sync=1, pv_fill=2,
    kslow=24,
    fast=1,
    spin=60000,
    dbgts=0,
    nob=0,
    nof=0,
)

QF_OFF = 0x000000
CF_OFF = 0x020000
PF_OFF = 0x040000
SLOW   = 0x500000
QA_OFF = 0x100000
ML_OFF = 0x110000
SP_OFF = 0x120000
YP_OFF = 0x148000
OP_OFF = 0x200000
EP_OFF = 0x400000
TS_OFF = 0x800000
WS_SIZE = 0x1000000
OOB = 0x7f000000

XN = 0
QL = 0xA00
FBASE = 0x2000
WUKL = 0x15000
WQL = 0x1D000
LDS_SIZE = 0x26000
CKV = 0
QAL = 0x20000
MX = 0x24000
PB = 0x24400
CXL = 0x25400
WUVL = 0
WOL = 0x8000
OPL = 0x14000

sW, sH, sJ, sX, sA, sP = "s6", "s7", "s8", "s9", "s11", "s12"
WS = "s[16:19]"
R0, R1, R2, R3, R4 = "s[24:27]", "s[28:31]", "s[32:35]", "s[36:39]", "s[40:43]"
sCNT, sMASK = "s60", "s20"
sT = "s61"
sTK = ["s96", "s97", "s98", "s99"]
sT4 = "s100"
M1, M2, M4 = "s[62:63]", "s[22:23]", "s[58:59]"
vMF, vMB, vSEL, vOOB = "v254", "v255", "v252", "v251"
vL, vN, vG, vRR, vCC8, vL16 = "v1", "v2", "v3", "v4", "v5", "v6"
vR7, vX78, vXI, vXO = "v250", "v249", "v248", "v247"

def vr(b, n=1):
    return f"v{b}" if n == 1 else f"v[{b}:{b+n-1}]"
def ar(b, n=1):
    return f"a{b}" if n == 1 else f"a[{b}:{b+n-1}]"
def F(b, n):
    return [(vr(b+k), "f") for k in range(n)]
def B(b, n):
    return [(vr(b+k), ("b", k & 3)) for k in range(n)]
MM = "v_mfma_f32_16x16x32_bf16"

class Gen:
    def __init__(self, cfg):
        self.cfg = dict(DEF)
        for k in cfg:
            assert k in DEF, k
        self.cfg.update(cfg)
        self.a = Asm()

    def ts(self, k):
        if self.cfg["ts"] == 1 or (self.cfg["ts"] == 2 and k in (0, 15)):
            self.a(f"s_memrealtime s[{64+2*k}:{65+2*k}]\ns_waitcnt lgkmcnt(0)")

    def cnt(self, k):
        if self.cfg["ts"] == 1:
            self.a(f"s_sub_u32 s{64+2*k}, {self.cfg['spin']+1}, {sCNT}\ns_mov_b32 s{65+2*k}, 0")

    def end(self):
        a = self.a
        self.ts(15)
        if self.cfg["ts"]:
            a.c("diagnostic: store stamps")
            a(f"""s_mov_b64 exec, -1
                  s_lshl_b32 s3, s2, 2
                  s_add_u32 s3, s3, {sW}
                  s_lshl_b32 s3, s3, 7
                  s_add_u32 s3, s3, {TS_OFF}
                  v_mov_b32 v8, 0""")
            for k in range(16):
                a(f"v_mov_b32 v10, s{64+2*k}\nv_mov_b32 v11, s{65+2*k}")
                a(f"buffer_store_dwordx2 v[10:11], v8, {WS}, s3 offen offset:{8*k}")
                a("s_nop 1")
        a("s_endpgm")

    def srd(self, reg, slot, size):
        base = int(reg[2:].split(":")[0])
        self.a(f"s_load_dwordx2 s[{base}:{base+1}], s[0:1], {slot*8}\ns_mov_b32 s{base+2}, {size}\ns_mov_b32 s{base+3}, 0x20000")

    def nt(self, k):
        return " nt" if self.cfg[k] else ""

    def check_regs(self, regs, tmp):
        a = self.a
        kind = regs[0][1]
        kind = "b" if isinstance(kind, tuple) else kind
        for i, (r, k) in enumerate(regs):
            t = sT if kind == "f" else (sT4 if kind == "w" else sTK[k[1]])
            if i == 0:
                a(f"v_xor_b32 {tmp}, {t}, {r}")
            else:
                a(f"v_bitop3_b32 {tmp}, {tmp}, {r}, {t} bitop3:0xf6")
        if kind == "f":
            a(f"v_and_b32 {tmp}, 0xff, {tmp}")
        elif kind == "b":
            a(f"v_and_b32 {tmp}, 0x10001, {tmp}")
        a(f"v_cmp_ne_u32 vcc, 0, {tmp}")

    def tagf(self, base, n):
        for k in range(n):
            self.a(f"v_and_or_b32 {vr(base+k)}, {vr(base+k)}, {vMF}, {sT}")

    def packb(self, dsts, srcs, ks, tmps):
        a = self.a
        for d, (lo, hi) in zip(dsts, srcs):
            a(f"v_perm_b32 {d}, {hi}, {lo}, {vSEL}")
        for d, k, t in zip(dsts, ks, tmps):
            a(f"v_bitop3_b32 {t}, {d}, {k}, {vMB} bitop3:0x28")
        for d, t in zip(dsts, tmps):
            a(f"v_add_u32 {d}, {d}, {t}")

    def merge(self, d, n):
        a = self.a
        for k in range(4):
            a(f"v_cndmask_b32 {vr(d+k)}, {vr(d+k)}, {vr(d+4+k)}, {M2}")
        if n == 4:
            for k in range(4):
                a(f"v_cndmask_b32 {vr(d+8+k)}, {vr(d+8+k)}, {vr(d+12+k)}, {M2}")
        if n >= 3:
            for k in range(4):
                a(f"v_cndmask_b32 {vr(d+k)}, {vr(d+k)}, {vr(d+8+k)}, {M4}")

    def epoch_load(self):
        self.a(f"s_add_u32 s4, s16, {EP_OFF}\ns_addc_u32 s5, s17, 0\ns_load_dword {sT}, s[4:5], 0")

    def tags_setup(self):
        a = self.a
        a(f"""s_add_u32 {sT}, {sT}, 1
              s_and_b32 {sT}, {sT}, 0xff
              s_cmp_eq_u32 {sT}, 0xff
              s_cselect_b32 {sT}, 0, {sT}
              s_cmp_eq_u32 {sT}, 0x55
              s_addc_u32 {sT}, {sT}, 0
              s_cmp_eq_u32 {sT}, 0xaa
              s_addc_u32 {sT}, {sT}, 0
              s_cmp_eq_u32 {sT}, 0
              s_addc_u32 {sT}, {sT}, 0
              s_mul_i32 {sT4}, {sT}, 0x01010101""")
        for k in range(4):
            a(f"""s_bfe_u32 s3, {sT}, {(1 << 16) | (2*k+1)}
                  s_lshl_b32 s3, s3, 16
                  s_bfe_u32 {sTK[k]}, {sT}, {(1 << 16) | (2*k)}
                  s_or_b32 {sTK[k]}, {sTK[k]}, s3""")

    def common_setup(self):
        self.a(f"""v_mov_b32 {vMF}, 0xffffff00
              v_mov_b32 {vMB}, 0x00010001
              v_mov_b32 {vSEL}, 0x07060302
              v_mov_b32 {vOOB}, {OOB}
              v_and_b32 v7, 1, {vN}
              v_cmp_ne_u32 {M1}, 0, v7
              v_and_b32 v8, 2, {vN}
              v_cmp_ne_u32 {M2}, 0, v8
              v_and_b32 v10, 4, {vN}
              v_cmp_ne_u32 {M4}, 0, v10
              v_lshlrev_b32 v7, 7, v7
              v_lshl_add_u32 v7, v8, 5, v7
              v_lshl_add_u32 v7, {vG}, 4, v7
              v_cmp_gt_u32 vcc, 4, {vN}
              v_cndmask_b32 {vXO}, {vOOB}, v7, vcc
              v_lshlrev_b32 v7, 5, {vCC8}
              v_lshl_add_u32 v7, v10, 5, v7
              v_lshrrev_b32 v8, 3, {vN}
              v_lshl_add_u32 v7, v8, 6, v7
              v_lshl_add_u32 {vXI}, {vG}, 4, v7
              v_and_b32 v7, 1, {vG}
              v_lshl_add_u32 {vR7}, v7, 2, {vRR}
              v_lshl_add_u32 {vX78}, {vR7}, 5, {vCC8}""")

    def poll(self, groups, tmp, tag, issued=False):
        a = self.a
        if not issued:
            for loads, _ in groups:
                for s in loads:
                    a(s, tag)
        a(f"s_mov_b32 {sCNT}, {self.cfg['spin']}")
        a.wait_vm(tag)
        top, ok = a.newlab("Lp"), a.newlab("Lok")
        keep = list(a.vm)
        if len(groups) == 1:
            a.label(top)
            self.check_regs(groups[0][1], tmp)
            a(f"s_cbranch_vccz {ok}")
            a(f"s_sub_u32 {sCNT}, {sCNT}, 1\ns_cbranch_scc1 {ok}")
            for s in groups[0][0]:
                a(s)
            a(f"s_waitcnt vmcnt(0)\ns_branch {top}")
        else:
            self.check_regs([r for _, regs in groups for r in regs], tmp)
            a(f"s_mov_b32 {sMASK}, {(1 << len(groups)) - 1}")
            a(f"s_cbranch_vccz {ok}")
            a.label(top)
            for i, (loads, regs) in enumerate(groups):
                nx, cl = a.newlab("Ln"), a.newlab("Lc")
                a(f"s_bitcmp0_b32 {sMASK}, {i}\ns_cbranch_scc1 {nx}")
                self.check_regs(regs, tmp)
                a(f"s_cbranch_vccz {cl}")
                for s in loads:
                    a(s)
                a(f"s_branch {nx}")
                a.label(cl)
                a(f"s_bitset0_b32 {sMASK}, {i}")
                a.label(nx)
            a(f"s_cmp_eq_u32 {sMASK}, 0\ns_cbranch_scc1 {ok}")
            a(f"s_waitcnt vmcnt(0)\ns_sub_u32 {sCNT}, {sCNT}, 1\ns_cbranch_scc0 {top}")
        a.vm = keep
        a.label(ok)

    def poll2(self, mk, vaddr, regs, tag, slow_store=None, every=2):
        a = self.a
        K = self.cfg["spin"] - self.cfg["kslow"]
        a(f"s_mov_b32 {sCNT}, {self.cfg['spin']}")
        a.wait_vm(tag)
        top, ok, ns = a.newlab("Lp"), a.newlab("Lok"), a.newlab("Lns")
        keep = list(a.vm)
        a.label(top)
        self.check_regs(regs, "v7")
        a(f"s_cbranch_vccz {ok}")
        a(f"s_sub_u32 {sCNT}, {sCNT}, 1\ns_cbranch_scc1 {ok}")
        if self.cfg["fast"]:
            if slow_store:
                a(f"s_cmp_eq_u32 {sCNT}, {K}\ns_cbranch_scc0 {ns}")
                a(slow_store)
                a.label(ns)
            a(f"""s_cmp_le_u32 {sCNT}, {K}
                  s_cselect_b32 s3, {sCNT}, 1
                  s_and_b32 s3, s3, {every-1}
                  s_cselect_b32 s3, 0, {SLOW}
                  v_add_u32 v8, s3, {vaddr}""")
            for s in mk("v8"):
                a(s)
        else:
            for s in mk(vaddr):
                a(s)
        a(f"s_waitcnt vmcnt(0)\ns_branch {top}")
        a.vm = keep
        a.label(ok)

    def xpub(self, d, soff, tag):
        self.tagf(d, 4)
        if self.cfg["fast"]:
            self.a(f"buffer_store_dwordx4 {vr(d,4)}, {vXO}, {WS}, {soff} offen", tag)
            return f"s_add_u32 s3, {soff}, {SLOW}\nbuffer_store_dwordx4 {vr(d,4)}, {vXO}, {WS}, s3 offen sc1"
        self.a(f"buffer_store_dwordx4 {vr(d,4)}, {vXO}, {WS}, {soff} offen sc1", tag)
        return None

    def xsum(self, r, vlds):
        a = self.a
        for q in ("[1,0,3,2]", "[2,3,0,1]"):
            for k in range(4):
                a(f"v_add_f32_dpp {vr(r+k)}, {vr(r+k)}, {vr(r+k)} quad_perm:{q} row_mask:0xf bank_mask:0xf")
        a(f"v_cvt_pk_bf16_f32 {vr(r)}, {vr(r)}, {vr(r+1)}\nv_cvt_pk_bf16_f32 {vr(r+1)}, {vr(r+2)}, {vr(r+3)}")
        a(f"ds_write_b64 {vlds}, {vr(r,2)}\ns_waitcnt lgkmcnt(0)")

    def xlds_addr(self, dst, base):
        self.a(f"""s_lshl_b32 s3, {sW}, 6
                   s_add_u32 s3, s3, {base}
                   v_bfe_u32 v7, {vN}, 2, 1
                   v_lshlrev_b32 v7, 8, v7
                   v_lshrrev_b32 v8, 3, {vN}
                   v_lshl_add_u32 v7, v8, 5, v7
                   v_lshl_add_u32 v7, {vG}, 3, v7
                   v_add_u32 {dst}, s3, v7""")

    def barrier(self):
        self.a("s_barrier")

    def rows384_voffs(self, base, stride):
        a = self.a
        a(f"s_movk_i32 s3, 2731\ns_movk_i32 s4, {stride - 384}")
        for i in range(3):
            a(f"""v_add_u32 v7, {64*i}, {vL}
                  v_mul_u32_u24 v8, s3, v7
                  v_lshrrev_b32 v8, 16, v8
                  v_lshrrev_b32 v10, 1, v8
                  v_lshlrev_b32 v10, 5, v10
                  v_xor_b32 v10, v10, {vL16}
                  v_mad_u32_u24 {vr(base+i)}, v8, s4, v10""")

    def rows1152_voffs(self, base):
        a = self.a
        a("s_movk_i32 s3, 1821")
        for i in range(9):
            a(f"""v_add_u32 v7, {64*i}, {vL}
                  v_mul_u32_u24 v8, s3, v7
                  v_lshrrev_b32 v8, 18, v8
                  v_lshlrev_b32 v8, 5, v8
                  v_xor_b32 v8, v8, {vL16}
                  v_add_u32 {vr(base+i)}, {(i & 12) * 1024}, v8""")

    def tile384_addr(self, dst, base, row=384):
        self.a(f"""v_lshrrev_b32 v7, 1, {vR7}
                   v_xor_b32 v7, {sW}, v7
                   v_lshl_add_u32 v7, v7, 5, {vCC8}
                   v_lshl_add_u32 v8, {vG}, 2, {vRR}
                   v_mul_u32_u24 v8, {row}, v8
                   v_add_u32 v7, v7, v8
                   v_add_u32 {dst}, {base}, v7""")

    def out3_addr(self, dst, shift):
        self.a(f"""v_lshrrev_b32 v7, 1, {vN}
                   v_mul_u32_u24 v7, {4*shift}, v7
                   v_and_b32 v8, 1, {vN}
                   v_lshl_add_u32 v7, v8, 6, v7
                   v_lshl_add_u32 v7, {vG}, 4, v7
                   v_cmp_gt_u32 vcc, 6, {vN}
                   v_cndmask_b32 {dst}, {vOOB}, v7, vcc""")

    def red32(self, op, x, t):
        a = self.a
        for r in (8, 4, 2, 1):
            a(f"{op}_dpp {x}, {x}, {x} row_ror:{r} row_mask:0xf bank_mask:0xf")
        a(f"v_mov_b32 {t}, {x}\nv_permlane16_swap_b32 {x}, {t}\n{op} {x}, {x}, {t}")

    def xrow(self, op, x, t):
        self.a(f"""v_mov_b32 {t}, {x}
                   v_permlane16_swap_b32 {x}, {t}
                   {op} {x}, {x}, {t}
                   v_mov_b32 {t}, {x}
                   v_permlane32_swap_b32 {x}, {t}
                   {op} {x}, {x}, {t}""")

    def stream(self, n, d1, sw, d2, issue, hooks, per=3):
        a = self.a
        self.q = []
        for i in range(n + 1):
            for f in hooks.get(i, []):
                while self.q:
                    self.q.pop(0)()
                f()
            if i == n:
                break
            d = d1 if i < sw else d2
            if i - d >= 0:
                a.wait_vm(("st", i - d))
            issue(i)
            for _ in range(per):
                if self.q:
                    self.q.pop(0)()
        while self.q:
            self.q.pop(0)()

    def prologue(self):
        a = self.a
        c = self.cfg
        a("s_cmp_ge_u32 s2, 256\ns_cbranch_scc1 L_end")
        self.srd(R1, 2, 576*8192)
        self.srd(R3, 1, 2*4096*1024)
        self.srd(R0, 0, 2304)
        self.srd(R2, 3, 512*8192)
        self.srd(WS, 12, WS_SIZE)
        if c["dbgts"]:
            a("s_memrealtime s[64:65]\ns_load_dwordx2 s[92:93], s[0:1], 88\ns_mov_b32 s94, 256\ns_mov_b32 s95, 0x20000")
        if c["ts"]:
            for k in range(1, 16):
                a(f"s_mov_b64 s[{64+2*k}:{65+2*k}], 0")
            a("s_memrealtime s[64:65]")
        a(f"""s_lshr_b32 s10, s2, 3
              s_and_b32 {sX}, s2, 7
              v_lshrrev_b32 v7, 6, v0
              v_and_b32 {vL}, 63, v0
              v_readfirstlane_b32 {sW}, v7
              s_and_b32 {sA}, s10, 15
              s_lshl_b32 {sP}, {sX}, 4
              s_add_u32 {sP}, {sP}, {sA}
              s_lshr_b32 {sH}, {sP}, 2
              s_and_b32 {sJ}, {sA}, 3""")
        if c["pf"]:
            a.c("pull the kernel's own code into L2")
            a("s_getpc_b64 s[4:5]")
            a.label("L_pc")
            a(f"""s_and_b32 s3, s10, 3
                  s_lshl_b32 s3, s3, 2
                  s_add_u32 s3, s3, {sW}
                  s_mul_i32 s3, s3, 1152
                  v_lshl_add_u32 v7, {vL}, 6, s3
                  v_min_u32 v7, L_end-L_pc, v7
                  s_mov_b64 exec, 0x3ffff""")
            a("global_load_dword v9, v7, s[4:5]", "pf")
            a("s_mov_b64 exec, -1")
        a(f"""v_and_b32 {vN}, 15, {vL}
              v_lshrrev_b32 {vG}, 4, {vL}
              v_lshlrev_b32 {vL16}, 4, {vL}""")
        a("s_cmp_ge_u32 s10, 16\ns_cbranch_scc1 L_GB")

    def lane_late(self):
        self.a(f"""v_lshrrev_b32 {vRR}, 2, {vN}
                   v_and_b32 {vCC8}, 3, {vL}
                   v_lshlrev_b32 {vCC8}, 3, {vCC8}""")

    def wuk(self, i):
        a = self.a
        a(f"s_add_u32 m0, s21, {i*1024}")
        if i:
            a(f"s_add_u32 s47, s47, {4*8192}")
        a(f"buffer_load_dwordx4 {'v17' if i%2==0 else 'v18'}, {R2}, s47 offen{self.nt('nt_w')} lds", ("wuk", i))

    def ln(self):
        a = self.a
        X, vXA = 24, "v12"
        U = 34
        for k in range(9):
            a(f"v_lshlrev_b32 {vr(U+2*k)}, 16, {vr(X+k)}\nv_and_b32 {vr(U+2*k+1)}, 0xffff0000, {vr(X+k)}")
        a(f"v_pk_add_f32 v[52:53], {vr(U,2)}, {vr(U+2,2)}\nv_pk_add_f32 v[54:55], {vr(U+4,2)}, {vr(U+6,2)}")
        for k in range(4, 8, 2):
            a(f"v_pk_add_f32 v[52:53], v[52:53], {vr(U+2*k,2)}\nv_pk_add_f32 v[54:55], v[54:55], {vr(U+2*k+2,2)}")
        a(f"v_pk_add_f32 v[52:53], v[52:53], {vr(U+16,2)}\nv_pk_add_f32 v[52:53], v[52:53], v[54:55]\nv_add_f32 v52, v52, v53")
        self.red32("v_add_f32", "v52", "v53")
        a("v_mul_f32 v52, 0x3ae38e39, v52")
        a("v_cvt_pk_bf16_f32 v54, v52, v52\nv_mov_b32 v53, v52\nv_and_b32 v54, 0xffff0000, v54\nv_mov_b32 v55, v54")
        D = 56
        for k in range(9):
            a(f"v_pk_add_f32 {vr(D+2*k,2)}, {vr(U+2*k,2)}, v[52:53] neg_lo:[0,1] neg_hi:[0,1]")
        a(f"v_pk_mul_f32 v[74:75], {vr(D,2)}, {vr(D,2)}\nv_pk_mul_f32 v[76:77], {vr(D+2,2)}, {vr(D+2,2)}")
        for k in range(2, 9):
            t = "v[74:75]" if k % 2 == 0 else "v[76:77]"
            a(f"v_pk_fma_f32 {t}, {vr(D+2*k,2)}, {vr(D+2*k,2)}, {t}")
        a("v_pk_add_f32 v[74:75], v[74:75], v[76:77]\nv_add_f32 v74, v74, v75")
        fill = [f"v_pk_add_f32 {vr(D+2*k,2)}, {vr(U+2*k,2)}, v[54:55] neg_lo:[0,1] neg_hi:[0,1]" for k in range(9)]
        fill += [f"v_cvt_pk_bf16_f32 {vr(X+k)}, {vr(D+2*k)}, {vr(D+2*k+1)}" for k in range(9)]
        for k in range(9):
            fill += [f"v_lshlrev_b32 {vr(U+2*k)}, 16, {vr(X+k)}", f"v_and_b32 {vr(U+2*k+1)}, 0xffff0000, {vr(X+k)}"]
        chain = [f"v_add_f32_dpp v74, v74, v74 row_ror:{r} row_mask:0xf bank_mask:0xf" for r in (8, 4, 2, 1)]
        chain += ["v_mov_b32 v75, v74", "v_permlane16_swap_b32 v74, v75", "v_add_f32 v74, v74, v75",
                  "v_mul_f32 v74, 0x3ae38e39, v74", "v_cvt_pk_bf16_f32 v74, v74, v74", "v_and_b32 v74, 0xffff0000, v74",
                  "v_add_f32 v74, 0x3727c5ac, v74", "v_cvt_pk_bf16_f32 v74, v74, v74", "v_and_b32 v74, 0xffff0000, v74",
                  "v_sqrt_f32 v74, v74", "v_cvt_pk_bf16_f32 v74, v74, v74", "v_and_b32 v74, 0xffff0000, v74",
                  "v_rcp_f32 v74, v74", "v_mov_b32 v75, v74"]
        for ins in chain:
            for _ in range(2):
                if fill:
                    a(fill.pop(0))
            a(ins)
        for ins in fill:
            a(ins)
        for k in range(9):
            a(f"v_pk_mul_f32 {vr(U+2*k,2)}, {vr(U+2*k,2)}, v[74:75]")
        for k in range(9):
            a(f"v_cvt_pk_bf16_f32 {vr(X+k)}, {vr(U+2*k)}, {vr(U+2*k+1)}")
            if k % 2 == 1:
                a(f"ds_write_b64 {vXA}, {vr(X+k-1,2)} offset:{XN+128*(k-1)}")
        a(f"ds_write_b32 v16, {vr(X+8)} offset:{XN+1024}")

    def ga(self):
        a = self.a
        c = self.cfg
        pre_vm = list(a.vm)
        a.c("===== group A: q, absorbed query, then FFN roles =====")
        vXA, vA, vB = "v12", "v13", "v14"
        a(f"""v_lshrrev_b32 v7, 5, {vL}
              v_mul_u32_u24 v7, 1152, v7
              v_and_b32 v8, 31, {vL}
              v_lshl_add_u32 {vXA}, v8, 3, v7
              v_lshl_add_u32 v16, v8, 2, v7
              s_and_b32 s3, {sW}, 1
              s_lshl_b32 s3, s3, 7
              v_lshlrev_b32 v7, 5, {vG}
              v_lshlrev_b32 v8, 4, {vN}
              v_xor_b32 v7, v7, v8
              v_lshl_add_u32 v17, {vG}, 13, v7
              v_xor_b32 v18, 0x80, v17
              v_xor_b32 {vA}, s3, v17
              v_xor_b32 {vB}, 0x80, {vA}
              s_mul_i32 s44, {sJ}, {144*8192}
              s_mul_i32 s3, {sW}, {36*8192}
              s_add_u32 s44, s44, s3
              s_lshl_b32 s46, {sH}, 8
              s_add_u32 s44, s44, s46
              s_mul_i32 s45, {sW}, {36*256}
              s_add_u32 s45, s45, {WQL}
              s_lshl_b32 s47, {sJ}, 20
              s_lshl_b32 s3, {sW}, 18
              s_add_u32 s47, s47, s3
              s_add_u32 s47, s47, s46
              s_lshl_b32 s21, {sW}, 13
              s_add_u32 s21, s21, {WUKL}
              s_waitcnt lgkmcnt(0)""")
        X = 24
        for k in range(4):
            a(f"buffer_load_dwordx2 {vr(X+2*k,2)}, {vXA}, {R0}, 0 offen offset:{256*k}", "x")
        a(f"buffer_load_dword {vr(X+8)}, v16, {R0}, 0 offen offset:1024", "x")
        self.epoch_load()
        for i in range(9):
            a(f"s_add_u32 m0, s45, {i*1024}")
            if i:
                a(f"s_add_u32 s44, s44, {4*8192}")
            a(f"buffer_load_dwordx4 {vA if i%2==0 else vB}, {R1}, s44 offen{self.nt('nt_w')} lds", "wq")
        a(f"""s_lshl_b32 s48, {sH}, 12
              s_lshl_b32 s3, {sW}, 10
              s_add_u32 s48, s48, s3
              s_lshl_b32 s3, {sJ}, 8
              s_add_u32 s49, s48, s3""")
        self.ts(1)
        self.lane_late()
        self.common_setup()
        vT0, vT1, vXB = "v78", "v79", "v80"
        XS = 82
        a(f"""s_lshl_b32 s3, {sW}, 6
              v_xor_b32 v7, s3, {vX78}
              v_lshl_add_u32 v8, {vG}, 2, {vRR}
              v_lshl_add_u32 v7, v8, 8, v7
              v_add_u32 {vT0}, {WQL}, v7
              v_xor_b32 {vT1}, 32, {vT0}
              v_and_b32 v7, 1, {vN}
              v_mul_u32_u24 v8, 1152, v7
              v_lshl_add_u32 v81, {vG}, 3, v8
              s_mul_i32 s3, {sJ}, 288
              v_add_u32 {vXB}, s3, v81
              v_lshlrev_b32 v8, 8, v7
              v_lshl_add_u32 v8, {vG}, 4, v8
              v_add_u32 v87, {QL}, v8
              v_lshlrev_b32 v7, 15, v7
              v_lshrrev_b32 v8, 1, {vN}
              v_lshl_add_u32 v7, v8, 5, v7
              v_lshl_add_u32 v7, {vG}, 3, v7
              v_cmp_gt_u32 vcc, 8, {vN}
              v_cndmask_b32 v88, {vOOB}, v7, vcc
              v_lshrrev_b32 v7, 1, {vG}
              v_and_b32 v8, 7, {vN}
              v_xor_b32 v7, v7, v8
              v_lshlrev_b32 v7, 5, v7
              v_and_b32 v8, 1, {vG}
              v_lshl_add_u32 v7, v8, 4, v7
              v_lshl_add_u32 v7, {vN}, 8, v7
              s_lshl_b32 s3, {sW}, 14
              s_add_u32 s3, s3, {WUKL}
              v_add_u32 {vr(XS)}, s3, v7
              s_lshl_b32 s50, {sP}, 8
              s_lshl_b32 s3, {sW}, 7
              s_add_u32 s50, s50, s3
              s_add_u32 s50, s50, {QA_OFF}
              s_mov_b32 s51, 0x3e0293ee""")
        for s in range(1, 4):
            a(f"v_xor_b32 {vr(XS+s)}, {64*s}, {vr(XS)}")
        self.xlds_addr("v86", QL)
        a("s_waitcnt lgkmcnt(0)")
        self.tags_setup()
        a(f"""v_and_b32 v7, 1, {vG}
              v_cmp_eq_u32 vcc, 0, v7
              v_mov_b32 v7, {sTK[0]}
              v_mov_b32 v8, {sTK[2]}
              v_cndmask_b32 v90, v8, v7, vcc
              v_mov_b32 v7, {sTK[1]}
              v_mov_b32 v8, {sTK[3]}
              v_cndmask_b32 v91, v8, v7, vcc""")
        for i in range(c["uk_ln"]):
            self.wuk(i)
        a.wait_vm("x")
        self.ts(2)
        self.ln()
        if c["fast"]:
            a(f"buffer_load_dword v9, {vL16}, {WS}, s48 offen sc1", "touch")
        for i in range(c["uk_ln"], 8):
            self.wuk(i)
        self.srd(R1, 7, 576*9216)
        self.srd(R3, 8, 576*9216)
        self.srd(R2, 9, 4608*1152)
        a("s_mov_b32 s43, 0x20000")
        a("s_waitcnt lgkmcnt(0)")
        self.ts(3)
        XB = 92
        for s in range(4):
            a(f"ds_read2_b64 {vr(XB+4*s,4)}, {vXB} offset0:{8*s} offset1:{8*s+4}")
        a(f"ds_read_b64 {vr(XB+16,2)}, {vXB} offset:256")
        a.wait_vm("wq")
        self.ts(4)
        self.barrier()
        W = 112
        def rdq(s):
            for t, vt in enumerate((vT0, vT1)):
                b = W + 18*t + 4*s
                a(f"ds_read_b64_tr_b16 {vr(b,2)}, {vt} offset:{32*s*256}", f"wq{s}")
                if s < 4:
                    a(f"ds_read_b64_tr_b16 {vr(b+2,2)}, {vt} offset:{(32*s+16)*256}", f"wq{s}")
        for s in range(3):
            rdq(s)
        Dq = 148
        for s in range(5):
            a.wait_ds(f"wq{s}")
            for t in range(2):
                b = W + 18*t + 4*s
                cin = "0" if s == 0 else vr(Dq+4*t, 4)
                if s < 4:
                    a(f"{MM} {vr(Dq+4*t,4)}, {vr(b,4)}, {vr(XB+4*s,4)}, {cin}")
                else:
                    a(f"v_mfma_f32_16x16x16_bf16 {vr(Dq+4*t,4)}, {vr(b,2)}, {vr(XB+16,2)}, {cin}")
            if s + 3 < 5:
                rdq(s + 3)
        self.merge(Dq, 2)
        slow = self.xpub(Dq, "s49", "qst")
        self.ts(5)
        QR, UK = 24, 0
        mk = lambda v: [f"buffer_load_dwordx4 {vr(QR,4)}, {v}, {WS}, s48 offen sc1"]
        a.wait_vm(("wuk", 7 - c["q_at"]) if c["fast"] else "qst")
        a(mk(vXI)[0], "qp")
        a.wait_vm(("wuk", 7))
        self.ts(10)
        self.barrier()
        sk1 = a.newlab("Lsk")
        a(f"s_cmp_ge_u32 {sW}, 2\ns_cbranch_scc1 {sk1}")
        for tt in range(4):
            for s in range(4):
                a(f"ds_read_b128 {ar(UK+16*tt+4*s,4)}, {vr(XS+s)} offset:{4096*tt}")
        a.label(sk1)
        self.poll2(mk, vXI, F(QR, 4), "qp", slow)
        self.ts(11)
        self.cnt(13)
        self.xsum(QR, "v86")
        self.barrier()
        sk2 = a.newlab("Lsk")
        a(f"s_cmp_ge_u32 {sW}, 2\ns_cbranch_scc1 {sk2}")
        for s in range(4):
            a(f"ds_read_b128 {vr(QR+4*s,4)}, v87 offset:{64*s}", ("q", s))
        D = 112
        for s in range(4):
            a.wait_ds(("q", s))
            for tt in range(4):
                cin = "0" if s == 0 else vr(D+4*tt, 4)
                a(f"{MM} {vr(D+4*tt,4)}, {ar(UK+16*tt+4*s,4)}, {vr(QR+4*s,4)}, {cin}")
        self.merge(D, 4)
        for k in range(4):
            a(f"v_mul_f32 {vr(D+k)}, s51, {vr(D+k)}")
        self.packb([vr(D), vr(D+1)], [(vr(D), vr(D+1)), (vr(D+2), vr(D+3))], ["v90", "v91"], [vr(D+4), vr(D+5)])
        a(f"buffer_store_dwordx2 {vr(D,2)}, v88, {WS}, s50 offen sc1")
        self.ts(12)
        a.label(sk2)
        a(f"s_cmp_lt_u32 {sA}, 12\ns_cbranch_scc0 L_ga_po")
        self.ff()
        a.label("L_ga_po")
        self.po()
        a.vm = pre_vm
        a.ds = []

    def ff(self):
        a = self.a
        c = self.cfg
        a.c("----- FF: gate/up partials (144 rows x 192 columns), activation, down projection (144 rows x 192 columns) -----")
        sCT, sKQ = "s13", sJ
        VO, VD = 150, 153
        a(f"""s_lshr_b32 {sCT}, {sA}, 2
              s_mul_i32 s48, {sKQ}, {144*9216}
              s_mul_i32 s3, {sX}, 1152
              s_add_u32 s48, s48, s3
              s_mul_i32 s14, {sCT}, 384
              s_add_u32 s48, s48, s14
              s_and_b32 s15, {sW}, 1
              s_mul_i32 s3, s15, {8*9216}
              s_add_u32 s50, s48, s3
              s_add_u32 s50, s50, {128*9216}
              s_mul_i32 s3, {sW}, {8*9216}
              s_add_u32 s48, s48, s3
              s_mul_i32 s49, {sW}, 3072
              s_add_u32 s49, s49, {FBASE}""")
        self.rows384_voffs(VO, 9216)
        D0 = 4*24576 + 12288
        ops = [("g", s, m, i) for s in range(4) for m in range(2) for i in range(3)] + [("h", 4, 0, i) for i in range(3)]
        ops += [("d", s, 0, i) for s in range(5) for i in range(3)]
        def issue(k):
            kind, s, m, i = ops[k]
            if c["nof"]:
                a(f"buffer_load_dword v9, {vOOB}, {R2}, 0 offen", ("st", k))
                return
            if kind == "g":
                if i == 0:
                    a(f"s_add_u32 m0, s49, {s*24576 + m*12288}")
                    if m == 0 and s > 0:
                        a(f"s_add_u32 s48, s48, {32*9216}")
                a(f"buffer_load_dwordx4 {vr(VO+i)}, {R1 if m==0 else R3}, s48 offen offset:{1024*i}{self.nt('nt_w')} lds", ("st", k))
            elif kind == "h":
                if i == 0:
                    a(f"s_add_u32 m0, s49, {4*24576}")
                a(f"buffer_load_dwordx4 {vr(VO+i)}, {R4}, s50 offen offset:{1024*i}{self.nt('nt_w')} lds", ("st", k))
            else:
                if i == 0:
                    if s < 4:
                        a(f"s_add_u32 m0, s49, {D0 + s*12288 if s < 3 else 0}")
                        if s:
                            a(f"s_add_u32 s51, s51, {32*1152}")
                    else:
                        a(f"s_add_u32 m0, s57, 12288")
                a(f"buffer_load_dwordx4 {vr(VD+i)}, {R2}, {'s51' if s < 4 else 's21'} offen offset:{1024*i}{self.nt('nt_w')} lds", ("st", k))
        XB = 160
        VT, vPS, vPA, vHW, vHR, vYS, VT2 = "v156", "v157", "v158", "v159", "v178", "v179", "v111"
        ACC = 180
        FR = 204
        PR = 24
        HB = 56
        mk = lambda v: [f"buffer_load_dwordx4 {vr(PR+4*k,4)}, {v}, {WS}, s{68+k if not c['ts'] else (44, 45, 46, 47, 4, 5, 10, 101)[k]} offen sc1".replace("s(", "s") for k in range(8)]
        SO = [f"s{68+k}" if not c["ts"] else f"s{(44, 45, 46, 47, 4, 5, 10, 101)[k]}" for k in range(8)]
        def setup():
            a(f"s_mul_i32 s3, {sKQ}, 288\nv_add_u32 v7, s3, v81")
            for s in range(4):
                a(f"ds_read2_b64 {vr(XB+4*s,4)}, v7 offset0:{8*s} offset1:{8*s+4}")
            a(f"ds_read_b64 {vr(XB+16,2)}, v7 offset:256")
            self.tile384_addr(VT, FBASE)
            self.rows384_voffs(VD, 1152)
            self.out3_addr(vPS, 128)
            self.out3_addr(vYS, 4096)
            a(f"""v_mov_b32 {VT2}, {VT}
                  s_cmp_lt_u32 {sW}, 2
                  s_cselect_b64 s[40:41], s[28:29], s[36:37]
                  s_mov_b32 s42, {576*9216}
                  s_lshl_b32 s56, {sX}, 2
                  s_add_u32 s56, s56, {sKQ}
                  s_mul_i32 s51, s56, {144*1152}
                  s_add_u32 s51, s51, s14
                  s_mul_i32 s3, s15, {8*1152}
                  s_add_u32 s21, s51, s3
                  s_add_u32 s21, s21, {128*1152}
                  s_mul_i32 s3, {sW}, {8*1152}
                  s_add_u32 s51, s51, s3
                  s_mul_i32 s57, s15, 3072
                  s_add_u32 s57, s57, {FBASE}
                  s_mul_i32 s52, s56, {2*4608}
                  s_mul_i32 s3, {sCT}, {12*128}
                  s_add_u32 s52, s52, s3
                  s_lshl_b32 s3, {sW}, 7
                  s_add_u32 s52, s52, s3
                  s_add_u32 s52, s52, {PF_OFF}
                  s_add_u32 s53, s52, 4608
                  s_add_u32 s54, s52, {SLOW}
                  s_add_u32 s55, s53, {SLOW}
                  s_lshl_b32 s56, s56, 7
                  s_mul_i32 s3, {sCT}, {12*4096}
                  s_add_u32 s56, s56, s3
                  s_lshl_b32 s3, {sW}, 12
                  s_add_u32 s56, s56, s3
                  s_add_u32 s56, s56, {YP_OFF}
                  v_lshrrev_b32 v7, 3, {vL}
                  v_lshl_add_u32 v7, v7, 2, {sW}
                  v_mov_b32 v8, {sW}
                  v_cmp_gt_u32 vcc, 9, v7
                  v_cndmask_b32 v7, v8, v7, vcc
                  v_and_b32 v8, 7, {vL}
                  v_lshlrev_b32 v8, 4, v8
                  v_lshl_add_u32 {vPA}, v7, 7, v8
                  v_bfe_u32 v8, {vL}, 2, 1
                  v_mul_u32_u24 v8, 320, v8
                  v_lshl_add_u32 v8, v7, 5, v8
                  v_add_u32 v8, v8, {vCC8}
                  v_add_u32 {vHW}, {QL}, v8
                  v_and_b32 v7, 1, {vN}
                  v_mul_u32_u24 v7, 320, v7
                  v_lshl_add_u32 v7, {vG}, 3, v7
                  v_add_u32 {vHR}, {QL}, v7
                  s_mul_i32 {SO[0]}, {sX}, {8*4608}
                  s_mul_i32 s3, {sKQ}, {9*128}
                  s_add_u32 {SO[0]}, {SO[0]}, s3
                  s_add_u32 {SO[0]}, {SO[0]}, {PF_OFF}
                  v_mov_b32 v232, 0xbdd2d3e8
                  v_mov_b32 v233, 0xbdd2d3e8
                  v_mov_b32 v234, 0xc0135761
                  v_mov_b32 v235, 0xc0135761""")
            for k in range(1, 8):
                a(f"s_add_u32 {SO[k]}, {SO[0]}, {4608*k}")
        def touch():
            if c["fast"]:
                for k in range(8):
                    a(f"buffer_load_dword v9, {vPA}, {WS}, {SO[k]} offen sc1", "touch")
        def compute(s):
            a.wait_vm(("st", 6*s+5 if s < 4 else 26))
            self.barrier()
            for m in range(2):
                for u in range(3):
                    if s < 4:
                        for hh in range(2):
                            a(f"ds_read_b64_tr_b16 {vr(FR+12*m+4*u+2*hh,2)}, {VT} offset:{(s&1)*24576+m*12288+hh*6144+u*128}", ("f", m, u))
                    else:
                        a(f"ds_read_b64_tr_b16 {vr(FR+12*m+4*u,2)}, {VT} offset:{m*6144+u*128}", ("f", m, u))
            if s in (1, 3):
                a(f"v_add_u32 {VT}, {2*24576}, {VT}")
            def mm(m, u):
                d = ACC + 12*m + 4*u
                a.wait_ds(("f", m, u))
                if s < 4:
                    a(f"{MM} {vr(d,4)}, {vr(FR+12*m+4*u,4)}, {vr(XB+4*s,4)}, {'0' if s == 0 else vr(d,4)}")
                else:
                    a(f"v_mfma_f32_16x16x16_bf16 {vr(d,4)}, {vr(FR+12*m+4*u,2)}, {vr(XB+16,2)}, {vr(d,4)}")
            for m in range(2):
                for u in range(3):
                    if s < 4:
                        self.q += ([lambda: None] * 3 if m + u == 0 else []) + [lambda m=m, u=u: mm(m, u)]
                    else:
                        mm(m, u)
            if s == 4:
                self.ts(7)
                for m in range(2):
                    d = ACC + 12*m
                    self.merge(d, 3)
                    self.tagf(d, 4)
                    if c["fast"]:
                        a(f"buffer_store_dwordx4 {vr(d,4)}, {vPS}, {WS}, s{52+m} offen")
                for m in range(2):
                    a(f"buffer_store_dwordx4 {vr(ACC+12*m,4)}, {vPS}, {WS}, s{(54 if c['fast'] else 52)+m} offen sc1")
                self.ts(8)
        d1, sw, d2 = c["f_d1"], c["f_sw"], c["f_d2"]
        hooks = {c["f_pre"]: [self.barrier]}
        hooks.setdefault(min(d1, 12), []).append(setup)
        hooks.setdefault(c["f_touch"], []).append(touch)
        for s in range(5):
            n = 6*(s+1) if s < 4 else 27
            k = min(n + min(c['f_lag'], d1 if n + d1 < sw else d2), 42)
            assert s > 1 or k <= 36
            hooks.setdefault(k, []).append(lambda s=s: compute(s))
        self.stream(42, d1, sw, d2, issue, hooks)
        for s in mk(vPA):
            a(s, "hp")
        a.wait_vm(("st", 41))
        self.ts(6)
        self.barrier()
        for s in (3, 4):
            for u in range(3):
                for hh in range(2 if s < 4 else 1):
                    a(f"ds_read_b64_tr_b16 {ar(12*s+4*u+2*hh,2)}, {VT2} offset:{(s-3)*12288+hh*6144+u*128}")
        for s in range(3):
            for u in range(3):
                for hh in range(2):
                    a(f"ds_read_b64_tr_b16 {ar(12*s+4*u+2*hh,2)}, {VT} offset:{12288+s*12288+hh*6144+u*128}")
        self.poll2(mk, vPA, F(PR, 32), "hp", every=8)
        self.ts(9)
        self.cnt(14)
        G, U, T = PR, PR+4, PR+8
        for k in range(4):
            a(f"v_pk_add_f32 {vr(PR+2*k,2)}, {vr(PR+2*k,2)}, {vr(PR+8+2*k,2)}\nv_pk_add_f32 {vr(PR+16+2*k,2)}, {vr(PR+16+2*k,2)}, {vr(PR+24+2*k,2)}")
        for k in range(4):
            a(f"v_pk_add_f32 {vr(PR+2*k,2)}, {vr(PR+2*k,2)}, {vr(PR+16+2*k,2)}")
        for k in range(4):
            a(f"v_cvt_pk_bf16_f32 {vr(T+k)}, {vr(PR+2*k)}, {vr(PR+2*k+1)}")
        for k in range(4):
            a(f"v_lshlrev_b32 {vr(PR+2*k)}, 16, {vr(T+k)}\nv_and_b32 {vr(PR+2*k+1)}, 0xffff0000, {vr(T+k)}")
        for k in range(2):
            a(f"v_pk_mul_f32 {vr(T+2*k,2)}, {vr(G+2*k,2)}, {vr(G+2*k,2)}")
        for k in range(2):
            a(f"v_pk_fma_f32 {vr(T+2*k,2)}, {vr(T+2*k,2)}, v[232:233], v[234:235]")
        for k in range(2):
            a(f"v_pk_mul_f32 {vr(T+2*k,2)}, {vr(T+2*k,2)}, {vr(G+2*k,2)}")
        for k in range(4):
            a(f"v_exp_f32 {vr(T+k)}, {vr(T+k)}")
        for k in range(4):
            a(f"v_add_f32 {vr(T+k)}, 1.0, {vr(T+k)}")
        for k in range(4):
            a(f"v_rcp_f32 {vr(T+k)}, {vr(T+k)}")
        for k in range(2):
            a(f"v_pk_mul_f32 {vr(T+2*k,2)}, {vr(T+2*k,2)}, {vr(G+2*k,2)}")
        for k in range(2):
            a(f"v_cvt_pk_bf16_f32 {vr(T+4+k)}, {vr(T+2*k)}, {vr(T+2*k+1)}")
        for k in range(2):
            a(f"v_lshlrev_b32 {vr(T+2*k)}, 16, {vr(T+4+k)}\nv_and_b32 {vr(T+2*k+1)}, 0xffff0000, {vr(T+4+k)}")
        for k in range(2):
            a(f"v_pk_mul_f32 {vr(T+2*k,2)}, {vr(T+2*k,2)}, {vr(U+2*k,2)}")
        for k in range(2):
            a(f"v_cvt_pk_bf16_f32 {vr(T+4+k)}, {vr(T+2*k)}, {vr(T+2*k+1)}")
        a(f"ds_write_b64 {vHW}, {vr(T+4,2)}\ns_waitcnt lgkmcnt(0)")
        self.barrier()
        for s in range(4):
            a(f"ds_read2_b64 {vr(HB+4*s,4)}, {vHR} offset0:{8*s} offset1:{8*s+4}", ("hb", s))
        a(f"ds_read_b64 {vr(HB+16,2)}, {vHR} offset:256", ("hb", 4))
        Y = 204
        for s in range(5):
            a.wait_ds(("hb", s))
            for u in range(3):
                if s < 4:
                    a(f"{MM} {vr(Y+4*u,4)}, {ar(12*s+4*u,4)}, {vr(HB+4*s,4)}, {'0' if s == 0 else vr(Y+4*u,4)}")
                else:
                    a(f"v_mfma_f32_16x16x16_bf16 {vr(Y+4*u,4)}, {ar(12*s+4*u,2)}, {vr(HB+16,2)}, {vr(Y+4*u,4)}")
        self.merge(Y, 3)
        self.tagf(Y, 4)
        a(f"buffer_store_dwordx4 {vr(Y,4)}, {vYS}, {WS}, s56 offen sc1")
        self.end()

    def po(self):
        a = self.a
        c = self.cfg
        a.c("----- PO: output projection of one head -----")
        VO = 150
        self.srd(R1, 5, 4096*1152)
        a(f"""s_lshl_b32 s13, {sX}, 2
              s_add_u32 s13, s13, {sJ}
              s_mul_i32 s48, s13, {128*1152}
              s_mul_i32 s49, {sW}, 9216
              s_add_u32 s48, s48, s49
              s_add_u32 s49, s49, {FBASE}""")
        self.rows1152_voffs(VO)
        a("s_waitcnt lgkmcnt(0)")
        self.barrier()
        def issue(k):
            s, i = divmod(k, 9)
            if i % 4 == 0:
                a(f"s_add_u32 m0, s49, {s*36864 + i*1024}")
            if i == 0 and s:
                a(f"s_add_u32 s48, s48, 36864")
            a(f"buffer_load_dwordx4 {vr(VO+i)}, {R1}, s48 offen offset:{1024*(i&3)}{self.nt('nt_w')} lds", ("st", k))
        VT, vSS, vCW, vCR = "v160", "v161", "v162", "v163"
        CR = 24
        mk = lambda v: [f"buffer_load_dwordx4 {vr(CR,4)}, {v}, {WS}, s50 offen sc1"]
        def setup():
            self.tile384_addr(VT, FBASE, 1152)
            self.out3_addr(vSS, 4096)
            self.xlds_addr(vCW, QL)
            a(f"""v_and_b32 v7, 1, {vN}
                  v_lshlrev_b32 v7, 8, v7
                  v_lshl_add_u32 v7, {vG}, 3, v7
                  v_add_u32 {vCR}, {QL}, v7
                  s_lshl_b32 s50, s13, 12
                  s_lshl_b32 s3, {sW}, 10
                  s_add_u32 s50, s50, s3
                  s_add_u32 s50, s50, {CF_OFF}
                  s_lshl_b32 s52, {sW}, 12
                  s_lshl_b32 s3, s13, 7
                  s_add_u32 s52, s52, s3
                  s_add_u32 s52, s52, {SP_OFF}
                  s_add_u32 s53, s52, {12*4096}
                  s_add_u32 s54, s52, {24*4096}""")
            if c["fast"]:
                a(f"buffer_load_dword v9, {vL16}, {WS}, s50 offen sc1", "touch")
        def pre(s):
            a.wait_vm(("st", 9*s+8))
            self.barrier()
            for u in range(9):
                for hh in range(2):
                    a(f"ds_read_b64_tr_b16 {ar(36*s+4*u+2*hh,2)}, {VT} offset:{hh*16*1152+u*128}")
            if s < 3:
                a(f"v_add_u32 {VT}, 36864, {VT}")
        d1, sw, d2 = c["o_d1"], c["o_sw"], c["o_d2"]
        hooks = {min(d1, 12): [setup]}
        for s in range(3):
            k = min(9*(s+1) + min(c["f_lag"], d1 if 9*(s+1) + d1 < sw else d2), 36)
            hooks.setdefault(k, []).append(lambda s=s: pre(s))
        self.stream(36, d1, sw, d2, issue, hooks)
        pre(3)
        self.ts(6)
        a(mk(vXI)[0], "cxp")
        self.poll2(mk, vXI, F(CR, 4), "cxp", every=16)
        self.ts(9)
        self.xsum(CR, vCW)
        self.barrier()
        for s in range(4):
            a(f"ds_read2_b64 {vr(CR+4*s,4)}, {vCR} offset0:{8*s} offset1:{8*s+4}", ("cb", s))
        D = 176
        fill = []
        for q in range(3):
            for s in range(4):
                if q == 0:
                    a.wait_ds(("cb", s))
                for u in range(3*q, 3*q+3):
                    a(f"{MM} {vr(D+4*u,4)}, {ar(36*s+4*u,4)}, {vr(CR+4*s,4)}, {'0' if s == 0 else vr(D+4*u,4)}")
                    if s >= 1:
                        for _ in range(2):
                            if fill:
                                a(fill.pop(0))
            d = D + 12*q
            fill = [f"v_cndmask_b32 {vr(d+k)}, {vr(d+k)}, {vr(d+4+k)}, {M2}" for k in range(4)]
            fill += [f"v_cndmask_b32 {vr(d+k)}, {vr(d+k)}, {vr(d+8+k)}, {M4}" for k in range(4)]
            fill += [f"v_and_or_b32 {vr(d+k)}, {vr(d+k)}, {vMF}, {sT}" for k in range(4)]
            fill += [f"buffer_store_dwordx4 {vr(d,4)}, {vSS}, {WS}, s{52+q} offen sc1"]
        for ins in fill:
            a(ins)
        self.end()

    def final(self):
        a = self.a
        a.c("----- final: one wave reduces the partials of one 16-column tile -----")
        S, Y, T = 128, 144, 160
        a(f"""s_lshl_b32 s44, s56, 12
              s_add_u32 s45, s44, {YP_OFF}
              s_add_u32 s44, s44, {SP_OFF}""")
        gs = [([f"buffer_load_dwordx4 {vr(S+4*i,4)}, {vL16}, {WS}, s44 offen offset:{1024*i} sc1"], F(S+4*i, 4)) for i in range(4)]
        gy = [([f"buffer_load_dwordx4 {vr(Y+4*i,4)}, {vL16}, {WS}, s45 offen offset:{1024*i} sc1"], F(Y+4*i, 4)) for i in range(4)]
        self.poll(gs + gy, "v7", "fs")
        self.ts(13)
        for b in (S, Y):
            for i in (0, 2):
                a(f"v_pk_add_f32 {vr(b+4*i,2)}, {vr(b+4*i,2)}, {vr(b+4*i+4,2)}\nv_pk_add_f32 {vr(b+4*i+2,2)}, {vr(b+4*i+2,2)}, {vr(b+4*i+6,2)}")
        for b in (S, Y):
            a(f"v_pk_add_f32 {vr(b,2)}, {vr(b,2)}, {vr(b+8,2)}\nv_pk_add_f32 {vr(b+2,2)}, {vr(b+2,2)}, {vr(b+10,2)}")
        for k in range(4):
            a(f"v_permlane32_swap_b32 {vr(S+k)}, {vr(Y+k)}")
        a(f"v_pk_add_f32 {vr(S,2)}, {vr(S,2)}, {vr(Y,2)}\nv_pk_add_f32 {vr(S+2,2)}, {vr(S+2,2)}, {vr(Y+2,2)}")
        for k in range(2):
            a(f"v_permlane16_swap_b32 {vr(S+k)}, {vr(S+2+k)}")
        a(f"v_pk_add_f32 {vr(S,2)}, {vr(S,2)}, {vr(S+2,2)}")
        for k in range(2):
            a(f"v_add_f32_dpp {vr(S+k)}, {vr(S+k)}, {vr(S+k)} row_ror:8 row_mask:0xf bank_mask:0xf")
        a(f"v_cvt_pk_bf16_f32 {vr(T)}, {vr(S)}, {vr(S+1)}\nv_mov_b32 {vr(T+1)}, {vr(T)}\nv_permlane32_swap_b32 {vr(T)}, {vr(T+1)}")
        a(f"""v_lshlrev_b32 {vr(Y)}, 16, {vr(T+1)}
              v_and_b32 {vr(Y+1)}, 0xffff0000, {vr(T+1)}
              v_mul_f32 {vr(S+2)}, 0xbfb8aa3b, {vr(Y)}
              v_mul_f32 {vr(S+3)}, 0xbfb8aa3b, {vr(Y+1)}
              v_exp_f32 {vr(S+2)}, {vr(S+2)}
              v_exp_f32 {vr(S+3)}, {vr(S+3)}
              v_lshlrev_b32 {vr(S)}, 16, {vr(T)}
              v_and_b32 {vr(S+1)}, 0xffff0000, {vr(T)}
              v_add_f32 {vr(S+2)}, 1.0, {vr(S+2)}
              v_add_f32 {vr(S+3)}, 1.0, {vr(S+3)}
              v_rcp_f32 {vr(S+2)}, {vr(S+2)}
              v_rcp_f32 {vr(S+3)}, {vr(S+3)}
              v_and_b32 v7, 1, {vG}
              v_cmp_ne_u32 vcc, 0, v7
              v_mul_f32 {vr(Y)}, {vr(Y)}, {vr(S+2)}
              v_mul_f32 {vr(Y+1)}, {vr(Y+1)}, {vr(S+3)}
              v_cndmask_b32 v242, v242, v243, vcc
              v_cvt_pk_bf16_f32 {vr(T)}, {vr(Y)}, {vr(Y+1)}
              v_lshl_add_u32 v240, v7, 2, v240
              v_lshlrev_b32 {vr(Y)}, 16, {vr(T)}
              v_and_b32 {vr(Y+1)}, 0xffff0000, {vr(T)}
              v_mul_f32 {vr(Y)}, {vr(Y)}, {vr(S)}
              v_mul_f32 {vr(Y+1)}, {vr(Y+1)}, {vr(S+1)}
              v_lshlrev_b32 {vr(S)}, 16, v242
              v_cvt_pk_bf16_f32 {vr(T)}, {vr(Y)}, {vr(Y+1)}
              v_and_b32 {vr(S+1)}, 0xffff0000, v242
              v_lshlrev_b32 {vr(Y)}, 16, {vr(T)}
              v_and_b32 {vr(Y+1)}, 0xffff0000, {vr(T)}
              v_add_f32 {vr(Y)}, {vr(Y)}, {vr(S)}
              v_add_f32 {vr(Y+1)}, {vr(Y+1)}, {vr(S+1)}
              v_cvt_pk_bf16_f32 {vr(T)}, {vr(Y)}, {vr(Y+1)}
              s_mov_b64 exec, 0x00ff00ff""")
        a(f"buffer_store_dword {vr(T)}, v240, {R1}, 0 offen")
        if self.cfg["dbgts"]:
            a("""s_memrealtime s[66:67]
                 s_waitcnt lgkmcnt(0)
                 s_sub_u32 s66, s66, s64
                 s_and_b32 s64, s64, 0xffff
                 s_lshl_b32 s64, s64, 16
                 s_or_b32 s66, s66, s64
                 s_lshr_b32 s3, s56, 1
                 s_lshl_b32 s3, s3, 2
                 v_mov_b32 v7, s3
                 v_mov_b32 v8, s66
                 s_mov_b64 exec, 1""")
            a("buffer_store_dword v8, v7, s[92:95], 0 offen")
        a("s_cmp_eq_u32 s56, 0\ns_cbranch_scc0 L_gb_exit")
        a(f"s_mov_b64 exec, 1\nv_mov_b32 v7, {EP_OFF}\nv_mov_b32 v8, {sT}")
        a(f"buffer_store_dword v8, v7, {WS}, 0 offen sc1")

    def gb(self):
        a = self.a
        c = self.cfg
        a.label("L_GB")
        if c["nob"]:
            a("s_waitcnt lgkmcnt(0)")
            self.end()
        a.c("===== group B: attention core, value/out projections =====")
        self.srd(R4, 4, 512*8192)
        sB, sKT, sHG = "s13", "s14", "s15"
        vA, vB = "v12", "v13"
        VK = 16
        a(f"""s_lshr_b32 s3, {sP}, 1
              s_lshl_b32 s46, s3, 17
              s_lshr_b32 {sB}, s3, 5
              s_and_b32 {sKT}, s3, 31
              s_and_b32 {sHG}, {sA}, 1
              s_lshl_b32 s45, {sW}, 15
              s_add_u32 s46, s46, s45
              s_lshl_b32 s3, {sHG}, 14
              s_and_b32 s3, s3, {0x4000 if c['rot'] else 0}
              s_add_u32 s52, s45, s3
              s_add_u32 s53, s46, s3
              s_xor_b32 s10, s3, 0x4000
              s_add_u32 s54, s45, s10
              s_add_u32 s55, s46, s10
              s_lshl_b32 s44, {sJ}, 20
              s_lshl_b32 s3, {sW}, 18
              s_add_u32 s44, s44, s3
              s_lshl_b32 s3, {sH}, 8
              s_add_u32 s44, s44, s3
              s_lshl_b32 s3, {sW}, 6
              v_lshlrev_b32 v8, 4, {vN}
              v_xor_b32 v7, s3, v8
              v_lshl_add_u32 {vA}, {vG}, 13, v7
              v_xor_b32 {vB}, 32, {vA}""")
        for k in range(8):
            a(f"v_xor_b32 {vr(VK+k)}, {32*k}, {vL16}")
        a("s_waitcnt lgkmcnt(0)")
        seq = [("k", i) for i in range(c["uv_at"])] + [("u", i) for i in range(8 if c["uv_early"] else 0)] + [("k", i) for i in range(c["uv_at"], 32)]
        def issue(n):
            kind, i = seq[n]
            if kind == "u":
                a(f"s_add_u32 m0, s54, {i*1024}")
                if i:
                    a(f"s_add_u32 s44, s44, {4*8192}")
                a(f"buffer_load_dwordx4 {vA if i<4 else vB}, {R4}, s44 offen{self.nt('nt_w')} lds", ("st", n))
                return
            if i % 4 == 0 or seq[n-1][0] == "u":
                a(f"s_add_u32 m0, {'s52' if i < 16 else 's54'}, {CKV + (i&12)*1024}\ns_add_u32 s47, {'s53' if i < 16 else 's55'}, {(i&12)*1024}")
            a(f"buffer_load_dwordx4 {vr(VK+(i&7))}, {R3}, s47 offen offset:{(i&3)*1024}{self.nt('nt_ckv')} lds", ("st", n))
        SA, QB, PV, VO = 80, 84, 88, 116
        def setup1():
            self.ts(1)
            self.epoch_load()
            self.srd(R1, 10, 2304)
            self.lane_late()
            self.common_setup()
            a(f"""v_lshrrev_b32 v7, 1, {vR7}
                  v_lshlrev_b32 v7, 15, v7
                  v_and_b32 v8, 1, {vRR}
                  v_lshl_add_u32 v7, v8, 12, v7
                  v_lshrrev_b32 v8, 1, {vG}
                  v_lshl_add_u32 v7, v8, 8, v7
                  s_lshl_b32 s3, {sW}, 6
                  v_xor_b32 v8, s3, {vX78}
                  v_add3_u32 v96, v7, v8, s10
                  v_xor_b32 v97, 32, v96
                  v_lshrrev_b32 v7, 1, {vG}
                  v_and_b32 v8, 7, {vN}
                  v_xor_b32 v7, v7, v8
                  v_lshlrev_b32 v7, 5, v7
                  v_and_b32 v8, 1, {vG}
                  v_lshl_add_u32 v7, v8, 4, v7
                  v_lshl_add_u32 v7, {vN}, 10, v7
                  v_add_u32 {vr(SA)}, s45, v7
                  v_add_u32 {vr(QB)}, {QAL}, v7""")
            for s in range(1, 4):
                a(f"v_xor_b32 {vr(SA+s)}, {64*s}, {vr(SA)}\nv_xor_b32 {vr(QB+s)}, {64*s}, {vr(QB)}")
            a(f"""v_lshl_add_u32 v8, {vG}, 2, {vRR}
                  v_lshl_add_u32 v7, v8, 10, {vX78}
                  s_lshl_b32 s3, {sW}, 8
                  v_add_u32 {vr(PV)}, s3, v7""")
            for t in range(1, 8):
                a(f"v_xor_b32 {vr(PV+t)}, {32*t}, {vr(PV)}")
            a(f"""s_and_b32 s3, {sW}, 1
                  s_lshl_b32 s3, s3, 7
                  v_xor_b32 v7, s3, {vL16}
                  s_lshl_b32 s3, {sW}, 12
                  s_add_u32 s3, s3, {QAL}
                  v_add_u32 v100, s3, v7""")
            for i in range(1, 4):
                a(f"v_xor_b32 {vr(100+i)}, {32*i}, v100")
            a(f"""s_lshl_b32 s3, {sW}, 2
                  s_add_u32 s3, s3, {MX}
                  v_lshl_add_u32 v104, {vN}, 4, s3
                  v_lshlrev_b32 v105, 4, {vN}
                  v_lshrrev_b32 v8, 4, v0
                  v_cmp_eq_u32 vcc, v8, {vRR}
                  v_cndmask_b32 v109, {vOOB}, v105, vcc
                  v_add_u32 v105, {MX}, v105
                  s_lshl_b32 s3, {sW}, 10
                  s_add_u32 s3, s3, {PB}
                  v_add_u32 v106, s3, {vL16}
                  v_add_u32 v107, {PB}, {vL16}
                  v_lshlrev_b32 v7, 18, {vG}
                  v_lshl_add_u32 v108, {vN}, 4, v7
                  s_lshl_b32 s56, {sP}, 8
                  s_add_u32 s56, s56, {ML_OFF}
                  s_lshl_b32 s48, {sB}, 15
                  s_lshl_b32 s3, {sHG}, 14
                  s_add_u32 s48, s48, s3
                  s_lshl_b32 s3, {sW}, 12
                  s_add_u32 s48, s48, s3
                  s_add_u32 s48, s48, {QA_OFF}
                  v_mov_b32 v112, 0x3f803f80
                  v_mov_b32 v113, 0x3f803f80
                  v_mov_b32 v114, 0x3f803f80
                  v_mov_b32 v115, 0x3f803f80""")
            a(f"""s_lshl_b32 s51, {sW}, 13
                  s_add_u32 s51, s51, {WUVL}
                  s_lshl_b32 s49, {sH}, 12
                  s_lshl_b32 s3, {sW}, 10
                  s_add_u32 s49, s49, s3
                  s_add_u32 s49, s49, {CF_OFF}
                  s_lshl_b32 s3, {sJ}, 8
                  s_add_u32 s50, s49, s3
                  s_waitcnt lgkmcnt(0)""")
            self.tags_setup()
        UVV = 40
        def uvpre():
            a.wait_vm(("st", c["uv_at"] + 7))
            self.barrier()
            for t in range(2):
                for kk in range(4):
                    for tt in range(2):
                        a(f"ds_read_b64_tr_b16 {vr(UVV+16*t+4*kk+2*tt,2)}, {vr(96+t)} offset:{(4*kk+2*tt)*256}")
            a("s_waitcnt lgkmcnt(0)")
            self.barrier()
        self.stream(len(seq), c["gb_d1"], c["gb_sw"], c["gb_d2"], issue, {min(12, c["gb_d1"]): [setup1], 24: [uvpre] if c["uv_early"] else []})
        self.ts(3)
        a(f"""s_lshr_b32 s52, {sP}, 1
                  s_lshl_b32 s52, s52, 8
                  s_lshl_b32 s3, {sHG}, 20
                  s_add_u32 s52, s52, s3
                  s_lshl_b32 s3, {sW}, 14
                  s_add_u32 s52, s52, s3
                  s_add_u32 s52, s52, {OP_OFF}
                  s_add_u32 s53, s52, 0x10000
                  s_add_u32 s54, s52, 0x20000
                  s_add_u32 s55, s52, 0x30000""")
        if not c["rot"]:
            a.wait_vm(("st", len(seq)-17))
            for s in range(16):
                a(f"ds_read_b128 {ar(4*s,4)}, {vr(SA+(s&3))} offset:{(s>>2)*256}")
        a.wait_vm(("st", len(seq)-1))
        self.ts(6)
        QA = 24
        agroups = [([f"buffer_load_dwordx4 {vr(QA+4*i,4)}, {vL16}, {WS}, s48 offen offset:{1024*i} sc1"], B(QA+4*i, 4)) for i in range(4)]
        for loads, _ in agroups:
            a(loads[0], "qap")
        self.barrier()
        for s in range(0 if c['rot'] else 16, 32):
            a(f"ds_read_b128 {ar(4*s,4)}, {vr(SA+(s&3))} offset:{16384*(s>>4)+((s&15)>>2)*256}")
        for ks in range(4):
            if ks == 2:
                for t in range(8):
                    a(f"v_add_u32 {vr(PV+t)}, 0x10000, {vr(PV+t)}")
            for t in range(8):
                for hh in range(2):
                    a(f"ds_read_b64_tr_b16 {ar(128+32*ks+4*t+2*hh,2)}, {vr(PV+t)} offset:{(32*(ks&1)+16*hh)*1024}")
        def uv(i):
            a(f"s_add_u32 m0, s51, {i*1024}")
            if i:
                a(f"s_add_u32 s44, s44, {4*8192}")
            a(f"buffer_load_dwordx4 {vA if i<4 else vB}, {R4}, s44 offen{self.nt('nt_w')} lds", ("uv", i))
        if c["uv_pos"] == 1:
            a("s_waitcnt lgkmcnt(0)")
            self.barrier()
            for i in range(8):
                uv(i)
        self.poll(agroups, "v7", "qap", issued=True)
        self.ts(7)
        self.cnt(2)
        for i in range(4):
            a(f"ds_write_b128 {vr(100+i)}, {vr(QA+4*i,4)} offset:{1024*i}")
        a("s_waitcnt lgkmcnt(0)")
        self.barrier()
        BQ = 128
        SD = 160
        for s in range(8):
            a(f"ds_read_b128 {vr(BQ+4*s,4)}, {vr(QB+(s&3))} offset:{(s>>2)*256}", ("bq", s))
        nxt = 0
        for s in range(16):
            a.wait_ds(("bq", s))
            for tt in range(2):
                a(f"{MM} {vr(SD+4*tt,4)}, {ar(64*tt+4*s,4)}, {vr(BQ+4*(s&7),4)}, {'0' if s == 0 else vr(SD+4*tt,4)}")
            if s + 8 < 16:
                s2 = s + 8
                a(f"ds_read_b128 {vr(BQ+4*(s2&7),4)}, {vr(QB+(s2&3))} offset:{(s2>>2)*256}", ("bq", s2))
            if not c["uv_early"] and c["uv_pos"] == 0 and s % 2 == 0:
                uv(s // 2)
        self.ts(8)
        a(f"""v_max3_f32 v7, {vr(SD)}, {vr(SD+1)}, {vr(SD+2)}
              v_max3_f32 v8, {vr(SD+4)}, {vr(SD+5)}, {vr(SD+6)}
              v_max3_f32 v7, v7, {vr(SD+3)}, {vr(SD+7)}
              v_max_f32 v7, v7, v8""")
        self.xrow("v_max_f32", "v7", "v8")
        a("ds_write_b32 v104, v7")
        a("s_waitcnt lgkmcnt(0)")
        self.barrier()
        a(f"""ds_read_b128 v[168:171], v105
              s_waitcnt lgkmcnt(0)
              v_max3_f32 v144, v168, v169, v170
              v_max_f32 v144, v144, v171""")
        for k in range(8):
            a(f"v_sub_f32 {vr(SD+k)}, {vr(SD+k)}, v144")
        for k in range(8):
            a(f"v_exp_f32 {vr(SD+k)}, {vr(SD+k)}")
            if k % 2 == 1 and k > 1:
                a(f"v_cvt_pk_bf16_f32 {vr(168+k//2-1)}, {vr(SD+k-3)}, {vr(SD+k-2)}")
        a(f"v_cvt_pk_bf16_f32 v171, {vr(SD+6)}, {vr(SD+7)}")
        a("ds_write_b128 v106, v[168:171]")
        a("s_waitcnt lgkmcnt(0)")
        self.barrier()
        PF = 128
        for ks in range(4):
            a(f"ds_read_b128 {vr(PF+4*ks,4)}, v107 offset:{1024*ks}", ("pf", ks))
        LD = 172
        OD = 176
        SR = 208
        mf = []
        for t in range(8):
            for ks in range(4):
                mf.append((f"{MM} {vr(OD+4*t,4)}, {vr(PF+4*ks,4)}, {ar(128+32*ks+4*t,4)}, {'0' if ks == 0 else vr(OD+4*t,4)}", ("pf", ks) if t == 0 else None))
        ml = [(f"{MM} {vr(LD,4)}, {vr(PF+4*ks,4)}, v[112:115], {'0' if ks == 0 else vr(LD,4)}", None) for ks in range(4)]
        mf = mf[:28] + ml + mf[28:] if c["ml_pos"] < 4 else mf + ml
        fill = [(0, f"v_mov_b32 v146, {sT4}"), (0, f"v_mov_b32 v147, {sT4}")]
        for u in range(4):
            b = OD + 8*u
            e = 8*(u+1) + 3
            for r in range(4):
                fill.append((e, f"v_perm_b32 {vr(SR+4*r+u)}, {vr(b+4+r)}, {vr(b+r)}, {vSEL}"))
            for r in range(4):
                fill.append((e, f"v_bitop3_b32 {vr(b+r)}, {vr(SR+4*r+u)}, {sTK[u]}, {vMB} bitop3:0x28"))
            for r in range(4):
                fill.append((e, f"v_add_u32 {vr(SR+4*r+u)}, {vr(SR+4*r+u)}, {vr(b+r)}"))
        npv = 0
        for i, (ins, w) in enumerate(mf):
            if w:
                a.wait_ds(w)
            a(ins)
            k = 0
            while fill and fill[0][0] <= i and k < c["pv_fill"] and not (c["ml_pos"] < 4 and fill[0][0] == 35):
                a(fill.pop(0)[1]); k += 1
        def mlst():
            a(f"""v_cndmask_b32 v145, {vr(LD)}, {vr(LD+1)}, {M1}
                  v_cndmask_b32 v148, {vr(LD+2)}, {vr(LD+3)}, {M1}
                  v_cndmask_b32 v145, v145, v148, {M2}""")
            a(f"buffer_store_dwordx4 v[144:147], v109, {WS}, s56 offen sc1", "opst")
        if c["ml_pos"] < 0:
            mlst()
        for _, ins in fill:
            a(ins)
        for r in range(5):
            if r == c["ml_pos"]:
                mlst()
            if r < 4:
                a(f"buffer_store_dwordx4 {vr(SR+4*r,4)}, v108, {WS}, s{52+r} offen sc1", "opst")
        self.ts(9)
        OPR, MLW = 24, 40
        WL = MX
        a(f"""s_lshl_b32 s48, {sP}, 14
              s_lshl_b32 s3, {sW}, 12
              s_add_u32 s48, s48, s3
              s_add_u32 s48, s48, {OP_OFF}
              s_add_u32 s52, s3, {OPL}
              v_lshlrev_b32 v100, 9, {vL}
              s_lshl_b32 s53, {sH}, 4
              s_add_u32 s53, s53, {ML_OFF}
              s_lshl_b32 s3, {sW}, 7
              s_add_u32 s3, s3, {WL}
              v_lshl_add_u32 v98, {vL}, 1, s3
              v_and_b32 v7, 1, {vN}
              v_lshlrev_b32 v8, 6, v7
              v_lshl_add_u32 v8, {vG}, 3, v8
              v_add_u32 v99, s3, v8
              v_lshlrev_b32 v8, 5, {vG}
              v_xor_b32 v101, v8, {vL16}
              v_add_u32 v101, s52, v101
              v_xor_b32 v102, 0x80, v101
              v_lshl_add_u32 v10, {vG}, 2, {vRR}
              v_lshl_add_u32 v8, v10, 8, {vX78}
              v_add_u32 {vr(PV)}, {OPL}, v8""")
        for t in range(1, 8):
            a(f"v_xor_b32 {vr(PV+t)}, {32*t}, {vr(PV)}")
        a(f"""s_lshr_b32 s56, {sP}, 1
              s_lshl_b32 s3, s56, 5
              v_bfe_u32 v7, {vL}, 2, 1
              v_mul_u32_u24 v7, 1152, v7
              v_add3_u32 v240, v7, {vCC8}, s3""")
        a(f"buffer_load_dwordx2 v[242:243], v240, {R0}, 0 offen", "xres")
        ogroups = [([f"buffer_load_dwordx4 {vr(OPR+4*i,4)}, {vL16}, {WS}, s48 offen offset:{1024*i} sc1"], B(OPR+4*i, 4)) for i in range(4)]
        mgroup = [([f"buffer_load_dwordx3 {vr(MLW,3)}, v100, {WS}, s53 offen sc1"], [(vr(MLW+2), "w")])]
        UV, WO = 0, 32
        if c["uv_early"]:
            for k in range(32):
                a(f"v_accvgpr_write_b32 {ar(UV+k)}, {vr(UVV+k)}")
        else:
            a(f"""v_and_b32 v7, 1, {vG}
                  v_lshlrev_b32 v7, 6, v7
                  v_lshl_add_u32 v7, {vRR}, 4, v7
                  v_lshrrev_b32 v8, 1, {vG}
                  v_add_u32 v7, v7, v8
                  s_lshl_b32 s3, {sW}, 6
                  v_xor_b32 v8, s3, {vX78}
                  v_lshl_add_u32 v96, v7, 8, v8
                  v_xor_b32 v97, 32, v96""")
            a.wait_vm(("uv", 7))
            self.barrier()
            for t in range(2):
                for kk in range(4):
                    for tt in range(2):
                        a(f"ds_read_b64_tr_b16 {ar(UV+16*t+4*kk+2*tt,2)}, {vr(96+t)} offset:{WUVL+(4*kk+2*tt)*256}")
        if c["op_sync"]:
            a("s_waitcnt vmcnt(0)")
        self.ts(10)
        self.poll(mgroup, "v7", "mlp")
        self.ts(14)
        for loads, _ in ogroups:
            a(loads[0], "opp")
        a(f"v_mov_b32 v7, {vr(MLW)}")
        self.red32("v_max_f32", "v7", "v8")
        a(f"""v_sub_f32 v7, {vr(MLW)}, v7
              v_exp_f32 v10, v7
              s_nop 0
              v_mul_f32 v7, v10, {vr(MLW+1)}""")
        self.red32("v_add_f32", "v7", "v8")
        a(f"""v_rcp_f32 v7, v7
              v_mul_f32 v7, v7, v10
              v_cvt_pk_bf16_f32 v7, v7, v7
              ds_write_b16 v98, v7
              s_waitcnt lgkmcnt(0)
              ds_read2_b64 v[44:47], v99 offset0:0 offset1:4
              s_waitcnt lgkmcnt(0)""")
        for k in range(4):
            a(f"v_cndmask_b32 {vr(68+k)}, {vr(44+k)}, 0, {M1}")
            a(f"v_cndmask_b32 {vr(72+k)}, 0, {vr(44+k)}, {M1}")
        self.poll(ogroups, "v7", "opp", issued=True)
        self.ts(11)
        self.cnt(4)
        for i in range(4):
            a(f"ds_write_b128 {vr(101+(i&1))}, {vr(OPR+4*i,4)} offset:{1024*i}")
        a("s_waitcnt lgkmcnt(0)")
        self.barrier()
        RF = 128
        def rd(t):
            for bs in range(2):
                for hh in range(2):
                    a(f"ds_read_b64_tr_b16 {vr(RF+8*t+4*bs+2*hh,2)}, {vr(PV+t)} offset:{(32*bs+16*hh)*256}", ("rf", t))
        for t in range(3):
            rd(t)
        CD = 192
        CB = 48
        XD = 224
        def cvt(u):
            a(f"v_cvt_pk_bf16_f32 {vr(CB+2*u)}, {vr(CD+4*u)}, {vr(CD+4*u+1)}\nv_cvt_pk_bf16_f32 {vr(CB+2*u+1)}, {vr(CD+4*u+2)}, {vr(CD+4*u+3)}")
        def mm(kk):
            for t in range(2):
                a(f"{MM} {vr(XD+4*t,4)}, {ar(UV+16*t+4*kk,4)}, {vr(CB+4*kk,4)}, {'0' if kk == 0 else vr(XD+4*t,4)}")
        for t in range(8):
            a.wait_ds(("rf", t))
            for bs in range(2):
                a(f"{MM} {vr(CD+4*t,4)}, {vr(RF+8*t+4*bs,4)}, {vr(68+4*bs,4)}, {'0' if bs == 0 else vr(CD+4*t,4)}")
            if t + 3 < 8:
                rd(t + 3)
            if t >= 2:
                cvt(t - 2)
        mm(0); mm(1); mm(2); cvt(6); cvt(7); mm(3)
        self.merge(XD, 2)
        slow = self.xpub(XD, "s50", "cxst")
        if slow:
            a(slow)
        self.ts(12)
        a(f"""s_and_b32 s3, {sP}, 1
              s_or_b32 s3, s3, {sW}
              s_cbranch_scc1 L_gb_exit
              s_cmp_ge_u32 {sP}, 72
              s_cbranch_scc1 L_gb_exit""")
        self.final()
        a.label("L_gb_exit")
        if c["ts"]:
            self.end()
        a.label("L_end")
        a("s_endpgm")

    def build(self):
        hdr = open("cdna_kernels/" + NAME + ".s.ref").read().split("\n")
        top = [l for l in hdr if l.startswith(";") and "@launch" not in l and "Override launch" not in l and "grid=ceil" not in l]
        a = self.a
        self.prologue()
        self.ga()
        self.gb()
        s = "\n".join(top) + "\n"
        s += f"; @launch grid=(256,1,1) block=(256,1,1) lds={LDS_SIZE}\n"
        s += f""".amdgcn_target "amdgcn-amd-amdhsa--gfx950"
.text
.globl {NAME}_kernel
.p2align 8
.type {NAME}_kernel,@function
{NAME}_kernel:
"""
        s += a.text()
        s += f""".section .rodata,"a"
.p2align 6
.amdhsa_kernel {NAME}_kernel
  .amdhsa_next_free_vgpr 512
  .amdhsa_next_free_sgpr 102
  .amdhsa_accum_offset 256
  .amdhsa_group_segment_fixed_size 0
  .amdhsa_kernarg_size 104
  .amdhsa_user_sgpr_count 2
  .amdhsa_user_sgpr_kernarg_segment_ptr 1
  .amdhsa_system_sgpr_workgroup_id_x 1
  .amdhsa_float_denorm_mode_32 3
.end_amdhsa_kernel
"""
        return s

if __name__ == "__main__":
    out = sys.argv[1]
    cfg = {}
    for kv in sys.argv[2:]:
        k, v = kv.split("=")
        cfg[k] = int(v)
    g = Gen(cfg)
    open(out, "w").write(g.build())
    print("wrote", out, "nops inserted:", g.a.nops)
```

```python
import sys
from asmlib import Asm

NAME = "recurrent_scan__compressed_kv_cla__geglu_ffn__decode"

DEF = dict(
    ts=0,
    nt_w=1,
    nt_ckv=1,
    pf=1,
    touch_ml=0, touch_fin=1, touch_at=16,
    out_sc=0,
    ep_early=1,
    qb=32,
    p2v=1, qa_at=3, pv_s=32,
    dip0=22, dip1=30, dipd=6,
    pre_late=0, bias=0,
    l2pf=0,
    x0=1, fin4=1, ff_tail=1,
    tt=2,
    kint=3,
    uk_ln=8, q_at=1,
    gb_0=0,
    gb_q=4,
    f_d1=4, f_sw=8, f_d2=12,
    o_d1=1, o_sw=3, o_d2=12,
    f_touch=20, f_lag=12,
    hp_at=3,
    sgate=0,
    f_pre=4,
    gb_d1=12, gb_sw=12, gb_d2=32,
    uv_pos=3,
    rot=0,
    uv_at=16,
    uv_early=0,
    ml_pos=4,
    op_sync=1, pv_fill=2,
    kslow=24,
    fast=1,
    spin=60000,
    dbgts=0,
    noslow=0,
    nob=0,
    nof=0,
)

OP_OFF = 0x000000
QF_OFF = 0x200000
CF_OFF = 0x240000
PF_OFF = 0x260000
SLOW   = 0x0B0000
QA_OFF = 0x360000
ML_OFF = 0x370000
FL_OFF = 0x378000
SP_OFF = 0x380000
YP_OFF = 0x3A8000
EP_OFF = 0x3F0000
TS_OFF = 0x800000
WS_SIZE = 0x1000000
OOB = 0x7f000000

XN = 0
QL = 0xA00
FBASE = 0x2000
WUKL = 0x15000
WQL = 0x1D000
LDS_SIZE = 0x26000
WQB = 0x20000
XNB = 0x25400
CKV = 0
QAL = 0x20000
MX = 0x24000
PB = 0x24400
CXL = 0x25400
WUVL = 0
WOL = 0x8000
OPL = 0x14000

sW, sH, sJ, sX, sA, sP = "s6", "s7", "s8", "s9", "s11", "s12"
WS = "s[16:19]"
R0, R1, R2, R3, R4 = "s[24:27]", "s[28:31]", "s[32:35]", "s[36:39]", "s[40:43]"
sCNT, sMASK = "s60", "s20"
sT = "s61"
sTK = ["s96", "s97", "s98", "s99"]
sT4 = "s100"
vTB = ["v236", "v237", "v238", "v239"]
M1, M2, M4 = "s[62:63]", "s[22:23]", "s[58:59]"
vMF, vMB, vSEL, vOOB = "v254", "v255", "v252", "v251"
vL, vN, vG, vRR, vCC8, vL16 = "v1", "v2", "v3", "v4", "v5", "v6"
vR7, vX78, vXI, vXO = "v250", "v249", "v248", "v247"

def vr(b, n=1):
    return f"v{b}" if n == 1 else f"v[{b}:{b+n-1}]"
def ar(b, n=1):
    return f"a{b}" if n == 1 else f"a[{b}:{b+n-1}]"
def F(b, n):
    return [(vr(b+k), ("f", k & 3)) for k in range(n)]
def B(b, n):
    return [(vr(b+k), ("b", k & 3)) for k in range(n)]
MM = "v_mfma_f32_16x16x32_bf16"

class Gen:
    def __init__(self, cfg):
        self.cfg = dict(DEF)
        for k in cfg:
            assert k in DEF, k
        self.cfg.update(cfg)
        self.a = Asm()
        self.pfl = 20

    def ts(self, k):
        if self.cfg["ts"] == 1 or (self.cfg["ts"] == 2 and k in (0, 15)):
            self.a(f"s_memrealtime s[{64+2*k}:{65+2*k}]\ns_waitcnt lgkmcnt(0)")

    def cnt(self, k):
        if self.cfg["ts"] == 1:
            self.a(f"s_sub_u32 s{64+2*k}, {self.cfg['spin']+1}, {sCNT}\ns_mov_b32 s{65+2*k}, 0")

    def end(self):
        a = self.a
        self.ts(15)
        if self.cfg["ts"]:
            a.c("diagnostic: store stamps")
            a(f"""s_mov_b64 exec, -1
                  s_lshl_b32 s3, s2, 2
                  s_add_u32 s3, s3, {sW}
                  s_lshl_b32 s3, s3, 7
                  s_add_u32 s3, s3, {TS_OFF}
                  v_mov_b32 v8, 0""")
            for k in range(16):
                a(f"v_mov_b32 v10, s{64+2*k}\nv_mov_b32 v11, s{65+2*k}")
                a(f"buffer_store_dwordx2 v[10:11], v8, {WS}, s3 offen offset:{8*k}")
                a("s_nop 1")
        a("s_endpgm")

    def srd(self, reg, slot, size):
        base = int(reg[2:].split(":")[0])
        self.a(f"s_load_dwordx2 s[{base}:{base+1}], s[0:1], {slot*8}\ns_mov_b32 s{base+2}, {size}\ns_mov_b32 s{base+3}, 0x20000")

    def nt(self, k):
        return " nt" if self.cfg[k] else ""

    def check_regs(self, regs, tmp):
        a = self.a
        kind = regs[0][1]
        kind = kind[0]
        for i, (r, k) in enumerate(regs):
            t = vTB[k[1]] if kind == "f" else (sT4 if kind == "w" else sTK[k[1]])
            if i == 0:
                a(f"v_xor_b32 {tmp}, {t}, {r}")
            else:
                a(f"v_bitop3_b32 {tmp}, {tmp}, {r}, {t} bitop3:0xf6")
        if kind == "f":
            a(f"v_and_b32 {tmp}, 0xff, {tmp}")
        elif kind == "b":
            a(f"v_and_b32 {tmp}, 0x10001, {tmp}")
        a(f"v_cmp_ne_u32 vcc, 0, {tmp}")

    def tagf(self, base, n):
        for k in range(n):
            self.a(f"v_and_or_b32 {vr(base+k)}, {vr(base+k)}, {vMF}, {vTB[k & 3]}")

    def packb(self, dsts, srcs, ks, tmps):
        a = self.a
        for d, (lo, hi) in zip(dsts, srcs):
            a(f"v_perm_b32 {d}, {hi}, {lo}, {vSEL}")
        for d, k, t in zip(dsts, ks, tmps):
            a(f"v_bitop3_b32 {t}, {d}, {k}, {vMB} bitop3:0x28")
        for d, t in zip(dsts, tmps):
            a(f"v_add_u32 {d}, {d}, {t}")

    def merge(self, d, n):
        a = self.a
        for k in range(4):
            a(f"v_cndmask_b32 {vr(d+k)}, {vr(d+k)}, {vr(d+4+k)}, {M2}")
        if n == 4:
            for k in range(4):
                a(f"v_cndmask_b32 {vr(d+8+k)}, {vr(d+8+k)}, {vr(d+12+k)}, {M2}")
        if n >= 3:
            for k in range(4):
                a(f"v_cndmask_b32 {vr(d+k)}, {vr(d+k)}, {vr(d+8+k)}, {M4}")

    def epoch_load(self):
        self.a(f"s_add_u32 s4, s16, {EP_OFF}\ns_addc_u32 s5, s17, 0\ns_load_dwordx2 s[60:61], s[4:5], 0")

    def tags_setup(self):
        a = self.a
        a(f"""s_add_u32 {sT4}, s60, 0x9e3779b1
              s_and_b32 s3, {sT}, 0x55
              s_lshl_b32 s3, s3, 1
              s_xor_b32 {sT}, {sT}, s3
              s_xor_b32 {sT}, {sT}, 0x55
              s_and_b32 {sT}, {sT}, 0xff
              s_and_b32 s3, {sT}, 4
              s_lshl_b32 s3, s3, 1
              s_or_b32 s60, s3, 4
              s_lshr_b32 s3, {sT}, 4
              s_xor_b32 s3, s3, {sT}
              s_and_b32 s3, s3, 15
              s_cselect_b32 s60, 0, s60
              s_xor_b32 {sT}, {sT}, s60""")
        for k in range(4):
            a(f"v_bfe_u32 {vTB[k]}, {sT4}, {8*k}, 8")
        for k in range(4):
            a(f"""s_bfe_u32 s3, {sT}, {(1 << 16) | (2*k+1)}
                  s_lshl_b32 s3, s3, 16
                  s_bfe_u32 {sTK[k]}, {sT}, {(1 << 16) | (2*k)}
                  s_or_b32 {sTK[k]}, {sTK[k]}, s3""")

    def common_setup(self):
        self.a(f"""v_mov_b32 {vMF}, 0xffffff00
              v_mov_b32 {vMB}, 0x00010001
              v_mov_b32 {vSEL}, 0x07060302
              v_mov_b32 {vOOB}, {OOB}
              v_and_b32 v7, 1, {vN}
              v_cmp_ne_u32 {M1}, 0, v7
              v_and_b32 v8, 2, {vN}
              v_cmp_ne_u32 {M2}, 0, v8
              v_and_b32 v10, 4, {vN}
              v_cmp_ne_u32 {M4}, 0, v10
              v_lshlrev_b32 v7, 7, v7
              v_lshl_add_u32 v7, v8, 5, v7
              v_lshl_add_u32 v7, {vG}, 4, v7
              v_cmp_gt_u32 vcc, 4, {vN}
              v_cndmask_b32 {vXO}, {vOOB}, v7, vcc
              v_lshlrev_b32 v7, 5, {vCC8}
              v_lshl_add_u32 v7, v10, 5, v7
              v_lshrrev_b32 v8, 3, {vN}
              v_lshl_add_u32 v7, v8, 6, v7
              v_lshl_add_u32 {vXI}, {vG}, 4, v7
              v_and_b32 v7, 1, {vG}
              v_lshl_add_u32 {vR7}, v7, 2, {vRR}
              v_lshl_add_u32 {vX78}, {vR7}, 5, {vCC8}""")

    def poll(self, groups, tmp, tag, issued=False):
        a = self.a
        if not issued:
            for loads, _ in groups:
                for s in loads:
                    a(s, tag)
        a(f"s_mov_b32 {sCNT}, {self.cfg['spin']}")
        a.wait_vm(tag)
        top, ok = a.newlab("Lp"), a.newlab("Lok")
        keep = list(a.vm)
        if len(groups) == 1:
            a.label(top)
            self.check_regs(groups[0][1], tmp)
            a(f"s_cbranch_vccz {ok}")
            a(f"s_sub_u32 {sCNT}, {sCNT}, 1\ns_cbranch_scc1 {ok}")
            for s in groups[0][0]:
                a(s)
            a(f"s_waitcnt vmcnt(0)\ns_branch {top}")
        else:
            self.check_regs([r for _, regs in groups for r in regs], tmp)
            a(f"s_mov_b32 {sMASK}, {(1 << len(groups)) - 1}")
            a(f"s_cbranch_vccz {ok}")
            a.label(top)
            for i, (loads, regs) in enumerate(groups):
                nx, cl = a.newlab("Ln"), a.newlab("Lc")
                a(f"s_bitcmp0_b32 {sMASK}, {i}\ns_cbranch_scc1 {nx}")
                self.check_regs(regs, tmp)
                a(f"s_cbranch_vccz {cl}")
                for s in loads:
                    a(s)
                a(f"s_branch {nx}")
                a.label(cl)
                a(f"s_bitset0_b32 {sMASK}, {i}")
                a.label(nx)
            a(f"s_cmp_eq_u32 {sMASK}, 0\ns_cbranch_scc1 {ok}")
            a(f"s_waitcnt vmcnt(0)\ns_sub_u32 {sCNT}, {sCNT}, 1\ns_cbranch_scc0 {top}")
        a.vm = keep
        a.label(ok)

    def poll2(self, mk, vaddr, regs, tag, slow_store=None, every=2):
        a = self.a
        K = self.cfg["spin"] - self.cfg["kslow"]
        a(f"s_mov_b32 {sCNT}, {self.cfg['spin']}")
        a.wait_vm(tag)
        top, ok, ns = a.newlab("Lp"), a.newlab("Lok"), a.newlab("Lns")
        keep = list(a.vm)
        a.label(top)
        self.check_regs(regs, "v7")
        a(f"s_cbranch_vccz {ok}")
        a(f"s_sub_u32 {sCNT}, {sCNT}, 1\ns_cbranch_scc1 {ok}")
        if self.cfg["fast"]:
            if slow_store:
                a(f"s_cmp_eq_u32 {sCNT}, {K}\ns_cbranch_scc0 {ns}")
                a(slow_store)
                a.label(ns)
            a(f"""s_cmp_le_u32 {sCNT}, {K}
                  s_cselect_b32 s3, {sCNT}, 1
                  s_and_b32 s3, s3, {every-1}
                  s_cselect_b32 s3, 0, {SLOW}
                  v_add_u32 v8, s3, {vaddr}""")
            for s in mk("v8"):
                a(s)
        else:
            for s in mk(vaddr):
                a(s)
        a(f"s_waitcnt vmcnt(0)\ns_branch {top}")
        a.vm = keep
        a.label(ok)

    def xpub(self, d, soff, tag):
        self.tagf(d, 4)
        if self.cfg["fast"]:
            self.a(f"buffer_store_dwordx4 {vr(d,4)}, {vXO}, {WS}, {soff} offen", tag)
            return f"s_add_u32 s3, {soff}, {SLOW}\nbuffer_store_dwordx4 {vr(d,4)}, {vXO}, {WS}, s3 offen sc1"
        self.a(f"buffer_store_dwordx4 {vr(d,4)}, {vXO}, {WS}, {soff} offen sc1", tag)
        return None

    def xsum(self, r, vlds):
        a = self.a
        for q in ("[1,0,3,2]", "[2,3,0,1]"):
            for k in range(4):
                a(f"v_add_f32_dpp {vr(r+k)}, {vr(r+k)}, {vr(r+k)} quad_perm:{q} row_mask:0xf bank_mask:0xf")
        a(f"v_cvt_pk_bf16_f32 {vr(r)}, {vr(r)}, {vr(r+1)}\nv_cvt_pk_bf16_f32 {vr(r+1)}, {vr(r+2)}, {vr(r+3)}")
        a(f"ds_write_b64 {vlds}, {vr(r,2)}\ns_waitcnt lgkmcnt(0)")

    def xlds_addr(self, dst, base):
        self.a(f"""s_lshl_b32 s3, {sW}, 6
                   s_add_u32 s3, s3, {base}
                   v_bfe_u32 v7, {vN}, 2, 1
                   v_lshlrev_b32 v7, 8, v7
                   v_lshrrev_b32 v8, 3, {vN}
                   v_lshl_add_u32 v7, v8, 5, v7
                   v_lshl_add_u32 v7, {vG}, 3, v7
                   v_add_u32 {dst}, s3, v7""")

    def barrier(self):
        self.a("s_barrier")

    def rows384_voffs(self, base, stride):
        a = self.a
        a(f"s_movk_i32 s3, 2731\ns_movk_i32 s4, {stride - 384}")
        for i in range(3):
            a(f"""v_add_u32 v7, {64*i}, {vL}
                  v_mul_u32_u24 v8, s3, v7
                  v_lshrrev_b32 v8, 16, v8
                  v_lshrrev_b32 v10, 1, v8
                  v_lshlrev_b32 v10, 5, v10
                  v_xor_b32 v10, v10, {vL16}
                  v_mad_u32_u24 {vr(base+i)}, v8, s4, v10""")

    def rows1152_voffs(self, base):
        a = self.a
        a("s_movk_i32 s3, 1821")
        for i in range(9):
            a(f"""v_add_u32 v7, {64*i}, {vL}
                  v_mul_u32_u24 v8, s3, v7
                  v_lshrrev_b32 v8, 18, v8
                  v_lshlrev_b32 v8, 5, v8
                  v_xor_b32 v8, v8, {vL16}
                  v_add_u32 {vr(base+i)}, {(i & 12) * 1024}, v8""")

    def tile384_addr(self, dst, base, row=384):
        self.a(f"""v_lshrrev_b32 v7, 1, {vR7}
                   v_xor_b32 v7, {sW}, v7
                   v_lshl_add_u32 v7, v7, 5, {vCC8}
                   v_lshl_add_u32 v8, {vG}, 2, {vRR}
                   v_mul_u32_u24 v8, {row}, v8
                   v_add_u32 v7, v7, v8
                   v_add_u32 {dst}, {base}, v7""")

    def out3_addr(self, dst, shift):
        self.a(f"""v_lshrrev_b32 v7, 1, {vN}
                   v_mul_u32_u24 v7, {4*shift}, v7
                   v_and_b32 v8, 1, {vN}
                   v_lshl_add_u32 v7, v8, 6, v7
                   v_lshl_add_u32 v7, {vG}, 4, v7
                   v_cmp_gt_u32 vcc, 6, {vN}
                   v_cndmask_b32 {dst}, {vOOB}, v7, vcc""")

    def red32(self, op, x, t):
        a = self.a
        for r in (8, 4, 2, 1):
            a(f"{op}_dpp {x}, {x}, {x} row_ror:{r} row_mask:0xf bank_mask:0xf")
        a(f"v_mov_b32 {t}, {x}\nv_permlane16_swap_b32 {x}, {t}\n{op} {x}, {x}, {t}")

    def xrow(self, op, x, t):
        self.a(f"""v_mov_b32 {t}, {x}
                   v_permlane16_swap_b32 {x}, {t}
                   {op} {x}, {x}, {t}
                   v_mov_b32 {t}, {x}
                   v_permlane32_swap_b32 {x}, {t}
                   {op} {x}, {x}, {t}""")

    def stream(self, n, d1, sw, d2, issue, hooks, per=3, dip=None):
        a = self.a
        self.q = []
        for i in range(n + 1):
            for f in hooks.get(i, []):
                while self.q:
                    self.q.pop(0)()
                f()
            if i == n:
                break
            d = d1 if i < sw else d2
            if dip and dip[0] <= i < dip[1]:
                d = dip[2]
            if i - d >= 0:
                a.wait_vm(("st", i - d))
            issue(i)
            for _ in range(per):
                if self.q:
                    self.q.pop(0)()
        while self.q:
            self.q.pop(0)()

    def prologue(self):
        a = self.a
        c = self.cfg
        a("s_cmp_ge_u32 s2, 256\ns_cbranch_scc1 L_end")
        self.srd(R1, 2, 576*8192)
        self.srd(R3, 1, 2*4096*1024)
        self.srd(R0, 0, 2304)
        self.srd(R2, 3, 512*8192)
        self.srd(WS, 12, WS_SIZE)
        if c["dbgts"]:
            a("s_memrealtime s[64:65]\ns_load_dwordx2 s[92:93], s[0:1], 88\ns_mov_b32 s94, 256\ns_mov_b32 s95, 0x20000")
        if c["ts"]:
            for k in range(1, 16):
                a(f"s_mov_b64 s[{64+2*k}:{65+2*k}], 0")
            a("s_memrealtime s[64:65]")
        a(f"""s_lshr_b32 s10, s2, 3
              s_and_b32 {sX}, s2, 7
              v_lshrrev_b32 v7, 6, v0
              v_and_b32 {vL}, 63, v0
              v_readfirstlane_b32 {sW}, v7
              s_and_b32 {sA}, s10, 15
              s_lshl_b32 {sP}, {sX}, 4
              s_add_u32 {sP}, {sP}, {sA}
              s_lshr_b32 {sH}, {sP}, 2
              s_and_b32 {sJ}, {sA}, 3""")
        if c["pf"]:
            a.c("pull the kernel's own code into L2")
            a("s_getpc_b64 s[4:5]")
            a.label("L_pc")
            a(f"""s_and_b32 s3, s10, 3
                  s_lshl_b32 s3, s3, 2
                  s_add_u32 s3, s3, {sW}
                  s_mul_i32 s3, s3, {64*self.pfl}
                  v_lshl_add_u32 v7, {vL}, 6, s3
                  v_min_u32 v7, L_end-L_pc, v7
                  s_mov_b64 exec, {(1 << self.pfl) - 1}""")
            a("global_load_dword v9, v7, s[4:5]", "pf")
            a("s_mov_b64 exec, -1")
        a(f"""v_and_b32 {vN}, 15, {vL}
              v_lshrrev_b32 {vG}, 4, {vL}
              v_lshlrev_b32 {vL16}, 4, {vL}""")
        a("s_cmp_ge_u32 s10, 16\ns_cbranch_scc1 L_GB")

    def lane_late(self):
        self.a(f"""v_lshrrev_b32 {vRR}, 2, {vN}
                   v_and_b32 {vCC8}, 3, {vL}
                   v_lshlrev_b32 {vCC8}, 3, {vCC8}""")

    def wuk(self, i):
        a = self.a
        a(f"s_add_u32 m0, s21, {i*1024}")
        if i:
            a(f"s_add_u32 s47, s47, {4*8192}")
        a(f"buffer_load_dwordx4 {'v17' if i%2==0 else 'v18'}, {R2}, s47 offen{self.nt('nt_w')} lds", ("wuk", i))

    def xload(self, vXA, vXT):
        a = self.a
        for k in range(4):
            a(f"buffer_load_dwordx2 {vr(24+2*k,2)}, {vXA}, {R0}, 0 offen offset:{256*k}", "x")
        a(f"buffer_load_dword v32, {vXT}, {R0}, 0 offen offset:1024", "x")

    def xaddr(self, vXA, vXT):
        self.a(f"""v_lshrrev_b32 v7, 5, {vL}
                   v_mul_u32_u24 v7, 1152, v7
                   v_and_b32 v8, 31, {vL}
                   v_lshl_add_u32 {vXA}, v8, 3, v7
                   v_lshl_add_u32 {vXT}, v8, 2, v7""")

    def ln(self, vXA, vXT, XN=0):
        a = self.a
        X = 24
        if XN:
            a(f"v_add_u32 {vXA}, {XN}, {vXA}\nv_add_u32 {vXT}, {XN}, {vXT}")
            XN = 0
        U = 34
        for k in range(9):
            a(f"v_lshlrev_b32 {vr(U+2*k)}, 16, {vr(X+k)}\nv_and_b32 {vr(U+2*k+1)}, 0xffff0000, {vr(X+k)}")
        a(f"v_pk_add_f32 v[52:53], {vr(U,2)}, {vr(U+2,2)}\nv_pk_add_f32 v[54:55], {vr(U+4,2)}, {vr(U+6,2)}")
        for k in range(4, 8, 2):
            a(f"v_pk_add_f32 v[52:53], v[52:53], {vr(U+2*k,2)}\nv_pk_add_f32 v[54:55], v[54:55], {vr(U+2*k+2,2)}")
        a(f"v_pk_add_f32 v[52:53], v[52:53], {vr(U+16,2)}\nv_pk_add_f32 v[52:53], v[52:53], v[54:55]\nv_add_f32 v52, v52, v53")
        self.red32("v_add_f32", "v52", "v53")
        a("v_mul_f32 v52, 0x3ae38e39, v52")
        a("v_cvt_pk_bf16_f32 v54, v52, v52\nv_mov_b32 v53, v52\nv_and_b32 v54, 0xffff0000, v54\nv_mov_b32 v55, v54")
        D = 56
        for k in range(9):
            a(f"v_pk_add_f32 {vr(D+2*k,2)}, {vr(U+2*k,2)}, v[52:53] neg_lo:[0,1] neg_hi:[0,1]")
        a(f"v_pk_mul_f32 v[74:75], {vr(D,2)}, {vr(D,2)}\nv_pk_mul_f32 v[76:77], {vr(D+2,2)}, {vr(D+2,2)}")
        for k in range(2, 9):
            t = "v[74:75]" if k % 2 == 0 else "v[76:77]"
            a(f"v_pk_fma_f32 {t}, {vr(D+2*k,2)}, {vr(D+2*k,2)}, {t}")
        a("v_pk_add_f32 v[74:75], v[74:75], v[76:77]\nv_add_f32 v74, v74, v75")
        fill = [f"v_pk_add_f32 {vr(D+2*k,2)}, {vr(U+2*k,2)}, v[54:55] neg_lo:[0,1] neg_hi:[0,1]" for k in range(9)]
        fill += [f"v_cvt_pk_bf16_f32 {vr(X+k)}, {vr(D+2*k)}, {vr(D+2*k+1)}" for k in range(9)]
        for k in range(9):
            fill += [f"v_lshlrev_b32 {vr(U+2*k)}, 16, {vr(X+k)}", f"v_and_b32 {vr(U+2*k+1)}, 0xffff0000, {vr(X+k)}"]
        chain = [f"v_add_f32_dpp v74, v74, v74 row_ror:{r} row_mask:0xf bank_mask:0xf" for r in (8, 4, 2, 1)]
        chain += ["v_mov_b32 v75, v74", "v_permlane16_swap_b32 v74, v75", "v_add_f32 v74, v74, v75",
                  "v_mul_f32 v74, 0x3ae38e39, v74", "v_cvt_pk_bf16_f32 v74, v74, v74", "v_and_b32 v74, 0xffff0000, v74",
                  "v_add_f32 v74, 0x3727c5ac, v74", "v_cvt_pk_bf16_f32 v74, v74, v74", "v_and_b32 v74, 0xffff0000, v74",
                  "v_sqrt_f32 v74, v74", "v_cvt_pk_bf16_f32 v74, v74, v74", "v_and_b32 v74, 0xffff0000, v74",
                  "v_rcp_f32 v74, v74", "v_mov_b32 v75, v74"]
        for ins in chain:
            for _ in range(2):
                if fill:
                    a(fill.pop(0))
            a(ins)
        for ins in fill:
            a(ins)
        for k in range(9):
            a(f"v_pk_mul_f32 {vr(U+2*k,2)}, {vr(U+2*k,2)}, v[74:75]")
        for k in range(9):
            a(f"v_cvt_pk_bf16_f32 {vr(X+k)}, {vr(U+2*k)}, {vr(U+2*k+1)}")
            if k % 2 == 1:
                a(f"ds_write_b64 {vXA}, {vr(X+k-1,2)} offset:{XN+128*(k-1)}")
        a(f"ds_write_b32 {vXT}, {vr(X+8)} offset:{XN+1024}")

    def wq_issue(self, n, v0, v1, smem, slds):
        a = self.a
        for i in range(n):
            a(f"s_add_u32 m0, {slds}, {i*1024}")
            if i:
                a(f"s_add_u32 {smem}, {smem}, {4*8192}")
            a(f"buffer_load_dwordx4 {v0 if i%2==0 else v1}, {R1}, {smem} offen{self.nt('nt_w')} lds", "wq")

    def p1a(self, vT0, vT1, vXB, XB, W, Dq, nf, tail, soff, mid=None):
        a = self.a
        st = 4*nf + 2
        for s in range(nf):
            a(f"ds_read2_b64 {vr(XB+4*s,4)}, {vXB} offset0:{8*s} offset1:{8*s+4}")
        if tail:
            a(f"ds_read_b64 {vr(XB+4*nf,2)}, {vXB} offset:{64*nf}")
        ns = nf + (1 if tail else 0)
        def rd(s):
            for t, vt in enumerate((vT0, vT1)):
                b = W + st*t + 4*s
                a(f"ds_read_b64_tr_b16 {vr(b,2)}, {vt} offset:{32*s*256}", f"wq{s}")
                if s < nf:
                    a(f"ds_read_b64_tr_b16 {vr(b+2,2)}, {vt} offset:{(32*s+16)*256}", f"wq{s}")
        for s in range(min(ns, 3)):
            rd(s)
        if mid:
            mid()
        for s in range(ns):
            a.wait_ds(f"wq{s}")
            for t in range(2):
                b = W + st*t + 4*s
                cin = "0" if s == 0 else vr(Dq+4*t, 4)
                if s < nf:
                    a(f"{MM} {vr(Dq+4*t,4)}, {vr(b,4)}, {vr(XB+4*s,4)}, {cin}")
                else:
                    a(f"v_mfma_f32_16x16x16_bf16 {vr(Dq+4*t,4)}, {vr(b,2)}, {vr(XB+4*nf,2)}, {cin}")
            if s + 3 < ns:
                rd(s + 3)
        self.merge(Dq, 2)
        return self.xpub(Dq, soff, "qst")

    def ga(self):
        a = self.a
        c = self.cfg
        pre_vm = list(a.vm)
        a.c("===== group A: absorbed query, then FFN / output projection roles =====")
        RA = 144 - c["qb"]
        a(f"""v_lshlrev_b32 v7, 5, {vG}
              v_lshlrev_b32 v8, 4, {vN}
              v_xor_b32 v7, v7, v8
              v_lshl_add_u32 v17, {vG}, 13, v7
              s_and_b32 s3, {sW}, 1
              s_lshl_b32 s3, s3, 7
              v_xor_b32 v13, s3, v17
              v_xor_b32 v14, 0x80, v13
              s_lshl_b32 s46, {sH}, 8
              s_mul_i32 s44, {sJ}, {144*8192}
              s_mul_i32 s3, {sW}, {RA//4*8192}
              s_add_u32 s44, s44, s3
              s_add_u32 s44, s44, s46
              s_mul_i32 s45, {sW}, {RA//4*256}
              s_add_u32 s45, s45, {WQL}
              s_lshl_b32 s48, {sH}, 13
              s_lshl_b32 s3, {sW}, 11
              s_add_u32 s48, s48, s3
              s_add_u32 s48, s48, {QF_OFF}
              s_lshl_b32 s3, {sJ}, 8
              s_add_u32 s49, s48, s3""")
        self.xaddr("v12", "v16")
        a("s_waitcnt lgkmcnt(0)")
        self.epoch_load()
        XS = 82
        def setup():
            self.lane_late()
            self.common_setup()
            a(f"""v_and_b32 v7, 1, {vN}
                  v_mul_u32_u24 v8, 1152, v7
                  v_lshl_add_u32 v81, {vG}, 3, v8
                  s_mul_i32 s3, {sJ}, 288
                  v_add_u32 v80, s3, v81
                  s_lshl_b32 s3, {sW}, 6
                  v_xor_b32 v10, s3, {vX78}
                  v_lshl_add_u32 v8, {vG}, 2, {vRR}
                  v_lshl_add_u32 v10, v8, 8, v10
                  v_add_u32 v78, {WQL}, v10
                  v_xor_b32 v79, 32, v78
                  v_lshlrev_b32 v8, 8, v7
                  v_lshl_add_u32 v8, {vG}, 4, v8
                  v_add_u32 v87, {QL}, v8
                  v_lshlrev_b32 v7, 15, v7
                  v_lshrrev_b32 v8, 1, {vN}
                  v_lshl_add_u32 v7, v8, 5, v7
                  v_lshl_add_u32 v7, {vG}, 3, v7
                  v_cmp_gt_u32 vcc, 8, {vN}
                  v_cndmask_b32 v88, {vOOB}, v7, vcc
                  v_lshrrev_b32 v7, 1, {vG}
                  v_and_b32 v8, 7, {vN}
                  v_xor_b32 v7, v7, v8
                  v_lshlrev_b32 v7, 5, v7
                  v_and_b32 v8, 1, {vG}
                  v_lshl_add_u32 v7, v8, 4, v7
                  v_lshl_add_u32 v7, {vN}, 8, v7
                  s_lshl_b32 s3, {sW}, 14
                  s_add_u32 s3, s3, {WUKL}
                  v_add_u32 {vr(XS)}, s3, v7
                  s_lshl_b32 s50, {sP}, 8
                  s_lshl_b32 s3, {sW}, 7
                  s_add_u32 s50, s50, s3
                  s_add_u32 s50, s50, {QA_OFF}
                  s_mov_b32 s51, 0x3e0293ee""")
            for s in range(1, 4):
                a(f"v_xor_b32 {vr(XS+s)}, {64*s}, {vr(XS)}")
            self.xlds_addr("v86", QL)
        def touch():
            if c["fast"]:
                a(f"v_lshlrev_b32 v7, 5, {vL}")
                a(f"buffer_load_dword v9, v7, {WS}, s48 offen sc1", "touch")
        l1, l2, l3 = a.newlab("Lw"), a.newlab("Lw"), a.newlab("Lw")
        a(f"s_cmp_eq_u32 {sW}, 0\ns_cbranch_scc0 {l1}")
        keep = list(a.vm)
        self.xload("v12", "v16")
        self.wq_issue(RA//16, "v13", "v14", "s44", "s45")
        touch()
        self.ts(1)
        setup()
        a.wait_vm("x")
        self.ts(2)
        self.ln("v12", "v16")
        self.ts(3)
        a.wait_vm("wq")
        a(f"s_branch {l2}")
        a.label(l1)
        a.vm = list(keep)
        self.wq_issue(RA//16, "v13", "v14", "s44", "s45")
        touch()
        a(f"""s_sub_u32 s3, {sW}, 1
              s_mul_i32 s3, s3, 11
              s_lshl_b32 s21, s3, 10
              s_add_u32 s21, s21, {WUKL}
              s_lshl_b32 s47, s3, 15
              s_add_u32 s47, s47, s46
              s_lshl_b32 s46, {sJ}, 20
              s_add_u32 s47, s47, s46
              s_and_b32 s3, s3, 1
              s_lshl_b32 s3, s3, 7
              v_xor_b32 v17, s3, v17
              v_xor_b32 v18, 0x80, v17""")
        for i in range(c["uk_ln"]):
            self.wuk(i)
        setup()
        for i in range(c["uk_ln"], 10):
            self.wuk(i)
        a.wait_vm("wq")
        a(f"s_cmp_eq_u32 {sW}, 3\ns_cbranch_scc1 {l2}")
        self.wuk(10)
        a.label(l2)
        self.srd(R1, 7, 576*9216)
        self.srd(R3, 8, 576*9216)
        self.srd(R2, 9, 4608*1152)
        a("s_mov_b32 s43, 0x20000\ns_waitcnt lgkmcnt(0)")
        self.ts(4)
        self.barrier()
        slow = self.p1a("v78", "v79", "v80", 112, 132, 168, RA//32, True, "s49", mid=self.tags_setup)
        self.ts(5)
        a(f"""v_and_b32 v7, 1, {vG}
              v_cmp_eq_u32 vcc, 0, v7
              v_mov_b32 v7, {sTK[0]}
              v_mov_b32 v8, {sTK[2]}
              v_cndmask_b32 v90, v8, v7, vcc
              v_mov_b32 v7, {sTK[1]}
              v_mov_b32 v8, {sTK[3]}
              v_cndmask_b32 v91, v8, v7, vcc""")
        QR, UK = 92, 0
        mk = lambda v: [f"buffer_load_dwordx4 {vr(QR+4*k,4)}, {v}, {WS}, s48 offen offset:{1024*k} sc1" for k in range(2 if c['qb'] else 1)]
        a(f"s_waitcnt vmcnt({1 + c['q_at'] if c['fast'] else 0})")
        for s in mk(vXI):
            a(s, "qp")
        a(f"s_waitcnt vmcnt({3 if c['qb'] else 2})")
        self.ts(10)
        self.barrier()
        sk1 = a.newlab("Lsk")
        a(f"s_cmp_ge_u32 {sW}, 2\ns_cbranch_scc1 {sk1}")
        for tt in range(4):
            for s in range(4):
                a(f"ds_read_b128 {ar(UK+16*tt+4*s,4)}, {vr(XS+s)} offset:{4096*tt}")
        a.label(sk1)
        self.poll2(mk, vXI, F(QR, 8 if c["qb"] else 4), "qp", slow, every=4)
        self.ts(11)
        self.cnt(13)
        if c["qb"]:
            a(f"v_pk_add_f32 {vr(QR,2)}, {vr(QR,2)}, {vr(QR+4,2)}\nv_pk_add_f32 {vr(QR+2,2)}, {vr(QR+2,2)}, {vr(QR+6,2)}")
        self.xsum(QR, "v86")
        self.barrier()
        sk2 = a.newlab("Lsk")
        a(f"s_cmp_ge_u32 {sW}, 2\ns_cbranch_scc1 {sk2}")
        for s in range(4):
            a(f"ds_read_b128 {vr(QR+4*s,4)}, v87 offset:{64*s}", ("q", s))
        D = 112
        for s in range(4):
            a.wait_ds(("q", s))
            for tt in range(4):
                cin = "0" if s == 0 else vr(D+4*tt, 4)
                a(f"{MM} {vr(D+4*tt,4)}, {ar(UK+16*tt+4*s,4)}, {vr(QR+4*s,4)}, {cin}")
        self.merge(D, 4)
        for k in range(4):
            a(f"v_mul_f32 {vr(D+k)}, s51, {vr(D+k)}")
        self.packb([vr(D), vr(D+1)], [(vr(D), vr(D+1)), (vr(D+2), vr(D+3))], ["v90", "v91"], [vr(D+4), vr(D+5)])
        a(f"buffer_store_dwordx2 {vr(D,2)}, v88, {WS}, s50 offen sc1")
        self.ts(12)
        a.label(sk2)
        a(f"s_cmp_lt_u32 {sA}, 12\ns_cbranch_scc0 L_ga_po")
        self.ff()
        a.label("L_ga_po")
        self.po()
        a.vm = pre_vm
        a.ds = []

    def ff(self):
        a = self.a
        c = self.cfg
        a.c("----- FF: gate/up partials (144 rows x 192 columns), activation, down projection (144 rows x 192 columns) -----")
        sCT, sKQ = "s13", sJ
        VO, VD = 150, 153
        a(f"""s_lshr_b32 {sCT}, {sA}, 2
              s_mul_i32 s48, {sKQ}, {144*9216}
              s_mul_i32 s3, {sX}, 1152
              s_add_u32 s48, s48, s3
              s_mul_i32 s14, {sCT}, 384
              s_add_u32 s48, s48, s14
              s_and_b32 s15, {sW}, 1
              s_mul_i32 s3, s15, {8*9216}
              s_add_u32 s50, s48, s3
              s_add_u32 s50, s50, {128*9216}
              s_mul_i32 s3, {sW}, {8*9216}
              s_add_u32 s48, s48, s3
              s_mul_i32 s49, {sW}, 3072
              s_add_u32 s49, s49, {FBASE}""")
        self.rows384_voffs(VO, 9216)
        D0 = 4*24576 + 12288
        ops = [("g", s, m, i) for s in range(4) for m in range(2) for i in range(3)] + [("h", 4, 0, i) for i in range(3)]
        ops += [("d", s, 0, i) for s in range(5) for i in range(3)]
        def issue(k):
            kind, s, m, i = ops[k]
            if c["nof"]:
                a(f"buffer_load_dword v9, {vOOB}, {R2}, 0 offen", ("st", k))
                return
            if kind == "g":
                if i == 0:
                    a(f"s_add_u32 m0, s49, {s*24576 + m*12288}")
                    if m == 0 and s > 0:
                        a(f"s_add_u32 s48, s48, {32*9216}")
                a(f"buffer_load_dwordx4 {vr(VO+i)}, {R1 if m==0 else R3}, s48 offen offset:{1024*i}{self.nt('nt_w')} lds", ("st", k))
            elif kind == "h":
                if i == 0:
                    a(f"s_add_u32 m0, s49, {4*24576}")
                a(f"buffer_load_dwordx4 {vr(VO+i)}, {R4}, s50 offen offset:{1024*i}{self.nt('nt_w')} lds", ("st", k))
            else:
                if i == 0:
                    if s < 4:
                        a(f"s_add_u32 m0, s49, {D0 + s*12288 if s < 3 else 0}")
                        if s:
                            a(f"s_add_u32 s51, s51, {32*1152}")
                    else:
                        a(f"s_add_u32 m0, s57, 12288")
                a(f"buffer_load_dwordx4 {vr(VD+i)}, {R2}, {'s51' if s < 4 else 's21'} offen offset:{1024*i}{self.nt('nt_w')} lds", ("st", k))
        XB = 160
        VT, vPS, vPA, vHW, vHR, vYS, VT2 = "v156", "v157", "v158", "v159", "v178", "v179", "v111"
        ACC = 180
        FR = 204
        PR = 24
        HB = 56
        mk = lambda v: [f"buffer_load_dwordx4 {vr(PR+4*k,4)}, {v}, {WS}, s{68+k if not c['ts'] else (44, 45, 46, 47, 4, 5, 10, 101)[k]} offen sc1".replace("s(", "s") for k in range(8)]
        SO = [f"s{68+k}" if not c["ts"] else f"s{(44, 45, 46, 47, 4, 5, 10, 101)[k]}" for k in range(8)]
        def setup():
            a(f"s_mul_i32 s3, {sKQ}, 288\nv_add_u32 v7, s3, v81")
            for s in range(4):
                a(f"ds_read2_b64 {vr(XB+4*s,4)}, v7 offset0:{8*s} offset1:{8*s+4}")
            a(f"ds_read_b64 {vr(XB+16,2)}, v7 offset:256")
            self.tile384_addr(VT, FBASE)
            self.rows384_voffs(VD, 1152)
            self.out3_addr(vPS, 128)
            self.out3_addr(vYS, 4096)
            a(f"""v_mov_b32 {VT2}, {VT}
                  s_cmp_lt_u32 {sW}, 2
                  s_cselect_b64 s[40:41], s[28:29], s[36:37]
                  s_mov_b32 s42, {576*9216}
                  s_lshl_b32 s56, {sX}, 2
                  s_add_u32 s56, s56, {sKQ}
                  s_mul_i32 s51, s56, {144*1152}
                  s_add_u32 s51, s51, s14
                  s_mul_i32 s3, s15, {8*1152}
                  s_add_u32 s21, s51, s3
                  s_add_u32 s21, s21, {128*1152}
                  s_mul_i32 s3, {sW}, {8*1152}
                  s_add_u32 s51, s51, s3
                  s_mul_i32 s57, s15, 3072
                  s_add_u32 s57, s57, {FBASE}
                  s_mul_i32 s52, s56, {2*4608}
                  s_mul_i32 s3, {sCT}, {12*128}
                  s_add_u32 s52, s52, s3
                  s_lshl_b32 s3, {sW}, 7
                  s_add_u32 s52, s52, s3
                  s_add_u32 s52, s52, {PF_OFF}
                  s_add_u32 s53, s52, 4608
                  s_add_u32 s54, s52, {SLOW}
                  s_add_u32 s55, s53, {SLOW}
                  s_lshl_b32 s56, s56, 7
                  s_mul_i32 s3, {sCT}, {12*4096}
                  s_add_u32 s56, s56, s3
                  s_lshl_b32 s3, {sW}, 12
                  s_add_u32 s56, s56, s3
                  s_add_u32 s56, s56, {YP_OFF}
                  v_lshrrev_b32 v7, 3, {vL}
                  v_lshl_add_u32 v7, v7, 2, {sW}
                  v_mov_b32 v8, {sW}
                  v_cmp_gt_u32 vcc, 9, v7
                  v_cndmask_b32 v7, v8, v7, vcc
                  v_and_b32 v8, 7, {vL}
                  v_lshlrev_b32 v8, 4, v8
                  v_lshl_add_u32 {vPA}, v7, 7, v8
                  v_bfe_u32 v8, {vL}, 2, 1
                  v_mul_u32_u24 v8, 320, v8
                  v_lshl_add_u32 v8, v7, 5, v8
                  v_add_u32 v8, v8, {vCC8}
                  v_add_u32 {vHW}, {QL}, v8
                  v_and_b32 v7, 1, {vN}
                  v_mul_u32_u24 v7, 320, v7
                  v_lshl_add_u32 v7, {vG}, 3, v7
                  v_add_u32 {vHR}, {QL}, v7
                  s_mul_i32 {SO[0]}, {sX}, {8*4608}
                  s_mul_i32 s3, {sKQ}, {9*128}
                  s_add_u32 {SO[0]}, {SO[0]}, s3
                  s_add_u32 {SO[0]}, {SO[0]}, {PF_OFF}
                  v_mov_b32 v232, 0xbdd2d3e8
                  v_mov_b32 v233, 0xbdd2d3e8
                  v_mov_b32 v234, 0xc0135761
                  v_mov_b32 v235, 0xc0135761""")
            for k in range(1, 8):
                a(f"s_add_u32 {SO[k]}, {SO[0]}, {4608*k}")
        pslow = "\n".join(f"buffer_store_dwordx4 {vr(ACC+12*m,4)}, {vPS}, {WS}, s{(54 if c['fast'] else 52)+m} offen sc1" for m in range(2))
        def touch():
            if c["fast"]:
                for k in range(8):
                    a(f"buffer_load_dword v9, {vPA}, {WS}, {SO[k]} offen sc1", "touch")
        def compute(s):
            a.wait_vm(("st", 6*s+5 if s < 4 else 26))
            self.barrier()
            for m in range(2):
                for u in range(3):
                    if s < 4:
                        for hh in range(2):
                            a(f"ds_read_b64_tr_b16 {vr(FR+12*m+4*u+2*hh,2)}, {VT} offset:{(s&1)*24576+m*12288+hh*6144+u*128}", ("f", m, u))
                    else:
                        a(f"ds_read_b64_tr_b16 {vr(FR+12*m+4*u,2)}, {VT} offset:{m*6144+u*128}", ("f", m, u))
            if s in (1, 3):
                a(f"v_add_u32 {VT}, {2*24576}, {VT}")
            def mm(m, u):
                d = ACC + 12*m + 4*u
                a.wait_ds(("f", m, u))
                if s < 4:
                    a(f"{MM} {vr(d,4)}, {vr(FR+12*m+4*u,4)}, {vr(XB+4*s,4)}, {'0' if s == 0 else vr(d,4)}")
                else:
                    a(f"v_mfma_f32_16x16x16_bf16 {vr(d,4)}, {vr(FR+12*m+4*u,2)}, {vr(XB+16,2)}, {vr(d,4)}")
            for m in range(2):
                for u in range(3):
                    if s < 4:
                        self.q += ([lambda: None] * 3 if m + u == 0 else []) + [lambda m=m, u=u: mm(m, u)]
                    else:
                        mm(m, u)
            if s == 4:
                self.ts(7)
                for m in range(2):
                    d = ACC + 12*m
                    self.merge(d, 3)
                    self.tagf(d, 4)
                    if c["fast"]:
                        a(f"buffer_store_dwordx4 {vr(d,4)}, {vPS}, {WS}, s{52+m} offen")
                if not (c["fast"] and c["pre_late"]) and not c["noslow"] & 2:
                    a(pslow)
                self.ts(8)
        d1, sw, d2 = c["f_d1"], c["f_sw"], c["f_d2"]
        hooks = {c["f_pre"]: [self.barrier]}
        hooks.setdefault(min(d1, 12), []).append(setup)
        hooks.setdefault(c["f_touch"], []).append(touch)
        for s in range(5):
            n = 6*(s+1) if s < 4 else 27
            k = min(n + min(c['f_lag'], d1 if n + d1 < sw else d2), 42)
            assert s > 1 or k <= 36
            hooks.setdefault(k, []).append(lambda s=s: compute(s))
        self.stream(42, d1, sw, d2, issue, hooks, dip=(c['dip0'], c['dip1'], c['dipd']))
        def dread(steps):
            for s in steps:
                for u in range(3):
                    for hh in range(2 if s < 4 else 1):
                        if s < 3:
                            a(f"ds_read_b64_tr_b16 {ar(12*s+4*u+2*hh,2)}, {VT} offset:{12288+s*12288+hh*6144+u*128}")
                        else:
                            a(f"ds_read_b64_tr_b16 {ar(12*s+4*u+2*hh,2)}, {VT2} offset:{(s-3)*12288+hh*6144+u*128}")
        if c["ff_tail"]:
            a.wait_vm(("st", 35))
            self.barrier()
            dread((0, 1, 2))
        a.wait_vm(("st", 41 - c["hp_at"]))
        for s in mk(vPA):
            a(s, "hp")
        if not c["ff_tail"]:
            a.wait_vm(("st", 41))
            self.ts(6)
            self.barrier()
            dread((3, 4, 0, 1, 2))
        self.poll2(mk, vPA, F(PR, 32), "hp", pslow if c["pre_late"] else None, every=8)
        self.ts(9)
        self.cnt(14)
        G, U, T = PR, PR+4, PR+8
        for k in range(4):
            a(f"v_pk_add_f32 {vr(PR+2*k,2)}, {vr(PR+2*k,2)}, {vr(PR+8+2*k,2)}\nv_pk_add_f32 {vr(PR+16+2*k,2)}, {vr(PR+16+2*k,2)}, {vr(PR+24+2*k,2)}")
        for k in range(4):
            a(f"v_pk_add_f32 {vr(PR+2*k,2)}, {vr(PR+2*k,2)}, {vr(PR+16+2*k,2)}")
        for k in range(4):
            a(f"v_cvt_pk_bf16_f32 {vr(T+k)}, {vr(PR+2*k)}, {vr(PR+2*k+1)}")
        for k in range(4):
            a(f"v_lshlrev_b32 {vr(PR+2*k)}, 16, {vr(T+k)}\nv_and_b32 {vr(PR+2*k+1)}, 0xffff0000, {vr(T+k)}")
        for k in range(2):
            a(f"v_pk_mul_f32 {vr(T+2*k,2)}, {vr(G+2*k,2)}, {vr(G+2*k,2)}")
        for k in range(2):
            a(f"v_pk_fma_f32 {vr(T+2*k,2)}, {vr(T+2*k,2)}, v[232:233], v[234:235]")
        for k in range(2):
            a(f"v_pk_mul_f32 {vr(T+2*k,2)}, {vr(T+2*k,2)}, {vr(G+2*k,2)}")
        for k in range(4):
            a(f"v_exp_f32 {vr(T+k)}, {vr(T+k)}")
        for k in range(4):
            a(f"v_add_f32 {vr(T+k)}, 1.0, {vr(T+k)}")
        for k in range(4):
            a(f"v_rcp_f32 {vr(T+k)}, {vr(T+k)}")
        for k in range(2):
            a(f"v_pk_mul_f32 {vr(T+2*k,2)}, {vr(T+2*k,2)}, {vr(G+2*k,2)}")
        for k in range(2):
            a(f"v_cvt_pk_bf16_f32 {vr(T+4+k)}, {vr(T+2*k)}, {vr(T+2*k+1)}")
        for k in range(2):
            a(f"v_lshlrev_b32 {vr(T+2*k)}, 16, {vr(T+4+k)}\nv_and_b32 {vr(T+2*k+1)}, 0xffff0000, {vr(T+4+k)}")
        for k in range(2):
            a(f"v_pk_mul_f32 {vr(T+2*k,2)}, {vr(T+2*k,2)}, {vr(U+2*k,2)}")
        for k in range(2):
            a(f"v_cvt_pk_bf16_f32 {vr(T+4+k)}, {vr(T+2*k)}, {vr(T+2*k+1)}")
        a(f"ds_write_b64 {vHW}, {vr(T+4,2)}\ns_waitcnt lgkmcnt(0)")
        self.barrier()
        for s in range(4):
            a(f"ds_read2_b64 {vr(HB+4*s,4)}, {vHR} offset0:{8*s} offset1:{8*s+4}", ("hb", s))
            if c["ff_tail"] and s == 2:
                dread((3,))
        if c["ff_tail"]:
            dread((4,))
        a(f"ds_read_b64 {vr(HB+16,2)}, {vHR} offset:256", ("hb", 4))
        Y = 204
        for s in range(5):
            a.wait_ds(("hb", s))
            for u in range(3):
                if s < 4:
                    a(f"{MM} {vr(Y+4*u,4)}, {ar(12*s+4*u,4)}, {vr(HB+4*s,4)}, {'0' if s == 0 else vr(Y+4*u,4)}")
                else:
                    a(f"v_mfma_f32_16x16x16_bf16 {vr(Y+4*u,4)}, {ar(12*s+4*u,2)}, {vr(HB+16,2)}, {vr(Y+4*u,4)}")
        self.merge(Y, 3)
        self.tagf(Y, 4)
        a(f"buffer_store_dwordx4 {vr(Y,4)}, {vYS}, {WS}, s56 offen sc1")
        if c["fast"] and c["pre_late"] and not c["noslow"] & 2:
            a(pslow)
        self.end()

    def po(self):
        a = self.a
        c = self.cfg
        a.c("----- PO: output projection of one head -----")
        VO = 150
        self.srd(R1, 5, 4096*1152)
        a(f"""s_lshl_b32 s13, {sX}, 2
              s_add_u32 s13, s13, {sJ}
              s_mul_i32 s48, s13, {128*1152}
              s_mul_i32 s49, {sW}, 9216
              s_add_u32 s48, s48, s49
              s_add_u32 s49, s49, {FBASE}""")
        self.rows1152_voffs(VO)
        a("s_waitcnt lgkmcnt(0)")
        self.barrier()
        def issue(k):
            s, i = divmod(k, 9)
            if i % 4 == 0:
                a(f"s_add_u32 m0, s49, {s*36864 + i*1024}")
            if i == 0 and s:
                a(f"s_add_u32 s48, s48, 36864")
            a(f"buffer_load_dwordx4 {vr(VO+i)}, {R1}, s48 offen offset:{1024*(i&3)}{self.nt('nt_w')} lds", ("st", k))
        VT, vSS, vCW, vCR = "v160", "v161", "v162", "v163"
        CR = 24
        mk = lambda v: [f"buffer_load_dwordx4 {vr(CR,4)}, {v}, {WS}, s50 offen sc1"]
        def setup():
            self.tile384_addr(VT, FBASE, 1152)
            self.out3_addr(vSS, 4096)
            self.xlds_addr(vCW, QL)
            a(f"""v_and_b32 v7, 1, {vN}
                  v_lshlrev_b32 v7, 8, v7
                  v_lshl_add_u32 v7, {vG}, 3, v7
                  v_add_u32 {vCR}, {QL}, v7
                  s_lshl_b32 s50, s13, 12
                  s_lshl_b32 s3, {sW}, 10
                  s_add_u32 s50, s50, s3
                  s_add_u32 s50, s50, {CF_OFF}
                  s_lshl_b32 s52, {sW}, 12
                  s_lshl_b32 s3, s13, 7
                  s_add_u32 s52, s52, s3
                  s_add_u32 s52, s52, {SP_OFF}
                  s_add_u32 s53, s52, {12*4096}
                  s_add_u32 s54, s52, {24*4096}""")
            if c["fast"]:
                a(f"buffer_load_dword v9, {vL16}, {WS}, s50 offen sc1", "touch")
        def pre(s):
            a.wait_vm(("st", 9*s+8))
            self.barrier()
            for u in range(9):
                for hh in range(2):
                    a(f"ds_read_b64_tr_b16 {ar(36*s+4*u+2*hh,2)}, {VT} offset:{hh*16*1152+u*128}")
            if s < 3:
                a(f"v_add_u32 {VT}, 36864, {VT}")
        d1, sw, d2 = c["o_d1"], c["o_sw"], c["o_d2"]
        hooks = {min(d1, 12): [setup]}
        for s in range(3):
            k = min(9*(s+1) + min(c["f_lag"], d1 if 9*(s+1) + d1 < sw else d2), 36)
            hooks.setdefault(k, []).append(lambda s=s: pre(s))
        self.stream(36, d1, sw, d2, issue, hooks)
        pre(3)
        self.ts(6)
        a(mk(vXI)[0], "cxp")
        self.poll2(mk, vXI, F(CR, 4), "cxp", every=16)
        self.ts(9)
        self.xsum(CR, vCW)
        self.barrier()
        for s in range(4):
            a(f"ds_read2_b64 {vr(CR+4*s,4)}, {vCR} offset0:{8*s} offset1:{8*s+4}", ("cb", s))
        D = 176
        fill = []
        for q in range(3):
            for s in range(4):
                if q == 0:
                    a.wait_ds(("cb", s))
                for u in range(3*q, 3*q+3):
                    a(f"{MM} {vr(D+4*u,4)}, {ar(36*s+4*u,4)}, {vr(CR+4*s,4)}, {'0' if s == 0 else vr(D+4*u,4)}")
                    if s >= 1:
                        for _ in range(2):
                            if fill:
                                a(fill.pop(0))
            d = D + 12*q
            fill = [f"v_cndmask_b32 {vr(d+k)}, {vr(d+k)}, {vr(d+4+k)}, {M2}" for k in range(4)]
            fill += [f"v_cndmask_b32 {vr(d+k)}, {vr(d+k)}, {vr(d+8+k)}, {M4}" for k in range(4)]
            fill += [f"v_and_or_b32 {vr(d+k)}, {vr(d+k)}, {vMF}, {vTB[k]}" for k in range(4)]
            fill += [f"buffer_store_dwordx4 {vr(d,4)}, {vSS}, {WS}, s{52+q} offen sc1"]
        for ins in fill:
            a(ins)
        self.end()

    def final(self):
        a = self.a
        a.c("----- final: one wave reduces the partials of one 16-column tile -----")
        S, Y, T = 128, 144, 160
        a(f"""s_lshl_b32 s44, s56, 12
              s_add_u32 s45, s44, {YP_OFF}
              s_add_u32 s44, s44, {SP_OFF}""")
        if self.cfg["fin4"]:
            a(f"""s_lshl_b32 s3, {sW}, 10
                  s_add_u32 s44, s44, s3
                  s_add_u32 s45, s45, s3
                  s_add_u32 s3, s3, {PB}
                  v_add_u32 v10, s3, {vL16}
                  v_add_u32 v11, {PB}, {vL16}""")
            gs = [([f"buffer_load_dwordx4 {vr(S,4)}, {vL16}, {WS}, s44 offen sc1"], F(S, 4))]
            gy = [([f"buffer_load_dwordx4 {vr(Y,4)}, {vL16}, {WS}, s45 offen sc1"], F(Y, 4))]
            self.poll(gs + gy, "v7", "fs")
            for k in range(4):
                a(f"v_permlane32_swap_b32 {vr(S+k)}, {vr(Y+k)}")
            a(f"v_pk_add_f32 {vr(S,2)}, {vr(S,2)}, {vr(Y,2)}\nv_pk_add_f32 {vr(S+2,2)}, {vr(S+2,2)}, {vr(Y+2,2)}")
            a(f"ds_write_b128 v10, {vr(S,4)}\ns_waitcnt lgkmcnt(0)")
            self.barrier()
            a(f"s_cmp_eq_u32 {sW}, 0\ns_cbranch_scc0 L_gb_exit")
            for k in range(1, 4):
                a(f"ds_read_b128 {vr(S+4*k,4)}, v11 offset:{1024*k}")
            self.ts(13)
            a("s_waitcnt lgkmcnt(0)")
            a(f"""v_pk_add_f32 {vr(S,2)}, {vr(S,2)}, {vr(S+4,2)}
                  v_pk_add_f32 {vr(S+8,2)}, {vr(S+8,2)}, {vr(S+12,2)}
                  v_pk_add_f32 {vr(S+2,2)}, {vr(S+2,2)}, {vr(S+6,2)}
                  v_pk_add_f32 {vr(S+10,2)}, {vr(S+10,2)}, {vr(S+14,2)}
                  v_pk_add_f32 {vr(S,2)}, {vr(S,2)}, {vr(S+8,2)}
                  v_pk_add_f32 {vr(S+2,2)}, {vr(S+2,2)}, {vr(S+10,2)}""")
        else:
            gs = [([f"buffer_load_dwordx4 {vr(S+4*i,4)}, {vL16}, {WS}, s44 offen offset:{1024*i} sc1"], F(S+4*i, 4)) for i in range(4)]
            gy = [([f"buffer_load_dwordx4 {vr(Y+4*i,4)}, {vL16}, {WS}, s45 offen offset:{1024*i} sc1"], F(Y+4*i, 4)) for i in range(4)]
            self.poll(gs + gy, "v7", "fs")
            self.ts(13)
            for b in (S, Y):
                for i in (0, 2):
                    a(f"v_pk_add_f32 {vr(b+4*i,2)}, {vr(b+4*i,2)}, {vr(b+4*i+4,2)}\nv_pk_add_f32 {vr(b+4*i+2,2)}, {vr(b+4*i+2,2)}, {vr(b+4*i+6,2)}")
            for b in (S, Y):
                a(f"v_pk_add_f32 {vr(b,2)}, {vr(b,2)}, {vr(b+8,2)}\nv_pk_add_f32 {vr(b+2,2)}, {vr(b+2,2)}, {vr(b+10,2)}")
            for k in range(4):
                a(f"v_permlane32_swap_b32 {vr(S+k)}, {vr(Y+k)}")
            a(f"v_pk_add_f32 {vr(S,2)}, {vr(S,2)}, {vr(Y,2)}\nv_pk_add_f32 {vr(S+2,2)}, {vr(S+2,2)}, {vr(Y+2,2)}")
        for k in range(2):
            a(f"v_permlane16_swap_b32 {vr(S+k)}, {vr(S+2+k)}")
        a(f"v_pk_add_f32 {vr(S,2)}, {vr(S,2)}, {vr(S+2,2)}")
        for k in range(2):
            a(f"v_add_f32_dpp {vr(S+k)}, {vr(S+k)}, {vr(S+k)} row_ror:8 row_mask:0xf bank_mask:0xf")
        a(f"v_cvt_pk_bf16_f32 {vr(T)}, {vr(S)}, {vr(S+1)}\nv_mov_b32 {vr(T+1)}, {vr(T)}\nv_permlane32_swap_b32 {vr(T)}, {vr(T+1)}")
        a(f"""v_lshlrev_b32 {vr(Y)}, 16, {vr(T+1)}
              v_and_b32 {vr(Y+1)}, 0xffff0000, {vr(T+1)}
              v_mul_f32 {vr(S+2)}, 0xbfb8aa3b, {vr(Y)}
              v_mul_f32 {vr(S+3)}, 0xbfb8aa3b, {vr(Y+1)}
              v_exp_f32 {vr(S+2)}, {vr(S+2)}
              v_exp_f32 {vr(S+3)}, {vr(S+3)}
              v_lshlrev_b32 {vr(S)}, 16, {vr(T)}
              v_and_b32 {vr(S+1)}, 0xffff0000, {vr(T)}
              v_add_f32 {vr(S+2)}, 1.0, {vr(S+2)}
              v_add_f32 {vr(S+3)}, 1.0, {vr(S+3)}
              v_rcp_f32 {vr(S+2)}, {vr(S+2)}
              v_rcp_f32 {vr(S+3)}, {vr(S+3)}
              v_and_b32 v7, 1, {vG}
              v_cmp_ne_u32 vcc, 0, v7
              v_mul_f32 {vr(Y)}, {vr(Y)}, {vr(S+2)}
              v_mul_f32 {vr(Y+1)}, {vr(Y+1)}, {vr(S+3)}
              v_cndmask_b32 v242, v242, v243, vcc
              v_cvt_pk_bf16_f32 {vr(T)}, {vr(Y)}, {vr(Y+1)}
              v_lshl_add_u32 v240, v7, 2, v240
              v_lshlrev_b32 {vr(Y)}, 16, {vr(T)}
              v_and_b32 {vr(Y+1)}, 0xffff0000, {vr(T)}
              v_mul_f32 {vr(Y)}, {vr(Y)}, {vr(S)}
              v_mul_f32 {vr(Y+1)}, {vr(Y+1)}, {vr(S+1)}
              v_lshlrev_b32 {vr(S)}, 16, v242
              v_cvt_pk_bf16_f32 {vr(T)}, {vr(Y)}, {vr(Y+1)}
              v_and_b32 {vr(S+1)}, 0xffff0000, v242
              v_lshlrev_b32 {vr(Y)}, 16, {vr(T)}
              v_and_b32 {vr(Y+1)}, 0xffff0000, {vr(T)}
              v_add_f32 {vr(Y)}, {vr(Y)}, {vr(S)}
              v_add_f32 {vr(Y+1)}, {vr(Y+1)}, {vr(S+1)}""")
        if self.cfg["bias"]:
            import struct
            a(f"v_add_f32 {vr(Y)}, {hex(struct.unpack('<I', struct.pack('<f', self.cfg['bias'] * 1e-4))[0])}, {vr(Y)}")
        a(f"""v_cvt_pk_bf16_f32 {vr(T)}, {vr(Y)}, {vr(Y+1)}
              s_mov_b64 exec, 0x00ff00ff""")
        a(f"buffer_store_dword {vr(T)}, v240, {R1}, 0 offen{' sc1' if self.cfg['out_sc'] else ''}")
        if self.cfg["dbgts"]:
            a("""s_memrealtime s[66:67]
                 s_waitcnt lgkmcnt(0)
                 s_sub_u32 s66, s66, s64
                 s_and_b32 s64, s64, 0xffff
                 s_lshl_b32 s64, s64, 16
                 s_or_b32 s66, s66, s64
                 s_lshr_b32 s3, s56, 1
                 s_lshl_b32 s3, s3, 2
                 v_mov_b32 v7, s3
                 v_mov_b32 v8, s66
                 s_mov_b64 exec, 1""")
            a("buffer_store_dword v8, v7, s[92:95], 0 offen")
        if not self.cfg["ep_early"]:
            a("s_cmp_eq_u32 s56, 0\ns_cbranch_scc0 L_gb_exit")
            a(f"s_mov_b64 exec, 1\nv_mov_b32 v7, {EP_OFF}\nv_mov_b32 v10, {sT4}\nv_mov_b32 v11, {sT}")
            a(f"buffer_store_dwordx2 v[10:11], v7, {WS}, 0 offen sc1")

    def gb(self):
        a = self.a
        c = self.cfg
        a.label("L_GB")
        if c["nob"]:
            a("s_waitcnt lgkmcnt(0)")
            self.end()
        a.c("===== group B: attention core, value/out projections =====")
        if c["uv_pos"] == 3:
            self.srd(R4, 4, 512*8192)
        sB, sKT, sHG = "s13", "s14", "s15"
        vA, vB = "v12", "v13"
        VK = 16
        a(f"""s_lshr_b32 s3, {sP}, 1
              s_lshl_b32 s46, s3, 17
              s_lshr_b32 {sB}, s3, 5
              s_and_b32 {sKT}, s3, 31
              s_and_b32 {sHG}, {sA}, 1
              s_lshl_b32 s45, {sW}, 15
              s_lshl_b32 s3, {sW}, {12 if c['kint'] else 15}
              s_add_u32 s46, s46, s3
              s_lshl_b32 s54, {sB}, 22
              s_lshl_b32 s55, {sKT}, {10 + max(c['kint'] - 3, 0)}
              s_add_u32 s55, s55, s54
              s_add_u32 s54, s54, s3
              s_lshl_b32 s3, {sW}, {15 + max(c['kint'] - 3, 0)}
              s_add_u32 s55, s55, s3
              v_lshlrev_b32 v7, 5, {vG}
              v_lshlrev_b32 v8, 4, {vN}
              v_xor_b32 v7, v7, v8
              v_lshl_add_u32 v120, {vG}, 13, v7
              v_xor_b32 v121, 0x80, v120
              s_mul_i32 s52, {sJ}, {144*8192}
              s_mul_i32 s3, {sW}, {c['qb']//4*8192}
              s_add_u32 s52, s52, s3
              s_lshl_b32 s3, {sH}, 8
              s_add_u32 s52, s52, s3
              s_add_u32 s52, s52, {(144-c['qb'])*8192}
              s_mul_i32 s53, {sW}, {c['qb']//4*256}
              s_add_u32 s53, s53, {WQB}""")
        self.xaddr("v126", "v127")
        a("s_waitcnt lgkmcnt(0)")
        self.epoch_load()
        if c["qb"]:
            a(f"s_cmp_eq_u32 {sW}, 0\ns_cselect_b32 s26, s26, 0")
            self.xload("v126", "v127")
            a("s_movk_i32 s26, 2304")
            self.wq_issue(c["qb"]//16, "v120", "v121", "s52", "s53")
        UVV = 40
        if c["uv_pos"] == 3:
            a(f"""s_lshl_b32 s44, {sJ}, 20
                  s_lshl_b32 s3, {sW}, 18
                  s_add_u32 s44, s44, s3
                  s_lshl_b32 s3, {sH}, 8
                  s_add_u32 s44, s44, s3
                  s_lshl_b32 s3, {sW}, 6
                  v_lshlrev_b32 v8, 4, {vN}
                  v_xor_b32 v7, s3, v8
                  v_lshl_add_u32 {vA}, {vG}, 13, v7
                  v_xor_b32 {vB}, 32, {vA}""")
            for i in range(8):
                a(f"s_add_u32 m0, s45, {0x4000 + i*1024}")
                if i:
                    a(f"s_add_u32 s44, s44, {4*8192}")
                a(f"buffer_load_dwordx4 {vA if i<4 else vB}, {R4}, s44 offen{self.nt('nt_w')} lds", ("uv", i))
        for k in range(8):
            a(f"v_xor_b32 {vr(VK+k)}, {32*k}, {vL16}")
        def key(i, force=False):
            if c["kint"] >= 3:
                g = c["kint"] - 3
                j = i & ((1 << g) - 1)
                if j == 0 or force:
                    a(f"s_add_u32 m0, s45, {CKV + (i-j)*1024}\ns_add_u32 s47, s55, {(i >> g) << (17 + g)}")
                a(f"buffer_load_dwordx4 {vr(VK+(i&7))}, {R3}, s47 offen offset:{j*1024}{self.nt('nt_ckv')} lds", ("st", i))
                return
            if (i % 4 == 0 or force) and c["kint"] == 2:
                a(f"""s_add_u32 s47, {sKT}, {2*(i&28)}
                      s_and_b32 s47, s47, 31
                      s_lshl_b32 s47, s47, 14
                      s_add_u32 s47, s47, s54
                      s_add_u32 m0, s45, {CKV + (i&28)*1024}
                      s_add_u32 s47, s47, {(i>>2) << 19}""")
            elif i % 4 == 0 or force:
                a(f"s_add_u32 m0, s45, {CKV + (i&28)*1024}\ns_add_u32 s47, s46, {(i&28)*(4096 if c['kint'] else 1024)}")
            a(f"buffer_load_dwordx4 {vr(VK+(i&7))}, {R3}, s47 offen offset:{(i&3)*1024}{self.nt('nt_ckv')} lds", ("st", i))
        def p1a():
            a.wait_vm("wq")
            a("s_waitcnt lgkmcnt(0)")
            self.ts(4)
            self.barrier()
            slow = self.p1a("v116", "v117", "v118", 128, 140, 160, c["qb"]//32, False, "s10", mid=self.tags_setup)
            if slow and not c["noslow"] & 1:
                a(slow, "qst")
            self.ts(5)
        SA, QB, PV, VO = 80, 84, 88, 116
        def setup1():
            self.ts(1)
            if c["uv_pos"] != 3:
                self.srd(R4, 4, 512*8192)
            self.srd(R1, 10, 2304)
            if c["l2pf"]:
                lo, ld = a.newlab("Lpf"), a.newlab("Lpf")
                a(f"""s_lshl_b32 s3, {sA}, 2
                      s_add_u32 s3, s3, {sW}
                      s_cmp_lt_u32 s3, 45
                      s_cbranch_scc0 {lo}""")
                for slot, first, n, magic, step, row0 in ((9, 0, 720, 5826, 1296, 576), (5, 45, 288, 14564, 1152, 864)):
                    a(f"""s_load_dwordx2 s[74:75], s[0:1], {slot*8}
                          s_sub_u32 s3, s3, {first}
                          v_lshl_add_u32 v7, s3, 6, {vL}
                          v_min_u32 v7, {4*n-1}, v7
                          v_mul_u32_u24 v8, {magic}, v7
                          v_lshrrev_b32 v8, 22, v8
                          v_mul_u32_u24 v8, {step-n}, v8
                          s_mul_i32 s3, {sX}, {4*step}
                          s_add_u32 s3, s3, {row0}
                          v_add3_u32 v7, v7, v8, s3
                          v_lshlrev_b32 v119, 7, v7""")
                    if slot == 9:
                        a(f"s_branch {ld}")
                        a.label(lo)
                a.label(ld)
            self.lane_late()
            self.common_setup()
            a(f"""s_lshl_b32 s44, {sJ}, 20
                  s_lshl_b32 s3, {sW}, 18
                  s_add_u32 s44, s44, s3
                  s_lshl_b32 s3, {sH}, 8
                  s_add_u32 s44, s44, s3
                  s_lshl_b32 s3, {sW}, 6
                  v_lshlrev_b32 v8, 4, {vN}
                  v_xor_b32 v7, s3, v8
                  v_lshl_add_u32 {vA}, {vG}, 13, v7
                  v_xor_b32 {vB}, 32, {vA}
                  v_xor_b32 v7, s3, {vX78}
                  v_lshl_add_u32 v8, {vG}, 2, {vRR}
                  v_lshl_add_u32 v7, v8, 8, v7
                  v_add_u32 v116, {WQB}, v7
                  v_xor_b32 v117, 32, v116
                  v_and_b32 v7, 1, {vN}
                  v_mul_u32_u24 v8, 1152, v7
                  v_lshl_add_u32 v7, {vG}, 3, v8
                  s_mul_i32 s3, {sJ}, 288
                  s_add_u32 s3, s3, {XNB + 2*(144-c['qb'])}
                  v_add_u32 v118, s3, v7
                  v_lshrrev_b32 v7, 1, {vG}
                  v_and_b32 v8, 7, {vN}
                  v_xor_b32 v7, v7, v8
                  v_lshlrev_b32 v7, 5, v7
                  v_and_b32 v8, 1, {vG}
                  v_lshl_add_u32 v7, v8, 4, v7
                  v_lshl_add_u32 v7, {vN}, 10, v7
                  v_add_u32 {vr(SA)}, s45, v7
                  v_add_u32 {vr(QB)}, {QAL}, v7""")
            for s in range(1, 4):
                a(f"v_xor_b32 {vr(SA+s)}, {64*s}, {vr(SA)}\nv_xor_b32 {vr(QB+s)}, {64*s}, {vr(QB)}")
            a(f"""v_lshl_add_u32 v8, {vG}, 2, {vRR}
                  v_lshl_add_u32 v7, v8, 10, {vX78}
                  s_lshl_b32 s3, {sW}, 8
                  v_add_u32 {vr(PV)}, s3, v7""")
            for t in range(1, 8):
                a(f"v_xor_b32 {vr(PV+t)}, {32*t}, {vr(PV)}")
            a(f"""s_and_b32 s3, {sW}, 1
                  s_lshl_b32 s3, s3, 7
                  v_xor_b32 v7, s3, {vL16}
                  s_lshl_b32 s3, {sW}, 12
                  s_add_u32 s3, s3, {QAL}
                  v_add_u32 v100, s3, v7""")
            for i in range(1, 4):
                a(f"v_xor_b32 {vr(100+i)}, {32*i}, v100")
            a(f"""s_lshl_b32 s3, {sW}, 2
                  s_add_u32 s3, s3, {MX}
                  v_lshl_add_u32 v104, {vN}, 4, s3
                  v_lshlrev_b32 v105, 4, {vN}
                  v_lshrrev_b32 v8, 4, v0
                  v_cmp_eq_u32 vcc, v8, {vRR}
                  v_cndmask_b32 v109, {vOOB}, v105, vcc
                  v_add_u32 v105, {MX}, v105
                  s_lshl_b32 s3, {sW}, 10
                  s_add_u32 s3, s3, {PB}
                  v_add_u32 v106, s3, {vL16}
                  v_add_u32 v107, {PB}, {vL16}
                  v_lshlrev_b32 v7, 18, {vG}
                  v_lshl_add_u32 v108, {vN}, 4, v7
                  s_lshl_b32 s56, {sP}, 8
                  s_add_u32 s56, s56, {ML_OFF}
                  s_lshl_b32 s48, {sB}, 15
                  s_lshl_b32 s3, {sHG}, 14
                  s_add_u32 s48, s48, s3
                  s_lshl_b32 s3, {sW}, 12
                  s_add_u32 s48, s48, s3
                  s_add_u32 s48, s48, {QA_OFF}
                  s_lshl_b32 s57, {sHG}, 10
                  s_lshl_b32 s3, {sW}, 8
                  s_add_u32 s57, s57, s3
                  s_lshr_b32 s3, {sP}, 1
                  s_lshl_b32 s3, s3, 2
                  s_add_u32 s57, s57, s3
                  s_add_u32 s57, s57, {FL_OFF}
                  v_cmp_eq_u32 vcc, 0, {vL}
                  v_cndmask_b32 v99, {vOOB}, {vL}, vcc
                  v_mov_b32 v112, 0x3f803f80
                  v_mov_b32 v113, 0x3f803f80
                  v_mov_b32 v114, 0x3f803f80
                  v_mov_b32 v115, 0x3f803f80""")
            a(f"""s_lshl_b32 s51, {sW}, 13
                  s_add_u32 s51, s51, {WUVL}
                  s_lshl_b32 s49, {sH}, 12
                  s_lshl_b32 s3, {sW}, 10
                  s_add_u32 s49, s49, s3
                  s_add_u32 s49, s49, {CF_OFF}
                  s_lshl_b32 s3, {sJ}, 8
                  s_add_u32 s50, s49, s3
                  s_lshl_b32 s10, {sH}, 13
                  s_lshl_b32 s4, {sW}, 11
                  s_add_u32 s10, s10, s4
                  s_add_u32 s10, s10, s3
                  s_add_u32 s10, s10, {QF_OFF + 1024}""")
        n0 = c["gb_0"]
        for i in range(n0):
            key(i)
        setup1()
        nq = c["gb_q"]
        assert n0 <= nq <= 15
        if c["qb"]:
            l1, l2 = a.newlab("Lw"), a.newlab("Lw")
            a(f"s_cmp_eq_u32 {sW}, 0\ns_cbranch_scc0 {l1}")
            keep = list(a.vm)
            a.wait_vm("x")
            self.ts(2)
            self.ln("v126", "v127", XNB)
            p1a()
            for i in range(n0, nq):
                key(i, i == n0)
            a(f"s_branch {l2}")
            a.label(l1)
            a.vm = keep
            for i in range(n0, nq):
                key(i)
            p1a()
            a.label(l2)
        else:
            for i in range(n0, nq):
                key(i)
            a("s_waitcnt lgkmcnt(0)")
            self.tags_setup()
        def touches():
            if c["tt"] == 2:
                a(f"""s_and_b32 s3, {sP}, 1
                      s_or_b32 s3, s3, {sW}
                      s_cselect_b32 s3, 72, {sP}
                      s_cmp_ge_u32 s3, 72
                      s_cselect_b32 s4, {OOB}, 0
                      s_lshl_b32 s3, {sP}, 4
                      s_or_b32 s3, s3, s4
                      v_mov_b32 v7, s3""")
                a(f"buffer_load_dword v9, v7, {R1}, 0 offen", "touch")
            if c["tt"] == 1:
                a(f"""v_and_b32 v7, 1, {vL}
                      v_lshlrev_b32 v7, 20, v7
                      s_mov_b64 exec, 3""")
                a(f"buffer_load_dword v9, v7, {R4}, s44 offen{self.nt('nt_w')}", "touch")
                a(f"s_mov_b64 exec, 1")
                a(f"buffer_load_dword v9, v7, {R1}, 0 offen", "touch")
                a(f"buffer_load_dword v9, v7, {WS}, 0 offen", "touch")
                a(f"s_mov_b64 exec, -1")
            if c["touch_ml"]:
                a(f"""v_lshlrev_b32 v7, 9, {vL}
                      s_lshl_b32 s3, {sH}, 4
                      s_add_u32 s3, s3, {ML_OFF}""")
                a(f"buffer_load_dword v9, v7, {WS}, s3 offen sc1", "touch")
            if c["touch_fin"]:
                a(f"""v_and_b32 v7, 31, {vL}
                      v_lshlrev_b32 v7, 7, v7
                      v_lshrrev_b32 v8, 5, {vL}
                      v_mul_u32_u24 v8, {YP_OFF - SP_OFF}, v8
                      v_add_u32 v7, v7, v8
                      s_and_b32 s3, {sP}, 1
                      s_or_b32 s3, s3, {sW}
                      s_cselect_b32 s3, 72, {sP}
                      s_cmp_ge_u32 s3, 72
                      s_cselect_b32 s4, {OOB}, 0
                      v_or_b32 v7, s4, v7
                      s_lshl_b32 s3, {sP}, 11
                      s_add_u32 s3, s3, {SP_OFF}""")
                a(f"buffer_load_dword v9, v7, {WS}, s3 offen sc1", "touch")
        for i in range(nq, 32):
            if i == c["touch_at"]:
                touches()
            if i == 16 and c["uv_pos"] == 3:
                a(f"""v_lshrrev_b32 v7, 1, {vR7}
                      v_lshlrev_b32 v7, 15, v7
                      v_and_b32 v8, 1, {vRR}
                      v_lshl_add_u32 v7, v8, 12, v7
                      v_lshrrev_b32 v8, 1, {vG}
                      v_lshl_add_u32 v7, v8, 8, v7
                      s_lshl_b32 s3, {sW}, 6
                      v_xor_b32 v8, s3, {vX78}
                      v_add_u32 v7, v7, v8
                      v_add_u32 v96, 0x4000, v7
                      v_xor_b32 v97, 32, v96""")
                a.wait_vm(("uv", 7))
                self.barrier()
                for t in range(2):
                    for kk in range(4):
                        for tt in range(2):
                            a(f"ds_read_b64_tr_b16 {vr(UVV+16*t+4*kk+2*tt,2)}, {vr(96+t)} offset:{(4*kk+2*tt)*256}")
                a("s_waitcnt lgkmcnt(0)")
                self.barrier()
            elif i == 16 and c["qb"] and c["p2v"]:
                self.barrier()
            key(i, i == nq)
        self.ts(3)
        a(f"""s_lshr_b32 s52, {sP}, 1
                  s_lshl_b32 s52, s52, 8
                  s_lshl_b32 s3, {sHG}, 20
                  s_add_u32 s52, s52, s3
                  s_lshl_b32 s3, {sW}, 14
                  s_add_u32 s52, s52, s3
                  s_add_u32 s52, s52, {OP_OFF}
                  s_add_u32 s53, s52, 0x10000
                  s_add_u32 s54, s52, 0x20000
                  s_add_u32 s55, s52, 0x30000""")
        a.wait_vm(("st", 15))
        for s in range(16):
            a(f"ds_read_b128 {ar(4*s,4)}, {vr(SA+(s&3))} offset:{(s>>2)*256}")
        QA = 24
        agroups = [([f"buffer_load_dwordx4 {vr(QA+4*i,4)}, {vL16}, {WS}, s48 offen offset:{1024*i} sc1"], B(QA+4*i, 4)) for i in range(4)]
        a.wait_vm(("st", 31 - (c["qa_at"] if c["p2v"] else 0)))
        for loads, _ in agroups:
            a(loads[0], "qap")
        if c["l2pf"] == 2:
            a("global_load_dword v9, v119, s[74:75]", "l2pf")
        a.wait_vm(("st", 31))
        self.ts(6)
        if not c["p2v"]:
            self.barrier()
        for s in range(16, 32):
            a(f"ds_read_b128 {ar(4*s,4)}, {vr(SA+(s&3))} offset:{16384*(s>>4)+((s&15)>>2)*256}")
        vq = []
        for ks in range(4):
            for t in range(8):
                for hh in range(2):
                    vq.append((ks, t, hh))
        def vread(n):
            for _ in range(n):
                if not vq:
                    return
                ks, t, hh = vq.pop(0)
                if ks == 2 and hh == 0:
                    a(f"v_add_u32 {vr(PV+t)}, 0x10000, {vr(PV+t)}")
                a(f"ds_read_b64_tr_b16 {ar(128+32*ks+4*t+2*hh,2)}, {vr(PV+t)} offset:{(32*(ks&1)+16*hh)*1024}")
        if not c["p2v"]:
            vread(64)
        def uv(i):
            a(f"s_add_u32 m0, s51, {i*1024}")
            if i:
                a(f"s_add_u32 s44, s44, {4*8192}")
            a(f"buffer_load_dwordx4 {vA if i<4 else vB}, {R4}, s44 offen{self.nt('nt_w')} lds", ("uv", i))
        if c["uv_pos"] == 1:
            a("s_waitcnt lgkmcnt(0)")
            self.barrier()
            for i in range(8):
                uv(i)
        self.poll(agroups, "v7", "qap", issued=True)
        self.ts(7)
        for i in range(4):
            a(f"ds_write_b128 {vr(100+i)}, {vr(QA+4*i,4)} offset:{1024*i}")
        a("s_waitcnt lgkmcnt(0)")
        self.barrier()
        BQ = 128
        SD = 160
        if c["l2pf"] == 1:
            a("global_load_dword v9, v119, s[74:75]", "l2pf")
        lead = 5 if c["p2v"] else 8
        for s in range(lead):
            a(f"ds_read_b128 {vr(BQ+4*s,4)}, {vr(QB+(s&3))} offset:{(s>>2)*256}", ("bq", s))
        nxt = 0
        for s in range(16):
            a.wait_ds(("bq", s))
            for tt in range(2):
                a(f"{MM} {vr(SD+4*tt,4)}, {ar(64*tt+4*s,4)}, {vr(BQ+4*(s&7),4)}, {'0' if s == 0 else vr(SD+4*tt,4)}")
            if s + lead < 16:
                s2 = s + lead
                a(f"ds_read_b128 {vr(BQ+4*(s2&7),4)}, {vr(QB+(s2&3))} offset:{(s2>>2)*256}", ("bq", s2))
            while len(vq) > 64 - (s + 1) * c["pv_s"] // 16:
                vread(1)
            if c["uv_pos"] == 0 and s % 2 == 0 and not c["p2v"]:
                uv(s // 2)
        self.ts(8)
        a(f"""v_max3_f32 v7, {vr(SD)}, {vr(SD+1)}, {vr(SD+2)}
              v_max3_f32 v8, {vr(SD+4)}, {vr(SD+5)}, {vr(SD+6)}
              v_max3_f32 v7, v7, {vr(SD+3)}, {vr(SD+7)}
              v_max_f32 v7, v7, v8""")
        self.xrow("v_max_f32", "v7", "v8")
        a("ds_write_b32 v104, v7")
        a("s_waitcnt lgkmcnt(0)")
        self.barrier()
        a(f"""ds_read_b128 v[168:171], v105
              s_waitcnt lgkmcnt(0)
              v_max3_f32 v144, v168, v169, v170
              v_max_f32 v144, v144, v171""")
        for k in range(8):
            a(f"v_sub_f32 {vr(SD+k)}, {vr(SD+k)}, v144")
            vread(2)
        for k in range(8):
            vread(2)
            a(f"v_exp_f32 {vr(SD+k)}, {vr(SD+k)}")
            if k % 2 == 1 and k > 1:
                a(f"v_cvt_pk_bf16_f32 {vr(168+k//2-1)}, {vr(SD+k-3)}, {vr(SD+k-2)}")
        a(f"v_cvt_pk_bf16_f32 v171, {vr(SD+6)}, {vr(SD+7)}")
        vread(64)
        a("ds_write_b128 v106, v[168:171]")
        a("s_waitcnt lgkmcnt(0)")
        self.barrier()
        PF = 128
        for ks in range(4):
            a(f"ds_read_b128 {vr(PF+4*ks,4)}, v107 offset:{1024*ks}", ("pf", ks))
        LD = 172
        OD = 176
        SR = 208
        mf = []
        for t in range(8):
            for ks in range(4):
                mf.append((f"{MM} {vr(OD+4*t,4)}, {vr(PF+4*ks,4)}, {ar(128+32*ks+4*t,4)}, {'0' if ks == 0 else vr(OD+4*t,4)}", ("pf", ks) if t == 0 else None))
        ml = [(f"{MM} {vr(LD,4)}, {vr(PF+4*ks,4)}, v[112:115], {'0' if ks == 0 else vr(LD,4)}", None) for ks in range(4)]
        mf = mf[:28] + ml + mf[28:] if c["ml_pos"] < 4 else mf + ml
        fill = [(0, f"v_mov_b32 v146, {sT4}"), (0, f"v_mov_b32 v147, {sT4}")]
        for u in range(4):
            b = OD + 8*u
            e = 8*(u+1) + 3
            for r in range(4):
                fill.append((e, f"v_perm_b32 {vr(SR+4*r+u)}, {vr(b+4+r)}, {vr(b+r)}, {vSEL}"))
            for r in range(4):
                fill.append((e, f"v_bitop3_b32 {vr(b+r)}, {vr(SR+4*r+u)}, {sTK[u]}, {vMB} bitop3:0x28"))
            for r in range(4):
                fill.append((e, f"v_add_u32 {vr(SR+4*r+u)}, {vr(SR+4*r+u)}, {vr(b+r)}"))
        npv = 0
        for i, (ins, w) in enumerate(mf):
            if w:
                a.wait_ds(w)
            a(ins)
            k = 0
            while fill and fill[0][0] <= i and k < c["pv_fill"] and not (c["ml_pos"] < 4 and fill[0][0] == 35):
                a(fill.pop(0)[1]); k += 1
            if c["p2v"] and c["uv_pos"] == 0 and i % 4 == 1 and i < 32:
                uv(i // 4)
        def mlst():
            a(f"""v_cndmask_b32 v145, {vr(LD)}, {vr(LD+1)}, {M1}
                  v_cndmask_b32 v148, {vr(LD+2)}, {vr(LD+3)}, {M1}
                  v_cndmask_b32 v145, v145, v148, {M2}""")
            a(f"buffer_store_dwordx4 v[144:147], v109, {WS}, s56 offen sc1", "opst")
        if c["ml_pos"] < 0:
            mlst()
        for _, ins in fill:
            a(ins)
        for r in range(5):
            if r == c["ml_pos"]:
                mlst()
            if r < 4:
                a(f"buffer_store_dwordx4 {vr(SR+4*r,4)}, v108, {WS}, s{52+r} offen sc1", "opst")
        if c["sgate"]:
            a(f"buffer_store_dword v146, v99, {WS}, s57 offen sc1", "opst")
        self.ts(9)
        if c["l2pf"] == 3:
            a("global_load_dword v9, v119, s[74:75]", "l2pf")
        if c["uv_pos"] == 2:
            for i in range(8):
                uv(i)
        OPR, MLW = 24, 40
        WL = MX
        a(f"""s_lshl_b32 s48, {sP}, 14
              s_lshl_b32 s3, {sW}, 12
              s_add_u32 s48, s48, s3
              s_add_u32 s48, s48, {OP_OFF}
              s_add_u32 s52, s3, {OPL}
              v_lshlrev_b32 v100, 9, {vL}
              s_lshl_b32 s53, {sH}, 4
              s_add_u32 s53, s53, {ML_OFF}
              s_lshl_b32 s3, {sW}, 7
              s_add_u32 s3, s3, {WL}
              v_lshl_add_u32 v98, {vL}, 1, s3
              v_and_b32 v7, 1, {vN}
              v_lshlrev_b32 v8, 6, v7
              v_lshl_add_u32 v8, {vG}, 3, v8
              v_add_u32 v99, s3, v8
              v_lshlrev_b32 v8, 5, {vG}
              v_xor_b32 v101, v8, {vL16}
              v_add_u32 v101, s52, v101
              v_xor_b32 v102, 0x80, v101
              v_lshl_add_u32 v10, {vG}, 2, {vRR}
              v_lshl_add_u32 v8, v10, 8, {vX78}
              v_add_u32 {vr(PV)}, {OPL}, v8""")
        for t in range(1, 8):
            a(f"v_xor_b32 {vr(PV+t)}, {32*t}, {vr(PV)}")
        a(f"""s_lshr_b32 s56, {sP}, 1
              s_lshl_b32 s3, s56, 5
              v_bfe_u32 v7, {vL}, 2, 1
              v_mul_u32_u24 v7, 1152, v7
              v_add3_u32 v240, v7, {vCC8}, s3""")
        a(f"buffer_load_dwordx2 v[242:243], v240, {R0}, 0 offen", "xres")
        ogroups = [([f"buffer_load_dwordx4 {vr(OPR+4*i,4)}, {vL16}, {WS}, s48 offen offset:{1024*i} sc1"], B(OPR+4*i, 4)) for i in range(4)]
        mgroup = [([f"buffer_load_dwordx3 {vr(MLW,3)}, v100, {WS}, s53 offen sc1"], [(vr(MLW+2), "w")])]
        UV, WO = 0, 32
        if c["uv_pos"] == 3:
            for k in range(32):
                a(f"v_accvgpr_write_b32 {ar(UV+k)}, {vr(40+k)}")
        else:
            a(f"""v_and_b32 v7, 1, {vG}
                  v_lshlrev_b32 v7, 6, v7
                  v_lshl_add_u32 v7, {vRR}, 4, v7
                  v_lshrrev_b32 v8, 1, {vG}
                  v_add_u32 v7, v7, v8
                  s_lshl_b32 s3, {sW}, 6
                  v_xor_b32 v8, s3, {vX78}
                  v_lshl_add_u32 v96, v7, 8, v8
                  v_xor_b32 v97, 32, v96""")
            def uvpre(bar=True):
                a.wait_vm(("uv", 7))
                if bar:
                    self.barrier()
                for t in range(2):
                    for kk in range(4):
                        for tt in range(2):
                            a(f"ds_read_b64_tr_b16 {ar(UV+16*t+4*kk+2*tt,2)}, {vr(96+t)} offset:{WUVL+(4*kk+2*tt)*256}")
            uvpre()
        if c["sgate"]:
            top, ok = a.newlab("Lg"), a.newlab("Lgok")
            a(f"""s_lshr_b32 s3, {sH}, 4
                  s_lshl_b32 s3, s3, 10
                  s_lshl_b32 s4, {sJ}, 8
                  s_add_u32 s3, s3, s4
                  s_lshl_b32 s4, {sW}, 6
                  s_add_u32 s3, s3, s4
                  s_add_u32 s3, s3, {FL_OFF}
                  s_add_u32 s4, s16, s3
                  s_addc_u32 s5, s17, 0
                  s_mov_b32 {sCNT}, {c['spin']}
                  s_waitcnt lgkmcnt(0)""")
            self.ts(10)
            a.label(top)
            a("s_load_dwordx16 s[32:47], s[4:5], 0 glc\ns_waitcnt lgkmcnt(0)")
            a("s_and_b64 s[54:55], s[32:33], s[34:35]\ns_or_b64 s[32:33], s[32:33], s[34:35]")
            for k in range(36, 48, 2):
                a(f"s_and_b64 s[54:55], s[54:55], s[{k}:{k+1}]\ns_or_b64 s[32:33], s[32:33], s[{k}:{k+1}]")
            a(f"""s_and_b32 s54, s54, s55
                  s_or_b32 s32, s32, s33
                  s_xor_b32 s54, s54, {sT4}
                  s_xor_b32 s32, s32, {sT4}
                  s_or_b32 s32, s32, s54
                  s_cbranch_scc0 {ok}
                  s_sub_u32 {sCNT}, {sCNT}, 1
                  s_cbranch_scc0 {top}""")
            a.label(ok)
            self.ts(14)
            a(mgroup[0][0][0], "mlp")
            for loads, _ in ogroups:
                a(loads[0], "opp")
            self.poll(mgroup, "v7", "mlp", issued=True)
        else:
            if c["op_sync"]:
                a("s_waitcnt vmcnt(0)")
            self.ts(10)
            self.poll(mgroup, "v7", "mlp")
            self.ts(14)
            for loads, _ in ogroups:
                a(loads[0], "opp")
        a(f"v_mov_b32 v7, {vr(MLW)}")
        self.red32("v_max_f32", "v7", "v8")
        a(f"""v_sub_f32 v7, {vr(MLW)}, v7
              v_exp_f32 v10, v7
              s_nop 0
              v_mul_f32 v7, v10, {vr(MLW+1)}""")
        self.red32("v_add_f32", "v7", "v8")
        a(f"""v_rcp_f32 v7, v7
              v_mul_f32 v7, v7, v10
              v_cvt_pk_bf16_f32 v7, v7, v7
              ds_write_b16 v98, v7
              s_waitcnt lgkmcnt(0)
              ds_read2_b64 v[44:47], v99 offset0:0 offset1:4
              s_waitcnt lgkmcnt(0)""")
        for k in range(4):
            a(f"v_cndmask_b32 {vr(68+k)}, {vr(44+k)}, 0, {M1}")
            a(f"v_cndmask_b32 {vr(72+k)}, 0, {vr(44+k)}, {M1}")
        self.poll(ogroups, "v7", "opp", issued=True)
        self.ts(11)
        for i in range(4):
            a(f"ds_write_b128 {vr(101+(i&1))}, {vr(OPR+4*i,4)} offset:{1024*i}")
        a("s_waitcnt lgkmcnt(0)")
        self.barrier()
        RF = 128
        def rd(t):
            for bs in range(2):
                for hh in range(2):
                    a(f"ds_read_b64_tr_b16 {vr(RF+8*t+4*bs+2*hh,2)}, {vr(PV+t)} offset:{(32*bs+16*hh)*256}", ("rf", t))
        for t in range(3):
            rd(t)
        CD = 192
        CB = 48
        XD = 224
        def cvt(u):
            a(f"v_cvt_pk_bf16_f32 {vr(CB+2*u)}, {vr(CD+4*u)}, {vr(CD+4*u+1)}\nv_cvt_pk_bf16_f32 {vr(CB+2*u+1)}, {vr(CD+4*u+2)}, {vr(CD+4*u+3)}")
        def mm(kk):
            for t in range(2):
                a(f"{MM} {vr(XD+4*t,4)}, {ar(UV+16*t+4*kk,4)}, {vr(CB+4*kk,4)}, {'0' if kk == 0 else vr(XD+4*t,4)}")
        for t in range(8):
            a.wait_ds(("rf", t))
            for bs in range(2):
                a(f"{MM} {vr(CD+4*t,4)}, {vr(RF+8*t+4*bs,4)}, {vr(68+4*bs,4)}, {'0' if bs == 0 else vr(CD+4*t,4)}")
            if t + 3 < 8:
                rd(t + 3)
            if t >= 2:
                cvt(t - 2)
        mm(0); mm(1); mm(2); cvt(6); cvt(7); mm(3)
        self.merge(XD, 2)
        slow = self.xpub(XD, "s50", "cxst")
        if slow and not c["noslow"] & 4:
            a(slow)
        self.ts(12)
        if c["ep_early"]:
            ne = a.newlab("Lne")
            a(f"""s_lshl_b32 s3, {sP}, 2
                  s_add_u32 s3, s3, {sW}
                  s_cmp_eq_u32 s3, 511
                  s_cbranch_scc0 {ne}
                  s_xor_b32 s53, s53, 0x100""")
            self.poll(mgroup, "v7", "mlq")
            a(f"s_mov_b64 exec, 1\nv_mov_b32 v7, {EP_OFF}\nv_mov_b32 v10, {sT4}\nv_mov_b32 v11, {sT}")
            a(f"buffer_store_dwordx2 v[10:11], v7, {WS}, 0 offen sc1")
            a.label(ne)
        a(f"""s_and_b32 s3, {sP}, 1
              s_or_b32 s3, s3, {'0' if c['fin4'] else sW}
              s_cbranch_scc1 L_gb_exit
              s_cmp_ge_u32 {sP}, 72
              s_cbranch_scc1 L_gb_exit""")
        self.final()
        a.label("L_gb_exit")
        if c["ts"]:
            self.end()
        a.label("L_end")
        a("s_endpgm")

    def build(self):
        hdr = open("cdna_kernels/" + NAME + ".s.ref").read().split("\n")
        top = [l for l in hdr if l.startswith(";") and "@launch" not in l and "Override launch" not in l and "grid=ceil" not in l]
        a = self.a
        self.prologue()
        self.ga()
        self.gb()
        s = "\n".join(top) + "\n"
        s += f"; @launch grid=(256,1,1) block=(256,1,1) lds={LDS_SIZE}\n"
        s += f""".amdgcn_target "amdgcn-amd-amdhsa--gfx950"
.text
.globl {NAME}_kernel
.p2align 8
.type {NAME}_kernel,@function
{NAME}_kernel:
"""
        s += a.text()
        s += f""".section .rodata,"a"
.p2align 6
.amdhsa_kernel {NAME}_kernel
  .amdhsa_next_free_vgpr 512
  .amdhsa_next_free_sgpr 102
  .amdhsa_accum_offset 256
  .amdhsa_group_segment_fixed_size 0
  .amdhsa_kernarg_size 104
  .amdhsa_user_sgpr_count 2
  .amdhsa_user_sgpr_kernarg_segment_ptr 1
  .amdhsa_system_sgpr_workgroup_id_x 1
  .amdhsa_float_denorm_mode_32 3
.end_amdhsa_kernel
"""
        return s

if __name__ == "__main__":
    out = sys.argv[1]
    cfg = {}
    for kv in sys.argv[2:]:
        k, v = kv.split("=")
        cfg[k] = int(v)
    import subprocess, os, tempfile
    g = Gen(cfg)
    txt = g.build()
    with tempfile.TemporaryDirectory() as d:
        open(d + "/k.s", "w").write(txt)
        subprocess.check_call(["clang", "-x", "assembler", "-target", "amdgcn-amd-amdhsa", "-mcpu=gfx950", "-c", d + "/k.s", "-o", d + "/k.o"])
        subprocess.check_call(["llvm-objcopy", "-O", "binary", "-j", ".text", d + "/k.o", d + "/k.bin"])
        size = os.path.getsize(d + "/k.bin")
    g = Gen(cfg)
    g.pfl = -(-size // 1024)
    assert g.pfl <= 31
    open(out, "w").write(g.build())
    print("wrote", out, "code bytes", size, "nops inserted:", g.a.nops)
```

```python
import sys
from asmlib import Asm

NAME = "recurrent_scan__compressed_kv_cla__geglu_ffn__decode"

DEF = dict(
    ts=0,
    nt_w=1,
    nt_ckv=1,
    pf=1, pf_n=16,
    touch_ml=2, touch_qa=1, touch_fin=1, touch_at=16,
    out_sc=0,
    ep_early=1,
    qb=32,
    p2v=1, qa_at=3, pv_s=32,
    dip0=0, dip1=0, dipd=6,
    pre_late=0, bias=0,
    l2pf=0,
    gapf=0, gapf_at=1,
    xt=1,
    x0=1, fin4=1, ff_tail=1,
    tt=2,
    kint=3,
    uk_ln=8, q_at=1,
    gb_0=0,
    gb_q=4,
    f_d1=4, f_sw=8, f_d2=12,
    o_d1=1, o_sw=3, o_d2=12,
    f_touch=20, f_lag=12,
    hp_at=3,
    sgate=0,
    f_pre=4,
    gb_d1=12, gb_sw=12, gb_d2=32,
    uv_pos=3,
    rot=0,
    uv_at=16,
    uv_early=0,
    ml_tile=2,
    ml_pos=-1,
    op_sync=1, pv_fill=2,
    kslow=24,
    fast=1,
    spin=60000,
    dbgts=0,
    noslow=0,
    half=0,
    nob=0,
    nof=0,
)

OP_OFF = 0x000000
QF_OFF = 0x200000
CF_OFF = 0x240000
PF_OFF = 0x260000
SLOW   = 0x0B0000
QA_OFF = 0x360000
ML_OFF = 0x370000
FL_OFF = 0x378000
XT_OFF = 0x37C000
SP_OFF = 0x380000
YP_OFF = 0x3A8000
EP_OFF = 0x3F0000
TS_OFF = 0x800000
WS_SIZE = 0x1000000
OOB = 0x7f000000

XN = 0
QL = 0xA00
FBASE = 0x2000
WUKL = 0x15000
WQL = 0x1D000
LDS_SIZE = 0x26000
WQB = 0x20000
XNB = 0x25400
CKV = 0
QAL = 0x20000
MX = 0x24000
PB = 0x24400
CXL = 0x25400
WUVL = 0
WOL = 0x8000
OPL = 0x14000

sW, sH, sJ, sX, sA, sP = "s6", "s7", "s8", "s9", "s11", "s12"
WS = "s[16:19]"
R0, R1, R2, R3, R4 = "s[24:27]", "s[28:31]", "s[32:35]", "s[36:39]", "s[40:43]"
sCNT, sMASK = "s60", "s20"
sT = "s61"
sTK = ["s96", "s97", "s98", "s99"]
sT4 = "s100"
vTB = ["v236", "v237", "v238", "v239"]
M1, M2, M4 = "s[62:63]", "s[22:23]", "s[58:59]"
vMF, vMB, vSEL, vOOB = "v254", "v255", "v252", "v251"
vL, vN, vG, vRR, vCC8, vL16 = "v1", "v2", "v3", "v4", "v5", "v6"
vR7, vX78, vXI, vXO = "v250", "v249", "v248", "v247"

def vr(b, n=1):
    return f"v{b}" if n == 1 else f"v[{b}:{b+n-1}]"
def ar(b, n=1):
    return f"a{b}" if n == 1 else f"a[{b}:{b+n-1}]"
def F(b, n):
    return [(vr(b+k), ("f", k & 3)) for k in range(n)]
def B(b, n):
    return [(vr(b+k), ("b", k & 3)) for k in range(n)]
MM = "v_mfma_f32_16x16x32_bf16"
DOC = r"""
; ------------------------------------------------------------------------------------------------------------
; Attention uses the absorbed form: qa = (LN(x) Wq) Wuk^T, scores = qa . c_kv, ctx = (softmax . c_kv) Wuv.
;   group B (slot >= 16): rows of q; 128 keys x 16 heads of attention (true max per split, flash-decoding merge);
;        merge of the 32 splits, w_uv; 36 of them finish one 16-column tile: x + s*silu(y)
; Weights stream HBM -> LDS (buffer_load ... lds, source-side swizzle) and reach the MFMAs through
; ------------------------------------------------------------------------------------------------------------
"""

class Gen:
    def __init__(self, cfg):
        self.cfg = dict(DEF)
        for k in cfg:
            assert k in DEF, k
        self.cfg.update(cfg)
        self.a = Asm()
        self.pfl = 20

    def ts(self, k):
        if self.cfg["ts"] == 1 or (self.cfg["ts"] == 2 and k in (0, 15)):
            self.a(f"s_memrealtime s[{64+2*k}:{65+2*k}]\ns_waitcnt lgkmcnt(0)")

    def cnt(self, k):
        if self.cfg["ts"] == 1:
            self.a(f"s_sub_u32 s{64+2*k}, {self.cfg['spin']+1}, {sCNT}\ns_mov_b32 s{65+2*k}, 0")

    def end(self):
        a = self.a
        self.ts(15)
        if self.cfg["ts"]:
            a.c("diagnostic: store stamps")
            a(f"""s_mov_b64 exec, -1
                  s_lshl_b32 s3, s2, 2
                  s_add_u32 s3, s3, {sW}
                  s_lshl_b32 s3, s3, 7
                  s_add_u32 s3, s3, {TS_OFF}
                  v_mov_b32 v8, 0""")
            for k in range(16):
                a(f"v_mov_b32 v10, s{64+2*k}\nv_mov_b32 v11, s{65+2*k}")
                a(f"buffer_store_dwordx2 v[10:11], v8, {WS}, s3 offen offset:{8*k}")
                a("s_nop 1")
        a("s_endpgm")

    def srd(self, reg, slot, size):
        base = int(reg[2:].split(":")[0])
        self.a(f"s_load_dwordx2 s[{base}:{base+1}], s[0:1], {slot*8}\ns_mov_b32 s{base+2}, {size}\ns_mov_b32 s{base+3}, 0x20000")

    def nt(self, k):
        return " nt" if self.cfg[k] else ""

    def check_regs(self, regs, tmp):
        a = self.a
        kind = regs[0][1]
        kind = kind[0]
        for i, (r, k) in enumerate(regs):
            t = vTB[k[1]] if kind == "f" else (sT4 if kind == "w" else sTK[k[1]])
            if i == 0:
                a(f"v_xor_b32 {tmp}, {t}, {r}")
            else:
                a(f"v_bitop3_b32 {tmp}, {tmp}, {r}, {t} bitop3:0xf6")
        if kind == "f":
            a(f"v_and_b32 {tmp}, 0xff, {tmp}")
        elif kind == "b":
            a(f"v_and_b32 {tmp}, 0x10001, {tmp}")
        a(f"v_cmp_ne_u32 vcc, 0, {tmp}")

    def tagf(self, base, n):
        for k in range(n):
            self.a(f"v_and_or_b32 {vr(base+k)}, {vr(base+k)}, {vMF}, {vTB[k & 3]}")

    def packb(self, dsts, srcs, ks, tmps):
        a = self.a
        for d, (lo, hi) in zip(dsts, srcs):
            a(f"v_perm_b32 {d}, {hi}, {lo}, {vSEL}")
        for d, k, t in zip(dsts, ks, tmps):
            a(f"v_bitop3_b32 {t}, {d}, {k}, {vMB} bitop3:0x28")
        for d, t in zip(dsts, tmps):
            a(f"v_add_u32 {d}, {d}, {t}")

    def merge(self, d, n):
        a = self.a
        for k in range(4):
            a(f"v_cndmask_b32 {vr(d+k)}, {vr(d+k)}, {vr(d+4+k)}, {M2}")
        if n == 4:
            for k in range(4):
                a(f"v_cndmask_b32 {vr(d+8+k)}, {vr(d+8+k)}, {vr(d+12+k)}, {M2}")
        if n >= 3:
            for k in range(4):
                a(f"v_cndmask_b32 {vr(d+k)}, {vr(d+k)}, {vr(d+8+k)}, {M4}")

    def epoch_load(self):
        self.a(f"s_add_u32 s4, s16, {EP_OFF}\ns_addc_u32 s5, s17, 0\ns_load_dwordx2 s[60:61], s[4:5], 0")

    def tags_setup(self):
        a = self.a
        a(f"""s_add_u32 {sT4}, s60, 0x9e3779b1
              s_and_b32 s3, {sT}, 0x55
              s_lshl_b32 s3, s3, 1
              s_xor_b32 {sT}, {sT}, s3
              s_xor_b32 {sT}, {sT}, 0x55
              s_and_b32 {sT}, {sT}, 0xff
              s_and_b32 s3, {sT}, 4
              s_lshl_b32 s3, s3, 1
              s_or_b32 s60, s3, 4
              s_lshr_b32 s3, {sT}, 4
              s_xor_b32 s3, s3, {sT}
              s_and_b32 s3, s3, 15
              s_cselect_b32 s60, 0, s60
              s_xor_b32 {sT}, {sT}, s60""")
        for k in range(4):
            a(f"v_bfe_u32 {vTB[k]}, {sT4}, {8*k}, 8")
        for k in range(4):
            a(f"""s_bfe_u32 s3, {sT}, {(1 << 16) | (2*k+1)}
                  s_lshl_b32 s3, s3, 16
                  s_bfe_u32 {sTK[k]}, {sT}, {(1 << 16) | (2*k)}
                  s_or_b32 {sTK[k]}, {sTK[k]}, s3""")

    def common_setup(self):
        self.a(f"""v_mov_b32 {vMF}, 0xffffff00
              v_mov_b32 {vMB}, 0x00010001
              v_mov_b32 {vSEL}, 0x07060302
              v_mov_b32 {vOOB}, {OOB}
              v_and_b32 v7, 1, {vN}
              v_cmp_ne_u32 {M1}, 0, v7
              v_and_b32 v8, 2, {vN}
              v_cmp_ne_u32 {M2}, 0, v8
              v_and_b32 v10, 4, {vN}
              v_cmp_ne_u32 {M4}, 0, v10
              v_lshlrev_b32 v7, 7, v7
              v_lshl_add_u32 v7, v8, 5, v7
              v_lshl_add_u32 v7, {vG}, 4, v7
              v_cmp_gt_u32 vcc, 4, {vN}
              v_cndmask_b32 {vXO}, {vOOB}, v7, vcc
              v_lshlrev_b32 v7, 5, {vCC8}
              v_lshl_add_u32 v7, v10, 5, v7
              v_lshrrev_b32 v8, 3, {vN}
              v_lshl_add_u32 v7, v8, 6, v7
              v_lshl_add_u32 {vXI}, {vG}, 4, v7
              v_and_b32 v7, 1, {vG}
              v_lshl_add_u32 {vR7}, v7, 2, {vRR}
              v_lshl_add_u32 {vX78}, {vR7}, 5, {vCC8}""")

    def poll(self, groups, tmp, tag, issued=False):
        a = self.a
        if not issued:
            for loads, _ in groups:
                for s in loads:
                    a(s, tag)
        a(f"s_mov_b32 {sCNT}, {self.cfg['spin']}")
        a.wait_vm(tag)
        top, ok = a.newlab("Lp"), a.newlab("Lok")
        keep = list(a.vm)
        if len(groups) == 1:
            a.label(top)
            self.check_regs(groups[0][1], tmp)
            a(f"s_cbranch_vccz {ok}")
            a(f"s_sub_u32 {sCNT}, {sCNT}, 1\ns_cbranch_scc1 {ok}")
            for s in groups[0][0]:
                a(s)
            a(f"s_waitcnt vmcnt(0)\ns_branch {top}")
        else:
            self.check_regs([r for _, regs in groups for r in regs], tmp)
            a(f"s_mov_b32 {sMASK}, {(1 << len(groups)) - 1}")
            a(f"s_cbranch_vccz {ok}")
            a.label(top)
            for i, (loads, regs) in enumerate(groups):
                nx, cl = a.newlab("Ln"), a.newlab("Lc")
                a(f"s_bitcmp0_b32 {sMASK}, {i}\ns_cbranch_scc1 {nx}")
                self.check_regs(regs, tmp)
                a(f"s_cbranch_vccz {cl}")
                for s in loads:
                    a(s)
                a(f"s_branch {nx}")
                a.label(cl)
                a(f"s_bitset0_b32 {sMASK}, {i}")
                a.label(nx)
            a(f"s_cmp_eq_u32 {sMASK}, 0\ns_cbranch_scc1 {ok}")
            a(f"s_waitcnt vmcnt(0)\ns_sub_u32 {sCNT}, {sCNT}, 1\ns_cbranch_scc0 {top}")
        a.vm = keep
        a.label(ok)

    def poll2(self, mk, vaddr, regs, tag, slow_store=None, every=2):
        a = self.a
        K = self.cfg["spin"] - self.cfg["kslow"]
        a(f"s_mov_b32 {sCNT}, {self.cfg['spin']}")
        a.wait_vm(tag)
        top, ok, ns = a.newlab("Lp"), a.newlab("Lok"), a.newlab("Lns")
        keep = list(a.vm)
        a.label(top)
        self.check_regs(regs, "v7")
        a(f"s_cbranch_vccz {ok}")
        a(f"s_sub_u32 {sCNT}, {sCNT}, 1\ns_cbranch_scc1 {ok}")
        if self.cfg["fast"]:
            if slow_store:
                a(f"s_cmp_eq_u32 {sCNT}, {K}\ns_cbranch_scc0 {ns}")
                a(slow_store)
                a.label(ns)
            a(f"""s_cmp_le_u32 {sCNT}, {K}
                  s_cselect_b32 s3, {sCNT}, 1
                  s_and_b32 s3, s3, {every-1}
                  s_cselect_b32 s3, 0, {SLOW}
                  v_add_u32 v8, s3, {vaddr}""")
            for s in mk("v8"):
                a(s)
        else:
            for s in mk(vaddr):
                a(s)
        a(f"s_waitcnt vmcnt(0)\ns_branch {top}")
        a.vm = keep
        a.label(ok)

    def xpub(self, d, soff, tag):
        self.tagf(d, 4)
        if self.cfg["fast"]:
            self.a(f"buffer_store_dwordx4 {vr(d,4)}, {vXO}, {WS}, {soff} offen", tag)
            return f"s_add_u32 s3, {soff}, {SLOW}\nbuffer_store_dwordx4 {vr(d,4)}, {vXO}, {WS}, s3 offen sc1"
        self.a(f"buffer_store_dwordx4 {vr(d,4)}, {vXO}, {WS}, {soff} offen sc1", tag)
        return None

    def xsum(self, r, vlds):
        a = self.a
        for q in ("[1,0,3,2]", "[2,3,0,1]"):
            for k in range(4):
                a(f"v_add_f32_dpp {vr(r+k)}, {vr(r+k)}, {vr(r+k)} quad_perm:{q} row_mask:0xf bank_mask:0xf")
        a(f"v_cvt_pk_bf16_f32 {vr(r)}, {vr(r)}, {vr(r+1)}\nv_cvt_pk_bf16_f32 {vr(r+1)}, {vr(r+2)}, {vr(r+3)}")
        a(f"ds_write_b64 {vlds}, {vr(r,2)}\ns_waitcnt lgkmcnt(0)")

    def xlds_addr(self, dst, base):
        self.a(f"""s_lshl_b32 s3, {sW}, 6
                   s_add_u32 s3, s3, {base}
                   v_bfe_u32 v7, {vN}, 2, 1
                   v_lshlrev_b32 v7, 8, v7
                   v_lshrrev_b32 v8, 3, {vN}
                   v_lshl_add_u32 v7, v8, 5, v7
                   v_lshl_add_u32 v7, {vG}, 3, v7
                   v_add_u32 {dst}, s3, v7""")

    def xt_store(self):
        if not (self.cfg["xt"] and self.cfg["fast"]):
            return
        a = self.a
        a(f"""s_getreg_b32 s3, hwreg(HW_REG_XCC_ID, 0, 4)
              s_add_u32 s3, s3, {sT4}
              v_mov_b32 v10, s3
              s_lshr_b32 s3, s2, 3
              s_lshl_b32 s3, s3, 2
              s_lshl_b32 s4, {sX}, 7
              s_add_u32 s3, s3, s4
              s_add_u32 s3, s3, {XT_OFF}
              v_cmp_eq_u32 vcc, 0, v0
              v_cndmask_b32 v7, {vOOB}, v0, vcc""")
        a(f"buffer_store_dword v10, v7, {WS}, s3 offen sc1", "xts")

    def xt_load(self, reg):
        if not (self.cfg["xt"] and self.cfg["fast"]):
            return
        a = self.a
        a(f"""v_and_b32 v7, 31, {vL}
              v_lshlrev_b32 v7, 2, v7
              s_lshl_b32 s3, {sX}, 7
              s_add_u32 s3, s3, {XT_OFF}""")
        a(f"buffer_load_dword {reg}, v7, {WS}, s3 offen sc1", "xtl")

    def xt_slow(self, reg, slow):
        a = self.a
        if not (self.cfg["xt"] and self.cfg["fast"]):
            a(slow)
            return
        sk = a.newlab("Lx")
        keep = list(a.vm)
        a(f"""s_getreg_b32 s3, hwreg(HW_REG_XCC_ID, 0, 4)
              s_add_u32 s3, s3, {sT4}
              v_cmp_ne_u32 vcc, s3, {reg}
              s_cbranch_vccz {sk}""")
        a(slow)
        a.label(sk)
        a.vm = keep

    def barrier(self):
        self.a("s_barrier")

    def rows384_voffs(self, base, stride):
        a = self.a
        a(f"s_movk_i32 s3, 2731\ns_movk_i32 s4, {stride - 384}")
        for i in range(3):
            a(f"""v_add_u32 v7, {64*i}, {vL}
                  v_mul_u32_u24 v8, s3, v7
                  v_lshrrev_b32 v8, 16, v8
                  v_lshrrev_b32 v10, 1, v8
                  v_lshlrev_b32 v10, 5, v10
                  v_xor_b32 v10, v10, {vL16}
                  v_mad_u32_u24 {vr(base+i)}, v8, s4, v10""")

    def rows1152_voffs(self, base):
        a = self.a
        a("s_movk_i32 s3, 1821")
        for i in range(9):
            a(f"""v_add_u32 v7, {64*i}, {vL}
                  v_mul_u32_u24 v8, s3, v7
                  v_lshrrev_b32 v8, 18, v8
                  v_lshlrev_b32 v8, 5, v8
                  v_xor_b32 v8, v8, {vL16}
                  v_add_u32 {vr(base+i)}, {(i & 12) * 1024}, v8""")

    def tile384_addr(self, dst, base, row=384):
        self.a(f"""v_lshrrev_b32 v7, 1, {vR7}
                   v_xor_b32 v7, {sW}, v7
                   v_lshl_add_u32 v7, v7, 5, {vCC8}
                   v_lshl_add_u32 v8, {vG}, 2, {vRR}
                   v_mul_u32_u24 v8, {row}, v8
                   v_add_u32 v7, v7, v8
                   v_add_u32 {dst}, {base}, v7""")

    def out3_addr(self, dst, shift):
        self.a(f"""v_lshrrev_b32 v7, 1, {vN}
                   v_mul_u32_u24 v7, {4*shift}, v7
                   v_and_b32 v8, 1, {vN}
                   v_lshl_add_u32 v7, v8, 6, v7
                   v_lshl_add_u32 v7, {vG}, 4, v7
                   v_cmp_gt_u32 vcc, 6, {vN}
                   v_cndmask_b32 {dst}, {vOOB}, v7, vcc""")

    def red32(self, op, x, t):
        a = self.a
        for r in (8, 4, 2, 1):
            a(f"{op}_dpp {x}, {x}, {x} row_ror:{r} row_mask:0xf bank_mask:0xf")
        a(f"v_mov_b32 {t}, {x}\nv_permlane16_swap_b32 {x}, {t}\n{op} {x}, {x}, {t}")

    def xrow(self, op, x, t):
        self.a(f"""v_mov_b32 {t}, {x}
                   v_permlane16_swap_b32 {x}, {t}
                   {op} {x}, {x}, {t}
                   v_mov_b32 {t}, {x}
                   v_permlane32_swap_b32 {x}, {t}
                   {op} {x}, {x}, {t}""")

    def stream(self, n, d1, sw, d2, issue, hooks, per=3, dip=None):
        a = self.a
        self.q = []
        for i in range(n + 1):
            for f in hooks.get(i, []):
                while self.q:
                    self.q.pop(0)()
                f()
            if i == n:
                break
            d = d1 if i < sw else d2
            if dip and dip[0] <= i < dip[1]:
                d = dip[2]
            if i - d >= 0:
                a.wait_vm(("st", i - d))
            issue(i)
            for _ in range(per):
                if self.q:
                    self.q.pop(0)()
        while self.q:
            self.q.pop(0)()

    def prologue(self):
        a = self.a
        c = self.cfg
        a("s_cmp_ge_u32 s2, 256\ns_cbranch_scc1 L_end")
        self.srd(R1, 2, 576*8192)
        self.srd(R3, 1, 2*4096*1024)
        self.srd(R0, 0, 2304)
        self.srd(R2, 3, 512*8192)
        self.srd(WS, 12, WS_SIZE)
        if c["dbgts"]:
            a("s_memrealtime s[64:65]\ns_load_dwordx2 s[92:93], s[0:1], 88\ns_mov_b32 s94, 256\ns_mov_b32 s95, 0x20000")
        if c["ts"]:
            for k in range(1, 16):
                a(f"s_mov_b64 s[{64+2*k}:{65+2*k}], 0")
            a("s_memrealtime s[64:65]")
        a(f"""s_lshr_b32 s10, s2, 3
              s_and_b32 {sX}, s2, 7
              v_lshrrev_b32 v7, 6, v0
              v_and_b32 {vL}, 63, v0
              v_readfirstlane_b32 {sW}, v7
              s_and_b32 {sA}, s10, 15
              s_lshl_b32 {sP}, {sX}, 4
              s_add_u32 {sP}, {sP}, {sA}
              s_lshr_b32 {sH}, {sP}, 2
              s_and_b32 {sJ}, {sA}, 3""")
        if c["pf"]:
            a.c("pull the kernel's own code into L2")
            a("s_getpc_b64 s[4:5]")
            a.label("L_pc")
            a(f"""s_and_b32 s3, s10, {c['pf_n'] - 1}
                  s_lshl_b32 s3, s3, 2
                  s_add_u32 s3, s3, {sW}
                  s_mul_i32 s3, s3, {64*self.pfl}
                  v_lshl_add_u32 v7, {vL}, 6, s3
                  v_min_u32 v7, L_end-L_pc, v7
                  s_mov_b64 exec, {(1 << self.pfl) - 1}""")
            a("global_load_dword v9, v7, s[4:5]", "pf")
            a("s_mov_b64 exec, -1")
        a(f"""v_and_b32 {vN}, 15, {vL}
              v_lshrrev_b32 {vG}, 4, {vL}
              v_lshlrev_b32 {vL16}, 4, {vL}""")
        a("s_cmp_ge_u32 s10, 16\ns_cbranch_scc1 L_GB")

    def lane_late(self):
        self.a(f"""v_lshrrev_b32 {vRR}, 2, {vN}
                   v_and_b32 {vCC8}, 3, {vL}
                   v_lshlrev_b32 {vCC8}, 3, {vCC8}""")

    def wuk(self, i):
        a = self.a
        a(f"s_add_u32 m0, s21, {i*1024}")
        if i:
            a(f"s_add_u32 s47, s47, {4*8192}")
        a(f"buffer_load_dwordx4 {'v17' if i%2==0 else 'v18'}, {R2}, s47 offen{self.nt('nt_w')} lds", ("wuk", i))

    def xload(self, vXA, vXT):
        a = self.a
        for k in range(4):
            a(f"buffer_load_dwordx2 {vr(24+2*k,2)}, {vXA}, {R0}, 0 offen offset:{256*k}", "x")
        a(f"buffer_load_dword v32, {vXT}, {R0}, 0 offen offset:1024", "x")

    def xaddr(self, vXA, vXT):
        self.a(f"""v_lshrrev_b32 v7, 5, {vL}
                   v_mul_u32_u24 v7, 1152, v7
                   v_and_b32 v8, 31, {vL}
                   v_lshl_add_u32 {vXA}, v8, 3, v7
                   v_lshl_add_u32 {vXT}, v8, 2, v7""")

    def ln(self, vXA, vXT, XN=0):
        a = self.a
        X = 24
        if XN:
            a(f"v_add_u32 {vXA}, {XN}, {vXA}\nv_add_u32 {vXT}, {XN}, {vXT}")
            XN = 0
        U = 34
        for k in range(9):
            a(f"v_lshlrev_b32 {vr(U+2*k)}, 16, {vr(X+k)}\nv_and_b32 {vr(U+2*k+1)}, 0xffff0000, {vr(X+k)}")
        a(f"v_pk_add_f32 v[52:53], {vr(U,2)}, {vr(U+2,2)}\nv_pk_add_f32 v[54:55], {vr(U+4,2)}, {vr(U+6,2)}")
        for k in range(4, 8, 2):
            a(f"v_pk_add_f32 v[52:53], v[52:53], {vr(U+2*k,2)}\nv_pk_add_f32 v[54:55], v[54:55], {vr(U+2*k+2,2)}")
        a(f"v_pk_add_f32 v[52:53], v[52:53], {vr(U+16,2)}\nv_pk_add_f32 v[52:53], v[52:53], v[54:55]\nv_add_f32 v52, v52, v53")
        self.red32("v_add_f32", "v52", "v53")
        a("v_mul_f32 v52, 0x3ae38e39, v52")
        a("v_cvt_pk_bf16_f32 v54, v52, v52\nv_mov_b32 v53, v52\nv_and_b32 v54, 0xffff0000, v54\nv_mov_b32 v55, v54")
        D = 56
        for k in range(9):
            a(f"v_pk_add_f32 {vr(D+2*k,2)}, {vr(U+2*k,2)}, v[52:53] neg_lo:[0,1] neg_hi:[0,1]")
        a(f"v_pk_mul_f32 v[74:75], {vr(D,2)}, {vr(D,2)}\nv_pk_mul_f32 v[76:77], {vr(D+2,2)}, {vr(D+2,2)}")
        for k in range(2, 9):
            t = "v[74:75]" if k % 2 == 0 else "v[76:77]"
            a(f"v_pk_fma_f32 {t}, {vr(D+2*k,2)}, {vr(D+2*k,2)}, {t}")
        a("v_pk_add_f32 v[74:75], v[74:75], v[76:77]\nv_add_f32 v74, v74, v75")
        fill = [f"v_pk_add_f32 {vr(D+2*k,2)}, {vr(U+2*k,2)}, v[54:55] neg_lo:[0,1] neg_hi:[0,1]" for k in range(9)]
        fill += [f"v_cvt_pk_bf16_f32 {vr(X+k)}, {vr(D+2*k)}, {vr(D+2*k+1)}" for k in range(9)]
        for k in range(9):
            fill += [f"v_lshlrev_b32 {vr(U+2*k)}, 16, {vr(X+k)}", f"v_and_b32 {vr(U+2*k+1)}, 0xffff0000, {vr(X+k)}"]
        chain = [f"v_add_f32_dpp v74, v74, v74 row_ror:{r} row_mask:0xf bank_mask:0xf" for r in (8, 4, 2, 1)]
        chain += ["v_mov_b32 v75, v74", "v_permlane16_swap_b32 v74, v75", "v_add_f32 v74, v74, v75",
                  "v_mul_f32 v74, 0x3ae38e39, v74", "v_cvt_pk_bf16_f32 v74, v74, v74", "v_and_b32 v74, 0xffff0000, v74",
                  "v_add_f32 v74, 0x3727c5ac, v74", "v_cvt_pk_bf16_f32 v74, v74, v74", "v_and_b32 v74, 0xffff0000, v74",
                  "v_sqrt_f32 v74, v74", "v_cvt_pk_bf16_f32 v74, v74, v74", "v_and_b32 v74, 0xffff0000, v74",
                  "v_rcp_f32 v74, v74", "v_mov_b32 v75, v74"]
        for ins in chain:
            for _ in range(2):
                if fill:
                    a(fill.pop(0))
            a(ins)
        for ins in fill:
            a(ins)
        for k in range(9):
            a(f"v_pk_mul_f32 {vr(U+2*k,2)}, {vr(U+2*k,2)}, v[74:75]")
        for k in range(9):
            a(f"v_cvt_pk_bf16_f32 {vr(X+k)}, {vr(U+2*k)}, {vr(U+2*k+1)}")
            if k % 2 == 1:
                a(f"ds_write_b64 {vXA}, {vr(X+k-1,2)} offset:{XN+128*(k-1)}")
        a(f"ds_write_b32 {vXT}, {vr(X+8)} offset:{XN+1024}")

    def wq_issue(self, n, v0, v1, smem, slds):
        a = self.a
        for i in range(n):
            a(f"s_add_u32 m0, {slds}, {i*1024}")
            if i:
                a(f"s_add_u32 {smem}, {smem}, {4*8192}")
            a(f"buffer_load_dwordx4 {v0 if i%2==0 else v1}, {R1}, {smem} offen{self.nt('nt_w')} lds", "wq")

    def p1a(self, vT0, vT1, vXB, XB, W, Dq, nf, tail, soff, mid=None):
        a = self.a
        st = 4*nf + 2
        for s in range(nf):
            a(f"ds_read2_b64 {vr(XB+4*s,4)}, {vXB} offset0:{8*s} offset1:{8*s+4}")
        if tail:
            a(f"ds_read_b64 {vr(XB+4*nf,2)}, {vXB} offset:{64*nf}")
        ns = nf + (1 if tail else 0)
        def rd(s):
            for t, vt in enumerate((vT0, vT1)):
                b = W + st*t + 4*s
                a(f"ds_read_b64_tr_b16 {vr(b,2)}, {vt} offset:{32*s*256}", f"wq{s}")
                if s < nf:
                    a(f"ds_read_b64_tr_b16 {vr(b+2,2)}, {vt} offset:{(32*s+16)*256}", f"wq{s}")
        for s in range(min(ns, 3)):
            rd(s)
        if mid:
            mid()
        for s in range(ns):
            a.wait_ds(f"wq{s}")
            for t in range(2):
                b = W + st*t + 4*s
                cin = "0" if s == 0 else vr(Dq+4*t, 4)
                if s < nf:
                    a(f"{MM} {vr(Dq+4*t,4)}, {vr(b,4)}, {vr(XB+4*s,4)}, {cin}")
                else:
                    a(f"v_mfma_f32_16x16x16_bf16 {vr(Dq+4*t,4)}, {vr(b,2)}, {vr(XB+4*nf,2)}, {cin}")
            if s + 3 < ns:
                rd(s + 3)
        self.merge(Dq, 2)
        return self.xpub(Dq, soff, "qst")

    def ga(self):
        a = self.a
        c = self.cfg
        pre_vm = list(a.vm)
        a.c("===== group A: absorbed query, then FFN / output projection roles =====")
        RA = 144 - c["qb"]
        a(f"""v_lshlrev_b32 v7, 5, {vG}
              v_lshlrev_b32 v8, 4, {vN}
              v_xor_b32 v7, v7, v8
              v_lshl_add_u32 v17, {vG}, 13, v7
              s_and_b32 s3, {sW}, 1
              s_lshl_b32 s3, s3, 7
              v_xor_b32 v13, s3, v17
              v_xor_b32 v14, 0x80, v13
              s_lshl_b32 s46, {sH}, 8
              s_mul_i32 s44, {sJ}, {144*8192}
              s_mul_i32 s3, {sW}, {RA//4*8192}
              s_add_u32 s44, s44, s3
              s_add_u32 s44, s44, s46
              s_mul_i32 s45, {sW}, {RA//4*256}
              s_add_u32 s45, s45, {WQL}
              s_lshl_b32 s48, {sH}, 13
              s_lshl_b32 s3, {sW}, 11
              s_add_u32 s48, s48, s3
              s_add_u32 s48, s48, {QF_OFF}
              s_lshl_b32 s3, {sJ}, 8
              s_add_u32 s49, s48, s3""")
        self.xaddr("v12", "v16")
        if c["gapf"] & 1:
            a("s_load_dwordx2 s[52:53], s[0:1], 32")
        a("s_waitcnt lgkmcnt(0)")
        if c["gapf"] & 2:
            a("s_mov_b64 s[54:55], s[36:37]")
        self.epoch_load()
        def gapf():
            if c["gapf"] & 1:
                a(f"""v_lshrrev_b32 v7, 1, {vL}
                      v_lshlrev_b32 v7, 13, v7
                      v_and_b32 v8, 1, {vL}
                      v_lshl_add_u32 v7, v8, 7, v7
                      s_lshl_b32 s3, {sJ}, 20
                      s_lshl_b32 s4, {sW}, 18
                      s_add_u32 s3, s3, s4
                      s_lshl_b32 s4, {sH}, 8
                      s_add_u32 s3, s3, s4
                      v_add_u32 v7, s3, v7""")
                a("global_load_dword v9, v7, s[52:53]", "gapf")
            if c["gapf"] & 2:
                a(f"""s_lshl_b32 s3, {sA}, 1
                      s_lshr_b32 s4, {sW}, 1
                      s_add_u32 s3, s3, s4
                      s_lshl_b32 s3, s3, 15
                      s_lshr_b32 s4, {sX}, 2
                      s_lshl_b32 s4, s4, 22
                      s_add_u32 s3, s3, s4
                      s_and_b32 s4, {sX}, 3
                      s_lshl_b32 s4, s4, 13
                      s_add_u32 s3, s3, s4
                      s_and_b32 s4, {sW}, 1
                      s_lshl_b32 s4, s4, 12
                      s_add_u32 s3, s3, s4
                      s_add_u32 s3, s3, {3072*1024}
                      v_and_b32 v7, 31, {vL}
                      v_lshl_add_u32 v7, v7, 7, s3""")
                a("global_load_dword v9, v7, s[54:55]", "gapf")
        XS = 82
        def setup():
            self.lane_late()
            self.common_setup()
            a(f"""v_and_b32 v7, 1, {vN}
                  v_mul_u32_u24 v8, 1152, v7
                  v_lshl_add_u32 v81, {vG}, 3, v8
                  s_mul_i32 s3, {sJ}, 288
                  v_add_u32 v80, s3, v81
                  s_lshl_b32 s3, {sW}, 6
                  v_xor_b32 v10, s3, {vX78}
                  v_lshl_add_u32 v8, {vG}, 2, {vRR}
                  v_lshl_add_u32 v10, v8, 8, v10
                  v_add_u32 v78, {WQL}, v10
                  v_xor_b32 v79, 32, v78
                  v_lshlrev_b32 v8, 8, v7
                  v_lshl_add_u32 v8, {vG}, 4, v8
                  v_add_u32 v87, {QL}, v8
                  v_lshlrev_b32 v7, 15, v7
                  v_lshrrev_b32 v8, 1, {vN}
                  v_lshl_add_u32 v7, v8, 5, v7
                  v_lshl_add_u32 v7, {vG}, 3, v7
                  v_cmp_gt_u32 vcc, 8, {vN}
                  v_cndmask_b32 v88, {vOOB}, v7, vcc
                  v_lshrrev_b32 v7, 1, {vG}
                  v_and_b32 v8, 7, {vN}
                  v_xor_b32 v7, v7, v8
                  v_lshlrev_b32 v7, 5, v7
                  v_and_b32 v8, 1, {vG}
                  v_lshl_add_u32 v7, v8, 4, v7
                  v_lshl_add_u32 v7, {vN}, 8, v7
                  s_lshl_b32 s3, {sW}, 14
                  s_add_u32 s3, s3, {WUKL}
                  v_add_u32 {vr(XS)}, s3, v7
                  s_lshl_b32 s50, {sP}, 8
                  s_lshl_b32 s3, {sW}, 7
                  s_add_u32 s50, s50, s3
                  s_add_u32 s50, s50, {QA_OFF}
                  s_mov_b32 s51, 0x3e0293ee""")
            for s in range(1, 4):
                a(f"v_xor_b32 {vr(XS+s)}, {64*s}, {vr(XS)}")
            self.xlds_addr("v86", QL)
        def touch():
            if c["fast"]:
                a(f"v_lshlrev_b32 v7, 5, {vL}")
                a(f"buffer_load_dword v9, v7, {WS}, s48 offen sc1", "touch")
        l1, l2, l3 = a.newlab("Lw"), a.newlab("Lw"), a.newlab("Lw")
        a(f"s_cmp_eq_u32 {sW}, 0\ns_cbranch_scc0 {l1}")
        keep = list(a.vm)
        self.xload("v12", "v16")
        self.wq_issue(RA//16, "v13", "v14", "s44", "s45")
        touch()
        self.ts(1)
        setup()
        a.wait_vm("x")
        self.ts(2)
        self.ln("v12", "v16")
        self.ts(3)
        a.wait_vm("wq")
        a(f"s_branch {l2}")
        a.label(l1)
        a.vm = list(keep)
        self.wq_issue(RA//16, "v13", "v14", "s44", "s45")
        touch()
        a(f"""s_sub_u32 s3, {sW}, 1
              s_mul_i32 s3, s3, 11
              s_lshl_b32 s21, s3, 10
              s_add_u32 s21, s21, {WUKL}
              s_lshl_b32 s47, s3, 15
              s_add_u32 s47, s47, s46
              s_lshl_b32 s46, {sJ}, 20
              s_add_u32 s47, s47, s46
              s_and_b32 s3, s3, 1
              s_lshl_b32 s3, s3, 7
              v_xor_b32 v17, s3, v17
              v_xor_b32 v18, 0x80, v17""")
        for i in range(c["uk_ln"]):
            self.wuk(i)
        setup()
        for i in range(c["uk_ln"], 10):
            self.wuk(i)
        a.wait_vm("wq")
        a(f"s_cmp_eq_u32 {sW}, 3\ns_cbranch_scc1 {l2}")
        self.wuk(10)
        a.label(l2)
        self.srd(R1, 7, 576*9216)
        self.srd(R3, 8, 576*9216)
        self.srd(R2, 9, 4608*1152)
        a("s_mov_b32 s43, 0x20000\ns_waitcnt lgkmcnt(0)")
        self.ts(4)
        self.barrier()
        if c["gapf_at"] == 0:
            gapf()
        slow = self.p1a("v78", "v79", "v80", 112, 132, 168, RA//32, True, "s49", mid=self.tags_setup)
        self.ts(5)
        a(f"""v_and_b32 v7, 1, {vG}
              v_cmp_eq_u32 vcc, 0, v7
              v_mov_b32 v7, {sTK[0]}
              v_mov_b32 v8, {sTK[2]}
              v_cndmask_b32 v90, v8, v7, vcc
              v_mov_b32 v7, {sTK[1]}
              v_mov_b32 v8, {sTK[3]}
              v_cndmask_b32 v91, v8, v7, vcc""")
        QR, UK = 92, 0
        mk = lambda v: [f"buffer_load_dwordx4 {vr(QR+4*k,4)}, {v}, {WS}, s48 offen offset:{1024*k} sc1" for k in range(2 if c['qb'] else 1)]
        a(f"s_waitcnt vmcnt({1 + c['q_at'] + (bin(c['gapf']).count('1') if c['gapf_at'] == 0 else 0) if c['fast'] else 0})")
        for s in mk(vXI):
            a(s, "qp")
        npf = 0
        if c["gapf_at"] == 1:
            gapf()
        if c["gapf_at"] <= 1:
            npf = bin(c["gapf"]).count("1")
        a(f"s_waitcnt vmcnt({(3 if c['qb'] else 2) + npf})")
        self.ts(10)
        self.barrier()
        sk1 = a.newlab("Lsk")
        a(f"s_cmp_ge_u32 {sW}, 2\ns_cbranch_scc1 {sk1}")
        for tt in range(4):
            for s in range(4):
                a(f"ds_read_b128 {ar(UK+16*tt+4*s,4)}, {vr(XS+s)} offset:{4096*tt}")
        a.label(sk1)
        self.poll2(mk, vXI, F(QR, 8 if c["qb"] else 4), "qp", slow, every=4)
        self.ts(11)
        self.cnt(13)
        if c["gapf_at"] == 2:
            gapf()
        if c["qb"]:
            a(f"v_pk_add_f32 {vr(QR,2)}, {vr(QR,2)}, {vr(QR+4,2)}\nv_pk_add_f32 {vr(QR+2,2)}, {vr(QR+2,2)}, {vr(QR+6,2)}")
        self.xsum(QR, "v86")
        self.barrier()
        sk2 = a.newlab("Lsk")
        a(f"s_cmp_ge_u32 {sW}, 2\ns_cbranch_scc1 {sk2}")
        for s in range(4):
            a(f"ds_read_b128 {vr(QR+4*s,4)}, v87 offset:{64*s}", ("q", s))
        D = 112
        for s in range(4):
            a.wait_ds(("q", s))
            for tt in range(4):
                cin = "0" if s == 0 else vr(D+4*tt, 4)
                a(f"{MM} {vr(D+4*tt,4)}, {ar(UK+16*tt+4*s,4)}, {vr(QR+4*s,4)}, {cin}")
        self.merge(D, 4)
        for k in range(4):
            a(f"v_mul_f32 {vr(D+k)}, s51, {vr(D+k)}")
        self.packb([vr(D), vr(D+1)], [(vr(D), vr(D+1)), (vr(D+2), vr(D+3))], ["v90", "v91"], [vr(D+4), vr(D+5)])
        a(f"buffer_store_dwordx2 {vr(D,2)}, v88, {WS}, s50 offen sc1")
        self.ts(12)
        a.label(sk2)
        self.xt_store()
        a(f"s_cmp_lt_u32 {sA}, 12\ns_cbranch_scc0 L_ga_po")
        self.ff()
        a.label("L_ga_po")
        self.po()
        a.vm = pre_vm
        a.ds = []

    def ff(self):
        a = self.a
        c = self.cfg
        a.c("----- FF: gate/up partials (144 rows x 192 columns), activation, down projection (144 rows x 192 columns) -----")
        sCT, sKQ = "s13", sJ
        VO, VD = 150, 153
        a(f"""s_lshr_b32 {sCT}, {sA}, 2
              s_mul_i32 s48, {sKQ}, {144*9216}
              s_mul_i32 s3, {sX}, 1152
              s_add_u32 s48, s48, s3
              s_mul_i32 s14, {sCT}, 384
              s_add_u32 s48, s48, s14
              s_and_b32 s15, {sW}, 1
              s_mul_i32 s3, s15, {8*9216}
              s_add_u32 s50, s48, s3
              s_add_u32 s50, s50, {128*9216}
              s_mul_i32 s3, {sW}, {8*9216}
              s_add_u32 s48, s48, s3
              s_mul_i32 s49, {sW}, 3072
              s_add_u32 s49, s49, {FBASE}""")
        self.rows384_voffs(VO, 9216)
        D0 = 4*24576 + 12288
        ops = [("g", s, m, i) for s in range(4) for m in range(2) for i in range(3)] + [("h", 4, 0, i) for i in range(3)]
        ops += [("d", s, 0, i) for s in range(5) for i in range(3)]
        def issue(k):
            kind, s, m, i = ops[k]
            if c["nof"]:
                a(f"buffer_load_dword v9, {vOOB}, {R2}, 0 offen", ("st", k))
                return
            if kind == "g":
                if i == 0:
                    a(f"s_add_u32 m0, s49, {s*24576 + m*12288}")
                    if m == 0 and s > 0:
                        a(f"s_add_u32 s48, s48, {32*9216}")
                a(f"buffer_load_dwordx4 {vr(VO+i)}, {R1 if m==0 else R3}, s48 offen offset:{1024*i}{self.nt('nt_w')} lds", ("st", k))
            elif kind == "h":
                if i == 0:
                    a(f"s_add_u32 m0, s49, {4*24576}")
                a(f"buffer_load_dwordx4 {vr(VO+i)}, {R4}, s50 offen offset:{1024*i}{self.nt('nt_w')} lds", ("st", k))
            else:
                if i == 0:
                    if s < 4:
                        a(f"s_add_u32 m0, s49, {D0 + s*12288 if s < 3 else 0}")
                        if s:
                            a(f"s_add_u32 s51, s51, {32*1152}")
                    else:
                        a(f"s_add_u32 m0, s57, 12288")
                a(f"buffer_load_dwordx4 {vr(VD+i)}, {R2}, {'s51' if s < 4 else 's21'} offen offset:{1024*i}{self.nt('nt_w')} lds", ("st", k))
        XB = 160
        VT, vPS, vPA, vHW, vHR, vYS, VT2 = "v156", "v157", "v158", "v159", "v178", "v179", "v111"
        ACC = 180
        FR = 204
        PR = 24
        HB = 56
        mk = lambda v: [f"buffer_load_dwordx4 {vr(PR+4*k,4)}, {v}, {WS}, s{68+k if not c['ts'] else (44, 45, 46, 47, 4, 5, 10, 101)[k]} offen sc1".replace("s(", "s") for k in range(8)]
        SO = [f"s{68+k}" if not c["ts"] else f"s{(44, 45, 46, 47, 4, 5, 10, 101)[k]}" for k in range(8)]
        def setup():
            a(f"s_mul_i32 s3, {sKQ}, 288\nv_add_u32 v7, s3, v81")
            for s in range(4):
                a(f"ds_read2_b64 {vr(XB+4*s,4)}, v7 offset0:{8*s} offset1:{8*s+4}")
            a(f"ds_read_b64 {vr(XB+16,2)}, v7 offset:256")
            self.tile384_addr(VT, FBASE)
            self.rows384_voffs(VD, 1152)
            self.out3_addr(vPS, 128)
            self.out3_addr(vYS, 4096)
            a(f"""v_mov_b32 {VT2}, {VT}
                  s_cmp_lt_u32 {sW}, 2
                  s_cselect_b64 s[40:41], s[28:29], s[36:37]
                  s_mov_b32 s42, {576*9216}
                  s_lshl_b32 s56, {sX}, 2
                  s_add_u32 s56, s56, {sKQ}
                  s_mul_i32 s51, s56, {144*1152}
                  s_add_u32 s51, s51, s14
                  s_mul_i32 s3, s15, {8*1152}
                  s_add_u32 s21, s51, s3
                  s_add_u32 s21, s21, {128*1152}
                  s_mul_i32 s3, {sW}, {8*1152}
                  s_add_u32 s51, s51, s3
                  s_mul_i32 s57, s15, 3072
                  s_add_u32 s57, s57, {FBASE}
                  s_mul_i32 s52, s56, {2*4608}
                  s_mul_i32 s3, {sCT}, {12*128}
                  s_add_u32 s52, s52, s3
                  s_lshl_b32 s3, {sW}, 7
                  s_add_u32 s52, s52, s3
                  s_add_u32 s52, s52, {PF_OFF}
                  s_add_u32 s53, s52, 4608
                  s_add_u32 s54, s52, {SLOW}
                  s_add_u32 s55, s53, {SLOW}
                  s_lshl_b32 s56, s56, 7
                  s_mul_i32 s3, {sCT}, {12*4096}
                  s_add_u32 s56, s56, s3
                  s_lshl_b32 s3, {sW}, 12
                  s_add_u32 s56, s56, s3
                  s_add_u32 s56, s56, {YP_OFF}
                  v_lshrrev_b32 v7, 3, {vL}
                  v_lshl_add_u32 v7, v7, 2, {sW}
                  v_mov_b32 v8, {sW}
                  v_cmp_gt_u32 vcc, 9, v7
                  v_cndmask_b32 v7, v8, v7, vcc
                  v_and_b32 v8, 7, {vL}
                  v_lshlrev_b32 v8, 4, v8
                  v_lshl_add_u32 {vPA}, v7, 7, v8
                  v_bfe_u32 v8, {vL}, 2, 1
                  v_mul_u32_u24 v8, 320, v8
                  v_lshl_add_u32 v8, v7, 5, v8
                  v_add_u32 v8, v8, {vCC8}
                  v_add_u32 {vHW}, {QL}, v8
                  v_and_b32 v7, 1, {vN}
                  v_mul_u32_u24 v7, 320, v7
                  v_lshl_add_u32 v7, {vG}, 3, v7
                  v_add_u32 {vHR}, {QL}, v7
                  s_mul_i32 {SO[0]}, {sX}, {8*4608}
                  s_mul_i32 s3, {sKQ}, {9*128}
                  s_add_u32 {SO[0]}, {SO[0]}, s3
                  s_add_u32 {SO[0]}, {SO[0]}, {PF_OFF}
                  v_mov_b32 v232, 0xbdd2d3e8
                  v_mov_b32 v233, 0xbdd2d3e8
                  v_mov_b32 v234, 0xc0135761
                  v_mov_b32 v235, 0xc0135761""")
            for k in range(1, 8):
                a(f"s_add_u32 {SO[k]}, {SO[0]}, {4608*k}")
        pslow = "\n".join(f"buffer_store_dwordx4 {vr(ACC+12*m,4)}, {vPS}, {WS}, s{(54 if c['fast'] else 52)+m} offen sc1" for m in range(2))
        def touch():
            if c["fast"]:
                for k in range(8):
                    a(f"buffer_load_dword v9, {vPA}, {WS}, {SO[k]} offen sc1", "touch")

        def compute(s):
            a.wait_vm(("st", 6*s+5 if s < 4 else 26))
            self.barrier()
            for m in range(2):
                for u in range(3):
                    if s < 4:
                        for hh in range(2):
                            a(f"ds_read_b64_tr_b16 {vr(FR+12*m+4*u+2*hh,2)}, {VT} offset:{(s&1)*24576+m*12288+hh*6144+u*128}", ("f", m, u))
                    else:
                        a(f"ds_read_b64_tr_b16 {vr(FR+12*m+4*u,2)}, {VT} offset:{m*6144+u*128}", ("f", m, u))
            if s in (1, 3):
                a(f"v_add_u32 {VT}, {2*24576}, {VT}")
            def mm(m, u):
                d = ACC + 12*m + 4*u
                a.wait_ds(("f", m, u))
                if s < 4:
                    a(f"{MM} {vr(d,4)}, {vr(FR+12*m+4*u,4)}, {vr(XB+4*s,4)}, {'0' if s == 0 else vr(d,4)}")
                else:
                    a(f"v_mfma_f32_16x16x16_bf16 {vr(d,4)}, {vr(FR+12*m+4*u,2)}, {vr(XB+16,2)}, {vr(d,4)}")
            for m in range(2):
                for u in range(3):
                    if s < 4:
                        self.q += ([lambda: None] * 3 if m + u == 0 else []) + [lambda m=m, u=u: mm(m, u)]
                    else:
                        mm(m, u)
            if s == 4:
                self.ts(7)
                for m in range(2):
                    d = ACC + 12*m
                    self.merge(d, 3)
                    self.tagf(d, 4)
                    if c["fast"]:
                        a(f"buffer_store_dwordx4 {vr(d,4)}, {vPS}, {WS}, s{52+m} offen")
                if not (c["fast"] and c["pre_late"]) and not c["noslow"] & 2:
                    self.xt_slow("v110", pslow)
                self.ts(8)
        d1, sw, d2 = c["f_d1"], c["f_sw"], c["f_d2"]
        hooks = {c["f_pre"]: [self.barrier]}
        hooks.setdefault(min(d1, 12), []).append(setup)
        hooks.setdefault(c["f_touch"], []).append(touch)
        hooks.setdefault(20, []).append(lambda: self.xt_load("v110"))
        for s in range(5):
            n = 6*(s+1) if s < 4 else 27
            k = min(n + min(c['f_lag'], d1 if n + d1 < sw else d2), 42)
            assert s > 1 or k <= 36
            hooks.setdefault(k, []).append(lambda s=s: compute(s))
        self.stream(42, d1, sw, d2, issue, hooks, dip=(c['dip0'], c['dip1'], c['dipd']))
        def dread(steps):
            for s in steps:
                for u in range(3):
                    for hh in range(2 if s < 4 else 1):
                        if s < 3:
                            a(f"ds_read_b64_tr_b16 {ar(12*s+4*u+2*hh,2)}, {VT} offset:{12288+s*12288+hh*6144+u*128}")
                        else:
                            a(f"ds_read_b64_tr_b16 {ar(12*s+4*u+2*hh,2)}, {VT2} offset:{(s-3)*12288+hh*6144+u*128}")
        if c["ff_tail"]:
            a.wait_vm(("st", 35))
            self.barrier()
            dread((0, 1, 2))
        a.wait_vm(("st", 41 - c["hp_at"]))
        for s in mk(vPA):
            a(s, "hp")
        if not c["ff_tail"]:
            a.wait_vm(("st", 41))
            self.ts(6)
            self.barrier()
            dread((3, 4, 0, 1, 2))
        self.poll2(mk, vPA, F(PR, 32), "hp", pslow if c["pre_late"] else None, every=8)
        self.ts(9)
        self.cnt(14)
        G, U, T = PR, PR+4, PR+8
        for k in range(4):
            a(f"v_pk_add_f32 {vr(PR+2*k,2)}, {vr(PR+2*k,2)}, {vr(PR+8+2*k,2)}\nv_pk_add_f32 {vr(PR+16+2*k,2)}, {vr(PR+16+2*k,2)}, {vr(PR+24+2*k,2)}")
        for k in range(4):
            a(f"v_pk_add_f32 {vr(PR+2*k,2)}, {vr(PR+2*k,2)}, {vr(PR+16+2*k,2)}")
        for k in range(4):
            a(f"v_cvt_pk_bf16_f32 {vr(T+k)}, {vr(PR+2*k)}, {vr(PR+2*k+1)}")
        for k in range(4):
            a(f"v_lshlrev_b32 {vr(PR+2*k)}, 16, {vr(T+k)}\nv_and_b32 {vr(PR+2*k+1)}, 0xffff0000, {vr(T+k)}")
        for k in range(2):
            a(f"v_pk_mul_f32 {vr(T+2*k,2)}, {vr(G+2*k,2)}, {vr(G+2*k,2)}")
        for k in range(2):
            a(f"v_pk_fma_f32 {vr(T+2*k,2)}, {vr(T+2*k,2)}, v[232:233], v[234:235]")
        for k in range(2):
            a(f"v_pk_mul_f32 {vr(T+2*k,2)}, {vr(T+2*k,2)}, {vr(G+2*k,2)}")
        for k in range(4):
            a(f"v_exp_f32 {vr(T+k)}, {vr(T+k)}")
        for k in range(4):
            a(f"v_add_f32 {vr(T+k)}, 1.0, {vr(T+k)}")
        for k in range(4):
            a(f"v_rcp_f32 {vr(T+k)}, {vr(T+k)}")
        for k in range(2):
            a(f"v_pk_mul_f32 {vr(T+2*k,2)}, {vr(T+2*k,2)}, {vr(G+2*k,2)}")
        for k in range(2):
            a(f"v_cvt_pk_bf16_f32 {vr(T+4+k)}, {vr(T+2*k)}, {vr(T+2*k+1)}")
        for k in range(2):
            a(f"v_lshlrev_b32 {vr(T+2*k)}, 16, {vr(T+4+k)}\nv_and_b32 {vr(T+2*k+1)}, 0xffff0000, {vr(T+4+k)}")
        for k in range(2):
            a(f"v_pk_mul_f32 {vr(T+2*k,2)}, {vr(T+2*k,2)}, {vr(U+2*k,2)}")
        for k in range(2):
            a(f"v_cvt_pk_bf16_f32 {vr(T+4+k)}, {vr(T+2*k)}, {vr(T+2*k+1)}")
        a(f"ds_write_b64 {vHW}, {vr(T+4,2)}\ns_waitcnt lgkmcnt(0)")
        self.barrier()
        for s in range(4):
            a(f"ds_read2_b64 {vr(HB+4*s,4)}, {vHR} offset0:{8*s} offset1:{8*s+4}", ("hb", s))
            if c["ff_tail"] and s == 2:
                dread((3,))
        if c["ff_tail"]:
            dread((4,))
        a(f"ds_read_b64 {vr(HB+16,2)}, {vHR} offset:256", ("hb", 4))
        Y = 204
        for s in range(5):
            a.wait_ds(("hb", s))
            for u in range(3):
                if s < 4:
                    a(f"{MM} {vr(Y+4*u,4)}, {ar(12*s+4*u,4)}, {vr(HB+4*s,4)}, {'0' if s == 0 else vr(Y+4*u,4)}")
                else:
                    a(f"v_mfma_f32_16x16x16_bf16 {vr(Y+4*u,4)}, {ar(12*s+4*u,2)}, {vr(HB+16,2)}, {vr(Y+4*u,4)}")
        self.merge(Y, 3)
        self.tagf(Y, 4)
        a(f"buffer_store_dwordx4 {vr(Y,4)}, {vYS}, {WS}, s56 offen sc1")
        if c["fast"] and c["pre_late"] and not c["noslow"] & 2:
            a(pslow)
        self.end()

    def po(self):
        a = self.a
        c = self.cfg
        a.c("----- PO: output projection of one head -----")
        VO = 150
        self.srd(R1, 5, 4096*1152)
        a(f"""s_lshl_b32 s13, {sX}, 2
              s_add_u32 s13, s13, {sJ}
              s_mul_i32 s48, s13, {128*1152}
              s_mul_i32 s49, {sW}, 9216
              s_add_u32 s48, s48, s49
              s_add_u32 s49, s49, {FBASE}""")
        self.rows1152_voffs(VO)
        a("s_waitcnt lgkmcnt(0)")
        self.barrier()
        def issue(k):
            s, i = divmod(k, 9)
            if i % 4 == 0:
                a(f"s_add_u32 m0, s49, {s*36864 + i*1024}")
            if i == 0 and s:
                a(f"s_add_u32 s48, s48, 36864")
            a(f"buffer_load_dwordx4 {vr(VO+i)}, {R1}, s48 offen offset:{1024*(i&3)}{self.nt('nt_w')} lds", ("st", k))
        VT, vSS, vCW, vCR = "v160", "v161", "v162", "v163"
        CR = 24
        mk = lambda v: [f"buffer_load_dwordx4 {vr(CR,4)}, {v}, {WS}, s50 offen sc1"]
        def setup():
            self.tile384_addr(VT, FBASE, 1152)
            self.out3_addr(vSS, 4096)
            self.xlds_addr(vCW, QL)
            a(f"""v_and_b32 v7, 1, {vN}
                  v_lshlrev_b32 v7, 8, v7
                  v_lshl_add_u32 v7, {vG}, 3, v7
                  v_add_u32 {vCR}, {QL}, v7
                  s_lshl_b32 s50, s13, 12
                  s_lshl_b32 s3, {sW}, 10
                  s_add_u32 s50, s50, s3
                  s_add_u32 s50, s50, {CF_OFF}
                  s_lshl_b32 s52, {sW}, 12
                  s_lshl_b32 s3, s13, 7
                  s_add_u32 s52, s52, s3
                  s_add_u32 s52, s52, {SP_OFF}
                  s_add_u32 s53, s52, {12*4096}
                  s_add_u32 s54, s52, {24*4096}""")
            if c["fast"]:
                a(f"buffer_load_dword v9, {vL16}, {WS}, s50 offen sc1", "touch")
        def pre(s):
            a.wait_vm(("st", 9*s+8))
            self.barrier()
            for u in range(9):
                for hh in range(2):
                    a(f"ds_read_b64_tr_b16 {ar(36*s+4*u+2*hh,2)}, {VT} offset:{hh*16*1152+u*128}")
            if s < 3:
                a(f"v_add_u32 {VT}, 36864, {VT}")
        d1, sw, d2 = c["o_d1"], c["o_sw"], c["o_d2"]
        hooks = {min(d1, 12): [setup]}
        for s in range(3):
            k = min(9*(s+1) + min(c["f_lag"], d1 if 9*(s+1) + d1 < sw else d2), 36)
            hooks.setdefault(k, []).append(lambda s=s: pre(s))
        self.stream(36, d1, sw, d2, issue, hooks)
        pre(3)
        self.ts(6)
        a(mk(vXI)[0], "cxp")
        self.poll2(mk, vXI, F(CR, 4), "cxp", every=16)
        self.ts(9)
        self.xsum(CR, vCW)
        self.barrier()
        for s in range(4):
            a(f"ds_read2_b64 {vr(CR+4*s,4)}, {vCR} offset0:{8*s} offset1:{8*s+4}", ("cb", s))
        D = 176
        fill = []
        for q in range(3):
            for s in range(4):
                if q == 0:
                    a.wait_ds(("cb", s))
                for u in range(3*q, 3*q+3):
                    a(f"{MM} {vr(D+4*u,4)}, {ar(36*s+4*u,4)}, {vr(CR+4*s,4)}, {'0' if s == 0 else vr(D+4*u,4)}")
                    if s >= 1:
                        for _ in range(2):
                            if fill:
                                a(fill.pop(0))
            d = D + 12*q
            fill = [f"v_cndmask_b32 {vr(d+k)}, {vr(d+k)}, {vr(d+4+k)}, {M2}" for k in range(4)]
            fill += [f"v_cndmask_b32 {vr(d+k)}, {vr(d+k)}, {vr(d+8+k)}, {M4}" for k in range(4)]
            fill += [f"v_and_or_b32 {vr(d+k)}, {vr(d+k)}, {vMF}, {vTB[k]}" for k in range(4)]
            fill += [f"buffer_store_dwordx4 {vr(d,4)}, {vSS}, {WS}, s{52+q} offen sc1"]
        for ins in fill:
            a(ins)
        self.end()

    def final(self):
        a = self.a
        a.c("----- final: one wave reduces the partials of one 16-column tile -----")
        S, Y, T = 128, 144, 160
        a(f"""s_lshl_b32 s44, s56, 12
              s_add_u32 s45, s44, {YP_OFF}
              s_add_u32 s44, s44, {SP_OFF}""")
        if self.cfg["fin4"]:
            a(f"""s_lshl_b32 s3, {sW}, 10
                  s_add_u32 s44, s44, s3
                  s_add_u32 s45, s45, s3
                  s_add_u32 s3, s3, {PB}
                  v_add_u32 v10, s3, {vL16}
                  v_add_u32 v11, {PB}, {vL16}""")
            gs = [([f"buffer_load_dwordx4 {vr(S,4)}, {vL16}, {WS}, s44 offen sc1"], F(S, 4))]
            gy = [([f"buffer_load_dwordx4 {vr(Y,4)}, {vL16}, {WS}, s45 offen sc1"], F(Y, 4))]
            self.poll(gs + gy, "v7", "fs")
            for k in range(4):
                a(f"v_permlane32_swap_b32 {vr(S+k)}, {vr(Y+k)}")
            a(f"v_pk_add_f32 {vr(S,2)}, {vr(S,2)}, {vr(Y,2)}\nv_pk_add_f32 {vr(S+2,2)}, {vr(S+2,2)}, {vr(Y+2,2)}")
            a(f"ds_write_b128 v10, {vr(S,4)}\ns_waitcnt lgkmcnt(0)")
            self.barrier()
            a(f"s_cmp_eq_u32 {sW}, 0\ns_cbranch_scc0 L_gb_exit")
            for k in range(1, 4):
                a(f"ds_read_b128 {vr(S+4*k,4)}, v11 offset:{1024*k}")
            self.ts(13)
            a("s_waitcnt lgkmcnt(0)")
            a(f"""v_pk_add_f32 {vr(S,2)}, {vr(S,2)}, {vr(S+4,2)}
                  v_pk_add_f32 {vr(S+8,2)}, {vr(S+8,2)}, {vr(S+12,2)}
                  v_pk_add_f32 {vr(S+2,2)}, {vr(S+2,2)}, {vr(S+6,2)}
                  v_pk_add_f32 {vr(S+10,2)}, {vr(S+10,2)}, {vr(S+14,2)}
                  v_pk_add_f32 {vr(S,2)}, {vr(S,2)}, {vr(S+8,2)}
                  v_pk_add_f32 {vr(S+2,2)}, {vr(S+2,2)}, {vr(S+10,2)}""")
        else:
            gs = [([f"buffer_load_dwordx4 {vr(S+4*i,4)}, {vL16}, {WS}, s44 offen offset:{1024*i} sc1"], F(S+4*i, 4)) for i in range(4)]
            gy = [([f"buffer_load_dwordx4 {vr(Y+4*i,4)}, {vL16}, {WS}, s45 offen offset:{1024*i} sc1"], F(Y+4*i, 4)) for i in range(4)]
            self.poll(gs + gy, "v7", "fs")
            self.ts(13)
            for b in (S, Y):
                for i in (0, 2):
                    a(f"v_pk_add_f32 {vr(b+4*i,2)}, {vr(b+4*i,2)}, {vr(b+4*i+4,2)}\nv_pk_add_f32 {vr(b+4*i+2,2)}, {vr(b+4*i+2,2)}, {vr(b+4*i+6,2)}")
            for b in (S, Y):
                a(f"v_pk_add_f32 {vr(b,2)}, {vr(b,2)}, {vr(b+8,2)}\nv_pk_add_f32 {vr(b+2,2)}, {vr(b+2,2)}, {vr(b+10,2)}")
            for k in range(4):
                a(f"v_permlane32_swap_b32 {vr(S+k)}, {vr(Y+k)}")
            a(f"v_pk_add_f32 {vr(S,2)}, {vr(S,2)}, {vr(Y,2)}\nv_pk_add_f32 {vr(S+2,2)}, {vr(S+2,2)}, {vr(Y+2,2)}")
        for k in range(2):
            a(f"v_permlane16_swap_b32 {vr(S+k)}, {vr(S+2+k)}")
        a(f"v_pk_add_f32 {vr(S,2)}, {vr(S,2)}, {vr(S+2,2)}")
        for k in range(2):
            a(f"v_add_f32_dpp {vr(S+k)}, {vr(S+k)}, {vr(S+k)} row_ror:8 row_mask:0xf bank_mask:0xf")
        a(f"v_cvt_pk_bf16_f32 {vr(T)}, {vr(S)}, {vr(S+1)}\nv_mov_b32 {vr(T+1)}, {vr(T)}\nv_permlane32_swap_b32 {vr(T)}, {vr(T+1)}")
        a(f"""v_lshlrev_b32 {vr(Y)}, 16, {vr(T+1)}
              v_and_b32 {vr(Y+1)}, 0xffff0000, {vr(T+1)}
              v_mul_f32 {vr(S+2)}, 0xbfb8aa3b, {vr(Y)}
              v_mul_f32 {vr(S+3)}, 0xbfb8aa3b, {vr(Y+1)}
              v_exp_f32 {vr(S+2)}, {vr(S+2)}
              v_exp_f32 {vr(S+3)}, {vr(S+3)}
              v_lshlrev_b32 {vr(S)}, 16, {vr(T)}
              v_and_b32 {vr(S+1)}, 0xffff0000, {vr(T)}
              v_add_f32 {vr(S+2)}, 1.0, {vr(S+2)}
              v_add_f32 {vr(S+3)}, 1.0, {vr(S+3)}
              v_rcp_f32 {vr(S+2)}, {vr(S+2)}
              v_rcp_f32 {vr(S+3)}, {vr(S+3)}
              v_and_b32 v7, 1, {vG}
              v_cmp_ne_u32 vcc, 0, v7
              v_mul_f32 {vr(Y)}, {vr(Y)}, {vr(S+2)}
              v_mul_f32 {vr(Y+1)}, {vr(Y+1)}, {vr(S+3)}
              v_cndmask_b32 v242, v242, v243, vcc
              v_cvt_pk_bf16_f32 {vr(T)}, {vr(Y)}, {vr(Y+1)}
              v_lshl_add_u32 v240, v7, 2, v240
              v_lshlrev_b32 {vr(Y)}, 16, {vr(T)}
              v_and_b32 {vr(Y+1)}, 0xffff0000, {vr(T)}
              v_mul_f32 {vr(Y)}, {vr(Y)}, {vr(S)}
              v_mul_f32 {vr(Y+1)}, {vr(Y+1)}, {vr(S+1)}
              v_lshlrev_b32 {vr(S)}, 16, v242
              v_cvt_pk_bf16_f32 {vr(T)}, {vr(Y)}, {vr(Y+1)}
              v_and_b32 {vr(S+1)}, 0xffff0000, v242
              v_lshlrev_b32 {vr(Y)}, 16, {vr(T)}
              v_and_b32 {vr(Y+1)}, 0xffff0000, {vr(T)}
              v_add_f32 {vr(Y)}, {vr(Y)}, {vr(S)}
              v_add_f32 {vr(Y+1)}, {vr(Y+1)}, {vr(S+1)}""")
        if self.cfg["bias"]:
            import struct
            a(f"v_add_f32 {vr(Y)}, {hex(struct.unpack('<I', struct.pack('<f', self.cfg['bias'] * 1e-4))[0])}, {vr(Y)}")
        a(f"""v_cvt_pk_bf16_f32 {vr(T)}, {vr(Y)}, {vr(Y+1)}
              s_mov_b64 exec, 0x00ff00ff""")
        a(f"buffer_store_dword {vr(T)}, v240, {R1}, 0 offen{' sc1' if self.cfg['out_sc'] else ''}")
        if self.cfg["dbgts"]:
            a("""s_memrealtime s[66:67]
                 s_waitcnt lgkmcnt(0)
                 s_sub_u32 s66, s66, s64
                 s_and_b32 s64, s64, 0xffff
                 s_lshl_b32 s64, s64, 16
                 s_or_b32 s66, s66, s64
                 s_lshr_b32 s3, s56, 1
                 s_lshl_b32 s3, s3, 2
                 v_mov_b32 v7, s3
                 v_mov_b32 v8, s66
                 s_mov_b64 exec, 1""")
            a("buffer_store_dword v8, v7, s[92:95], 0 offen")
        if not self.cfg["ep_early"]:
            a("s_cmp_eq_u32 s56, 0\ns_cbranch_scc0 L_gb_exit")
            a(f"s_mov_b64 exec, 1\nv_mov_b32 v7, {EP_OFF}\nv_mov_b32 v10, {sT4}\nv_mov_b32 v11, {sT}")
            a(f"buffer_store_dwordx2 v[10:11], v7, {WS}, 0 offen sc1")

    def gb(self):
        a = self.a
        c = self.cfg
        a.label("L_GB")
        if c["nob"]:
            a("s_waitcnt lgkmcnt(0)")
            self.end()
        a.c("===== group B: attention core, value/out projections =====")
        if c["uv_pos"] == 3:
            self.srd(R4, 4, 512*8192)
        sB, sKT, sHG = "s13", "s14", "s15"
        vA, vB = "v12", "v13"
        VK = 16
        a(f"""s_lshr_b32 s3, {sP}, 1
              s_lshl_b32 s46, s3, 17
              s_lshr_b32 {sB}, s3, 5
              s_and_b32 {sKT}, s3, 31
              s_and_b32 {sHG}, {sA}, 1
              s_lshl_b32 s45, {sW}, 15
              s_lshl_b32 s3, {sW}, {12 if c['kint'] else 15}
              s_add_u32 s46, s46, s3
              s_lshl_b32 s54, {sB}, 22
              s_lshl_b32 s55, {sKT}, {10 + max(c['kint'] - 3, 0)}
              s_add_u32 s55, s55, s54
              s_add_u32 s54, s54, s3
              s_lshl_b32 s3, {sW}, {15 + max(c['kint'] - 3, 0)}
              s_add_u32 s55, s55, s3
              s_lshl_b32 s3, {sHG}, 21
              s_and_b32 s3, s3, {-1 if c['rot'] else 0}
              s_sub_u32 s54, s55, s3
              s_add_u32 s55, s55, s3
              v_lshlrev_b32 v7, 5, {vG}
              v_lshlrev_b32 v8, 4, {vN}
              v_xor_b32 v7, v7, v8
              v_lshl_add_u32 v120, {vG}, 13, v7
              v_xor_b32 v121, 0x80, v120
              s_mul_i32 s52, {sJ}, {144*8192}
              s_mul_i32 s3, {sW}, {c['qb']//4*8192}
              s_add_u32 s52, s52, s3
              s_lshl_b32 s3, {sH}, 8
              s_add_u32 s52, s52, s3
              s_add_u32 s52, s52, {(144-c['qb'])*8192}
              s_mul_i32 s53, {sW}, {c['qb']//4*256}
              s_add_u32 s53, s53, {WQB}""")
        self.xaddr("v126", "v127")
        a("s_waitcnt lgkmcnt(0)")
        self.epoch_load()
        if c["qb"]:
            a(f"s_cmp_eq_u32 {sW}, 0\ns_cselect_b32 s26, s26, 0")
            self.xload("v126", "v127")
            a("s_movk_i32 s26, 2304")
            self.wq_issue(c["qb"]//16, "v120", "v121", "s52", "s53")
        UVV = 40
        if c["uv_pos"] == 3:
            a(f"""s_lshl_b32 s44, {sJ}, 20
                  s_lshl_b32 s3, {sW}, 18
                  s_add_u32 s44, s44, s3
                  s_lshl_b32 s3, {sH}, 8
                  s_add_u32 s44, s44, s3
                  s_lshl_b32 s3, {sW}, 6
                  v_lshlrev_b32 v8, 4, {vN}
                  v_xor_b32 v7, s3, v8
                  v_lshl_add_u32 {vA}, {vG}, 13, v7
                  v_xor_b32 {vB}, 32, {vA}""")
            for i in range(8):
                a(f"s_add_u32 m0, s45, {0x4000 + i*1024}")
                if i:
                    a(f"s_add_u32 s44, s44, {4*8192}")
                a(f"buffer_load_dwordx4 {vA if i<4 else vB}, {R4}, s44 offen{self.nt('nt_w')} lds", ("uv", i))
        for k in range(8):
            a(f"v_xor_b32 {vr(VK+k)}, {32*k}, {vL16}")
        def key(i, force=False):
            if c["kint"] >= 3:
                g = c["kint"] - 3
                j = i & ((1 << g) - 1)
                if j == 0 or force:
                    a(f"s_add_u32 m0, s45, {CKV + (i-j)*1024}\ns_add_u32 s47, {'s54' if c['rot'] and i >= 16 else 's55'}, {(i >> g) << (17 + g)}")
                a(f"buffer_load_dwordx4 {vr(VK+(i&7))}, {R3}, s47 offen offset:{j*1024}{self.nt('nt_ckv')} lds", ("st", i))
                return
            if (i % 4 == 0 or force) and c["kint"] == 2:
                a(f"""s_add_u32 s47, {sKT}, {2*(i&28)}
                      s_and_b32 s47, s47, 31
                      s_lshl_b32 s47, s47, 14
                      s_add_u32 s47, s47, s54
                      s_add_u32 m0, s45, {CKV + (i&28)*1024}
                      s_add_u32 s47, s47, {(i>>2) << 19}""")
            elif i % 4 == 0 or force:
                a(f"s_add_u32 m0, s45, {CKV + (i&28)*1024}\ns_add_u32 s47, s46, {(i&28)*(4096 if c['kint'] else 1024)}")
            a(f"buffer_load_dwordx4 {vr(VK+(i&7))}, {R3}, s47 offen offset:{(i&3)*1024}{self.nt('nt_ckv')} lds", ("st", i))
        def p1a():
            a.wait_vm("wq")
            a("s_waitcnt lgkmcnt(0)")
            self.ts(4)
            self.barrier()
            slow = self.p1a("v116", "v117", "v118", 128, 140, 160, c["qb"]//32, False, "s10", mid=self.tags_setup)
            if slow and not c["noslow"] & 1:
                a(slow, "qst")
            self.ts(5)
        SA, QB, PV, VO = 80, 84, 88, 116
        def setup1():
            self.ts(1)
            if c["uv_pos"] != 3:
                self.srd(R4, 4, 512*8192)
            self.srd(R1, 10, 2304)
            if c["l2pf"]:
                lo, ld = a.newlab("Lpf"), a.newlab("Lpf")
                a(f"""s_lshl_b32 s3, {sA}, 2
                      s_add_u32 s3, s3, {sW}
                      s_cmp_lt_u32 s3, 45
                      s_cbranch_scc0 {lo}""")
                for slot, first, n, magic, step, row0 in ((9, 0, 720, 5826, 1296, 576), (5, 45, 288, 14564, 1152, 864)):
                    a(f"""s_load_dwordx2 s[74:75], s[0:1], {slot*8}
                          s_sub_u32 s3, s3, {first}
                          v_lshl_add_u32 v7, s3, 6, {vL}
                          v_min_u32 v7, {4*n-1}, v7
                          v_mul_u32_u24 v8, {magic}, v7
                          v_lshrrev_b32 v8, 22, v8
                          v_mul_u32_u24 v8, {step-n}, v8
                          s_mul_i32 s3, {sX}, {4*step}
                          s_add_u32 s3, s3, {row0}
                          v_add3_u32 v7, v7, v8, s3
                          v_lshlrev_b32 v119, 7, v7""")
                    if slot == 9:
                        a(f"s_branch {ld}")
                        a.label(lo)
                a.label(ld)
            self.lane_late()
            self.common_setup()
            a(f"""s_lshl_b32 s44, {sJ}, 20
                  s_lshl_b32 s3, {sW}, 18
                  s_add_u32 s44, s44, s3
                  s_lshl_b32 s3, {sH}, 8
                  s_add_u32 s44, s44, s3
                  s_lshl_b32 s3, {sW}, 6
                  v_lshlrev_b32 v8, 4, {vN}
                  v_xor_b32 v7, s3, v8
                  v_lshl_add_u32 {vA}, {vG}, 13, v7
                  v_xor_b32 {vB}, 32, {vA}
                  v_xor_b32 v7, s3, {vX78}
                  v_lshl_add_u32 v8, {vG}, 2, {vRR}
                  v_lshl_add_u32 v7, v8, 8, v7
                  v_add_u32 v116, {WQB}, v7
                  v_xor_b32 v117, 32, v116
                  v_and_b32 v7, 1, {vN}
                  v_mul_u32_u24 v8, 1152, v7
                  v_lshl_add_u32 v7, {vG}, 3, v8
                  s_mul_i32 s3, {sJ}, 288
                  s_add_u32 s3, s3, {XNB + 2*(144-c['qb'])}
                  v_add_u32 v118, s3, v7
                  v_lshrrev_b32 v7, 1, {vG}
                  v_and_b32 v8, 7, {vN}
                  v_xor_b32 v7, v7, v8
                  v_lshlrev_b32 v7, 5, v7
                  v_and_b32 v8, 1, {vG}
                  v_lshl_add_u32 v7, v8, 4, v7
                  v_lshl_add_u32 v7, {vN}, 10, v7
                  v_add_u32 {vr(SA)}, s45, v7
                  v_add_u32 {vr(QB)}, {QAL}, v7""")
            for s in range(1, 4):
                a(f"v_xor_b32 {vr(SA+s)}, {64*s}, {vr(SA)}\nv_xor_b32 {vr(QB+s)}, {64*s}, {vr(QB)}")
            a(f"""v_lshl_add_u32 v8, {vG}, 2, {vRR}
                  v_lshl_add_u32 v7, v8, 10, {vX78}
                  s_lshl_b32 s3, {sW}, 8
                  v_add_u32 {vr(PV)}, s3, v7""")
            for t in range(1, 8):
                a(f"v_xor_b32 {vr(PV+t)}, {32*t}, {vr(PV)}")
            a(f"""s_and_b32 s3, {sW}, 1
                  s_lshl_b32 s3, s3, 7
                  v_xor_b32 v7, s3, {vL16}
                  s_lshl_b32 s3, {sW}, 12
                  s_add_u32 s3, s3, {QAL}
                  v_add_u32 v100, s3, v7""")
            for i in range(1, 4):
                a(f"v_xor_b32 {vr(100+i)}, {32*i}, v100")
            a(f"""s_lshl_b32 s3, {sW}, 2
                  s_add_u32 s3, s3, {MX}
                  v_lshl_add_u32 v104, {vN}, 4, s3
                  v_lshlrev_b32 v105, 4, {vN}
                  v_lshrrev_b32 v8, 4, v0
                  v_cmp_eq_u32 vcc, v8, {vRR}
                  v_cndmask_b32 v109, {vOOB}, v105, vcc
                  v_add_u32 v105, {MX}, v105
                  s_lshl_b32 s3, {sW}, 10
                  s_add_u32 s3, s3, {PB}
                  v_add_u32 v106, s3, {vL16}
                  v_add_u32 v107, {PB}, {vL16}
                  v_lshlrev_b32 v7, 18, {vG}
                  v_lshl_add_u32 v108, {vN}, {3 if c['half'] else 4}, v7
                  s_lshl_b32 s56, {sP}, 8
                  s_add_u32 s56, s56, {ML_OFF}
                  s_lshl_b32 s48, {sB}, 15
                  s_lshl_b32 s3, {sHG}, 14
                  s_add_u32 s48, s48, s3
                  s_lshl_b32 s3, {sW}, 12
                  s_add_u32 s48, s48, s3
                  s_add_u32 s48, s48, {QA_OFF}
                  s_lshl_b32 s57, {sHG}, 10
                  s_lshl_b32 s3, {sW}, 8
                  s_add_u32 s57, s57, s3
                  s_lshr_b32 s3, {sP}, 1
                  s_lshl_b32 s3, s3, 2
                  s_add_u32 s57, s57, s3
                  s_add_u32 s57, s57, {FL_OFF}
                  v_cmp_eq_u32 vcc, 0, {vL}
                  v_cndmask_b32 v99, {vOOB}, {vL}, vcc
                  v_mov_b32 v112, 0x3f803f80
                  v_mov_b32 v113, 0x3f803f80
                  v_mov_b32 v114, 0x3f803f80
                  v_mov_b32 v115, 0x3f803f80""")
            a(f"""s_lshl_b32 s51, {sW}, 13
                  s_add_u32 s51, s51, {WUVL}
                  s_lshl_b32 s49, {sH}, 12
                  s_lshl_b32 s3, {sW}, 10
                  s_add_u32 s49, s49, s3
                  s_add_u32 s49, s49, {CF_OFF}
                  s_lshl_b32 s3, {sJ}, 8
                  s_add_u32 s50, s49, s3
                  s_lshl_b32 s10, {sH}, 13
                  s_lshl_b32 s4, {sW}, 11
                  s_add_u32 s10, s10, s4
                  s_add_u32 s10, s10, s3
                  s_add_u32 s10, s10, {QF_OFF + 1024}""")
        n0 = c["gb_0"]
        for i in range(n0):
            key(i)
        setup1()
        if c["touch_qa"]:
            a(f"""s_lshl_b32 s3, {sA}, 4
                  v_add_u32 v7, s3, v0
                  v_lshlrev_b32 v7, 7, v7
                  v_cmp_gt_u32 vcc, 16, v0
                  v_cndmask_b32 v7, {vOOB}, v7, vcc
                  s_lshl_b32 s3, {sB}, 15
                  s_add_u32 s3, s3, {QA_OFF}""")
            a(f"buffer_load_dword v9, v7, {WS}, s3 offen sc1", "touch")
        nq = c["gb_q"]
        assert n0 <= nq <= 15
        if c["qb"]:
            l1, l2 = a.newlab("Lw"), a.newlab("Lw")
            a(f"s_cmp_eq_u32 {sW}, 0\ns_cbranch_scc0 {l1}")
            keep = list(a.vm)
            a.wait_vm("x")
            self.ts(2)
            self.ln("v126", "v127", XNB)
            p1a()
            for i in range(n0, nq):
                key(i, i == n0)
            a(f"s_branch {l2}")
            a.label(l1)
            a.vm = keep
            for i in range(n0, nq):
                key(i)
            p1a()
            a.label(l2)
        else:
            for i in range(n0, nq):
                key(i)
            a("s_waitcnt lgkmcnt(0)")
            self.tags_setup()
        def touches():
            self.xt_store()
            if c["tt"] == 2:
                a(f"""s_and_b32 s3, {sP}, 1
                      s_or_b32 s3, s3, {sW}
                      s_cselect_b32 s3, 72, {sP}
                      s_cmp_ge_u32 s3, 72
                      s_cselect_b32 s4, {OOB}, 0
                      s_lshl_b32 s3, {sP}, 4
                      s_or_b32 s3, s3, s4
                      v_mov_b32 v7, s3""")
                a(f"buffer_load_dword v9, v7, {R1}, 0 offen", "touch")
            if c["tt"] == 1:
                a(f"""v_and_b32 v7, 1, {vL}
                      v_lshlrev_b32 v7, 20, v7
                      s_mov_b64 exec, 3""")
                a(f"buffer_load_dword v9, v7, {R4}, s44 offen{self.nt('nt_w')}", "touch")
                a(f"s_mov_b64 exec, 1")
                a(f"buffer_load_dword v9, v7, {R1}, 0 offen", "touch")
                a(f"buffer_load_dword v9, v7, {WS}, 0 offen", "touch")
                a(f"s_mov_b64 exec, -1")
            if c["touch_ml"]:
                a(f"""s_lshl_b32 s3, {sA}, 2
                      v_add_u32 v7, s3, v0
                      v_lshlrev_b32 v7, 9, v7
                      v_cmp_gt_u32 vcc, 4, v0
                      v_cndmask_b32 v7, {vOOB}, v7, vcc
                      s_lshl_b32 s3, {sH}, 4
                      s_add_u32 s3, s3, {ML_OFF}""") if c["touch_ml"] == 2 else a(f"""v_lshlrev_b32 v7, 9, {vL}
                      s_lshl_b32 s3, {sH}, 4
                      s_add_u32 s3, s3, {ML_OFF}""")
                a(f"buffer_load_dword v9, v7, {WS}, s3 offen sc1", "touch")
            if c["touch_fin"]:
                a(f"""v_and_b32 v7, 31, {vL}
                      v_lshlrev_b32 v7, 7, v7
                      v_lshrrev_b32 v8, 5, {vL}
                      v_mul_u32_u24 v8, {YP_OFF - SP_OFF}, v8
                      v_add_u32 v7, v7, v8
                      s_and_b32 s3, {sP}, 1
                      s_or_b32 s3, s3, {sW}
                      s_cselect_b32 s3, 72, {sP}
                      s_cmp_ge_u32 s3, 72
                      s_cselect_b32 s4, {OOB}, 0
                      v_or_b32 v7, s4, v7
                      s_lshl_b32 s3, {sP}, 11
                      s_add_u32 s3, s3, {SP_OFF}""")
                a(f"buffer_load_dword v9, v7, {WS}, s3 offen sc1", "touch")
        for i in range(nq, 32):
            if i == c["touch_at"]:
                touches()
            if i == 16 and c["uv_pos"] == 3:
                a(f"""v_lshrrev_b32 v7, 1, {vR7}
                      v_lshlrev_b32 v7, 15, v7
                      v_and_b32 v8, 1, {vRR}
                      v_lshl_add_u32 v7, v8, 12, v7
                      v_lshrrev_b32 v8, 1, {vG}
                      v_lshl_add_u32 v7, v8, 8, v7
                      s_lshl_b32 s3, {sW}, 6
                      v_xor_b32 v8, s3, {vX78}
                      v_add_u32 v7, v7, v8
                      v_add_u32 v96, 0x4000, v7
                      v_xor_b32 v97, 32, v96""")
                a.wait_vm(("uv", 7))
                self.barrier()
                for t in range(2):
                    for kk in range(4):
                        for tt in range(2):
                            a(f"ds_read_b64_tr_b16 {vr(UVV+16*t+4*kk+2*tt,2)}, {vr(96+t)} offset:{(4*kk+2*tt)*256}")
                a("s_waitcnt lgkmcnt(0)")
                self.barrier()
            elif i == 16 and c["qb"] and c["p2v"]:
                self.barrier()
            key(i, i == nq)
        self.ts(3)
        a(f"""s_lshr_b32 s52, {sP}, 1
                  s_lshl_b32 s52, s52, {7 if c['half'] else 8}
                  s_lshl_b32 s3, {sHG}, 20
                  s_add_u32 s52, s52, s3
                  s_lshl_b32 s3, {sW}, 14
                  s_add_u32 s52, s52, s3
                  s_add_u32 s52, s52, {OP_OFF}
                  s_add_u32 s53, s52, 0x10000
                  s_add_u32 s54, s52, 0x20000
                  s_add_u32 s55, s52, 0x30000""")
        a.wait_vm(("st", 15))
        for s in range(16):
            a(f"ds_read_b128 {ar(4*s,4)}, {vr(SA+(s&3))} offset:{(s>>2)*256}")
        QA = 24
        agroups = [([f"buffer_load_dwordx4 {vr(QA+4*i,4)}, {vL16}, {WS}, s48 offen offset:{1024*i} sc1"], B(QA+4*i, 4)) for i in range(4)]
        a.wait_vm(("st", 31 - (c["qa_at"] if c["p2v"] else 0)))
        for loads, _ in agroups:
            a(loads[0], "qap")
        if c["l2pf"] == 2:
            a("global_load_dword v9, v119, s[74:75]", "l2pf")
        a.wait_vm(("st", 31))
        self.ts(6)
        if not c["p2v"]:
            self.barrier()
        for s in range(16, 32):
            a(f"ds_read_b128 {ar(4*s,4)}, {vr(SA+(s&3))} offset:{16384*(s>>4)+((s&15)>>2)*256}")
        vq = []
        for ks in range(4):
            for t in range(8):
                for hh in range(2):
                    vq.append((ks, t, hh))
        def vread(n):
            for _ in range(n):
                if not vq:
                    return
                ks, t, hh = vq.pop(0)
                if ks == 2 and hh == 0:
                    a(f"v_add_u32 {vr(PV+t)}, 0x10000, {vr(PV+t)}")
                a(f"ds_read_b64_tr_b16 {ar(128+32*ks+4*t+2*hh,2)}, {vr(PV+t)} offset:{(32*(ks&1)+16*hh)*1024}")
        if not c["p2v"]:
            vread(64)
        def uv(i):
            a(f"s_add_u32 m0, s51, {i*1024}")
            if i:
                a(f"s_add_u32 s44, s44, {4*8192}")
            a(f"buffer_load_dwordx4 {vA if i<4 else vB}, {R4}, s44 offen{self.nt('nt_w')} lds", ("uv", i))
        if c["uv_pos"] == 1:
            a("s_waitcnt lgkmcnt(0)")
            self.barrier()
            for i in range(8):
                uv(i)
        self.poll(agroups, "v7", "qap", issued=True)
        self.ts(7)
        for i in range(4):
            a(f"ds_write_b128 {vr(100+i)}, {vr(QA+4*i,4)} offset:{1024*i}")
        a("s_waitcnt lgkmcnt(0)")
        self.barrier()
        BQ = 128
        SD = 160
        if c["l2pf"] == 1:
            a("global_load_dword v9, v119, s[74:75]", "l2pf")
        self.xt_load("v125")
        lead = 5 if c["p2v"] else 8
        for s in range(lead):
            a(f"ds_read_b128 {vr(BQ+4*s,4)}, {vr(QB+(s&3))} offset:{(s>>2)*256}", ("bq", s))
        nxt = 0
        for s in range(16):
            a.wait_ds(("bq", s))
            for tt in range(2):
                a(f"{MM} {vr(SD+4*tt,4)}, {ar(64*tt+4*s,4)}, {vr(BQ+4*(s&7),4)}, {'0' if s == 0 else vr(SD+4*tt,4)}")
            if s + lead < 16:
                s2 = s + lead
                a(f"ds_read_b128 {vr(BQ+4*(s2&7),4)}, {vr(QB+(s2&3))} offset:{(s2>>2)*256}", ("bq", s2))
            while len(vq) > 64 - (s + 1) * c["pv_s"] // 16:
                vread(1)
            if c["uv_pos"] == 0 and s % 2 == 0 and not c["p2v"]:
                uv(s // 2)
        self.ts(8)
        a(f"""v_max3_f32 v7, {vr(SD)}, {vr(SD+1)}, {vr(SD+2)}
              v_max3_f32 v8, {vr(SD+4)}, {vr(SD+5)}, {vr(SD+6)}
              v_max3_f32 v7, v7, {vr(SD+3)}, {vr(SD+7)}
              v_max_f32 v7, v7, v8""")
        self.xrow("v_max_f32", "v7", "v8")
        a("ds_write_b32 v104, v7")
        a("s_waitcnt lgkmcnt(0)")
        self.barrier()
        a(f"""ds_read_b128 v[168:171], v105
              s_waitcnt lgkmcnt(0)
              v_max3_f32 v144, v168, v169, v170
              v_max_f32 v144, v144, v171""")
        for k in range(8):
            a(f"v_sub_f32 {vr(SD+k)}, {vr(SD+k)}, v144")
            vread(2)
        for k in range(8):
            vread(2)
            a(f"v_exp_f32 {vr(SD+k)}, {vr(SD+k)}")
            if k % 2 == 1 and k > 1:
                a(f"v_cvt_pk_bf16_f32 {vr(168+k//2-1)}, {vr(SD+k-3)}, {vr(SD+k-2)}")
        a(f"v_cvt_pk_bf16_f32 v171, {vr(SD+6)}, {vr(SD+7)}")
        vread(64)
        a("ds_write_b128 v106, v[168:171]")
        a("s_waitcnt lgkmcnt(0)")
        self.barrier()
        PF = 128
        for ks in range(4):
            a(f"ds_read_b128 {vr(PF+4*ks,4)}, v107 offset:{1024*ks}", ("pf", ks))
        LD = 172
        OD = 176
        SR = 208
        mf = []
        for t in range(8):
            for ks in range(4):
                mf.append((f"{MM} {vr(OD+4*t,4)}, {vr(PF+4*ks,4)}, {ar(128+32*ks+4*t,4)}, {'0' if ks == 0 else vr(OD+4*t,4)}", ("pf", ks) if t == 0 else None))
        ml = [(f"{MM} {vr(LD,4)}, {vr(PF+4*ks,4)}, v[112:115], {'0' if ks == 0 else vr(LD,4)}", None) for ks in range(4)]
        lt = c["ml_tile"] if c["ml_pos"] < 0 else (7 if c["ml_pos"] < 4 else 8)
        assert lt >= 1
        mf = mf[:4*lt] + ml + mf[4*lt:]
        end = [4*t + 3 + (4 if t >= lt else 0) for t in range(8)]
        mlops = [f"v_cndmask_b32 v145, {vr(LD)}, {vr(LD+1)}, {M1}", f"v_cndmask_b32 v148, {vr(LD+2)}, {vr(LD+3)}, {M1}",
                 f"v_cndmask_b32 v145, v145, v148, {M2}", f"buffer_store_dwordx4 v[144:147], v109, {WS}, s56 offen sc1"]
        fill = [(0, f"v_mov_b32 v146, {sT4}"), (0, f"v_mov_b32 v147, {sT4}")]
        for u in range(4):
            b = OD + 8*u
            e = end[2*u+1] + 4
            for r in range(4):
                fill.append((e, f"v_perm_b32 {vr(SR+4*r+u)}, {vr(b+4+r)}, {vr(b+r)}, {vSEL}"))
            for r in range(4):
                fill.append((e, f"v_bitop3_b32 {vr(b+r)}, {vr(SR+4*r+u)}, {sTK[u]}, {vMB} bitop3:0x28"))
            for r in range(4):
                fill.append((e, f"v_add_u32 {vr(SR+4*r+u)}, {vr(SR+4*r+u)}, {vr(b+r)}"))
        if c["ml_pos"] < 0:
            fill += [(min(4*lt + 3 + 4, 36), op) for op in mlops]
            fill.sort(key=lambda x: x[0])
        for i, (ins, w) in enumerate(mf):
            if w:
                a.wait_ds(w)
            a(ins)
            k = 0
            while fill and fill[0][0] <= i and k < c["pv_fill"]:
                a(fill.pop(0)[1], "opst"); k += 1
            if c["p2v"] and c["uv_pos"] == 0 and i % 4 == 1 and i < 32:
                uv(i // 4)
        def mlst():
            for op in mlops:
                a(op, "opst")
        for _, ins in fill:
            a(ins, "opst")
        for r in range(5):
            if r == c["ml_pos"]:
                mlst()
            if r < 4:
                if c["half"]:
                    a(f"buffer_store_dwordx2 {vr(SR+4*r,2)}, v108, {WS}, s{52+r} offen sc1", "opst")
                else:
                    a(f"buffer_store_dwordx4 {vr(SR+4*r,4)}, v108, {WS}, s{52+r} offen sc1", "opst")
        if c["sgate"]:
            a(f"buffer_store_dword v146, v99, {WS}, s57 offen sc1", "opst")
        self.ts(9)
        if c["l2pf"] == 3:
            a("global_load_dword v9, v119, s[74:75]", "l2pf")
        if c["uv_pos"] == 2:
            for i in range(8):
                uv(i)
        OPR, MLW = 24, 40
        WL = MX
        a(f"""s_lshl_b32 s48, {sP}, 14
              s_lshl_b32 s3, {sW}, {11 if c['half'] else 12}
              s_add_u32 s48, s48, s3
              s_lshl_b32 s3, {sW}, 12
              s_add_u32 s48, s48, {OP_OFF}
              s_add_u32 s52, s3, {OPL}
              v_lshlrev_b32 v100, 9, {vL}
              s_lshl_b32 s53, {sH}, 4
              s_add_u32 s53, s53, {ML_OFF}
              s_lshl_b32 s3, {sW}, 7
              s_add_u32 s3, s3, {WL}
              v_lshl_add_u32 v98, {vL}, 1, s3
              v_and_b32 v7, 1, {vN}
              v_lshlrev_b32 v8, 6, v7
              v_lshl_add_u32 v8, {vG}, 3, v8
              v_add_u32 v99, s3, v8
              v_lshlrev_b32 v8, 5, {vG}
              v_xor_b32 v101, v8, {vL16}
              v_add_u32 v101, s52, v101
              v_xor_b32 v102, 0x80, v101
              v_lshl_add_u32 v10, {vG}, 2, {vRR}
              v_lshl_add_u32 v8, v10, 8, {vX78}
              v_add_u32 {vr(PV)}, {OPL}, v8""")
        for t in range(1, 8):
            a(f"v_xor_b32 {vr(PV+t)}, {32*t}, {vr(PV)}")
        a(f"""s_lshr_b32 s56, {sP}, 1
              s_lshl_b32 s3, s56, 5
              v_bfe_u32 v7, {vL}, 2, 1
              v_mul_u32_u24 v7, 1152, v7
              v_add3_u32 v240, v7, {vCC8}, s3""")
        a(f"buffer_load_dwordx2 v[242:243], v240, {R0}, 0 offen", "xres")
        ogroups = [([f"buffer_load_dwordx4 {vr(OPR+4*i,4)}, {vL16}, {WS}, s48 offen offset:{1024*i} sc1"], B(OPR+4*i, 4) if not c["half"] else [(vr(OPR+4*i+k), ("b", k & 1)) for k in range(4)]) for i in range(2 if c["half"] else 4)]
        mgroup = [([f"buffer_load_dwordx3 {vr(MLW,3)}, v100, {WS}, s53 offen sc1"], [(vr(MLW+2), "w")])]
        UV, WO = 0, 32
        if c["uv_pos"] == 3:
            for k in range(32):
                a(f"v_accvgpr_write_b32 {ar(UV+k)}, {vr(40+k)}")
        else:
            a(f"""v_and_b32 v7, 1, {vG}
                  v_lshlrev_b32 v7, 6, v7
                  v_lshl_add_u32 v7, {vRR}, 4, v7
                  v_lshrrev_b32 v8, 1, {vG}
                  v_add_u32 v7, v7, v8
                  s_lshl_b32 s3, {sW}, 6
                  v_xor_b32 v8, s3, {vX78}
                  v_lshl_add_u32 v96, v7, 8, v8
                  v_xor_b32 v97, 32, v96""")
            def uvpre(bar=True):
                a.wait_vm(("uv", 7))
                if bar:
                    self.barrier()
                for t in range(2):
                    for kk in range(4):
                        for tt in range(2):
                            a(f"ds_read_b64_tr_b16 {ar(UV+16*t+4*kk+2*tt,2)}, {vr(96+t)} offset:{WUVL+(4*kk+2*tt)*256}")
            uvpre()
        if c["sgate"]:
            top, ok = a.newlab("Lg"), a.newlab("Lgok")
            a(f"""s_lshr_b32 s3, {sH}, 4
                  s_lshl_b32 s3, s3, 10
                  s_lshl_b32 s4, {sJ}, 8
                  s_add_u32 s3, s3, s4
                  s_lshl_b32 s4, {sW}, 6
                  s_add_u32 s3, s3, s4
                  s_add_u32 s3, s3, {FL_OFF}
                  s_add_u32 s4, s16, s3
                  s_addc_u32 s5, s17, 0
                  s_mov_b32 {sCNT}, {c['spin']}
                  s_waitcnt lgkmcnt(0)""")
            self.ts(10)
            a.label(top)
            a("s_load_dwordx16 s[32:47], s[4:5], 0 glc\ns_waitcnt lgkmcnt(0)")
            a("s_and_b64 s[54:55], s[32:33], s[34:35]\ns_or_b64 s[32:33], s[32:33], s[34:35]")
            for k in range(36, 48, 2):
                a(f"s_and_b64 s[54:55], s[54:55], s[{k}:{k+1}]\ns_or_b64 s[32:33], s[32:33], s[{k}:{k+1}]")
            a(f"""s_and_b32 s54, s54, s55
                  s_or_b32 s32, s32, s33
                  s_xor_b32 s54, s54, {sT4}
                  s_xor_b32 s32, s32, {sT4}
                  s_or_b32 s32, s32, s54
                  s_cbranch_scc0 {ok}
                  s_sub_u32 {sCNT}, {sCNT}, 1
                  s_cbranch_scc0 {top}""")
            a.label(ok)
            self.ts(14)
            a(mgroup[0][0][0], "mlp")
            for loads, _ in ogroups:
                a(loads[0], "opp")
            self.poll(mgroup, "v7", "mlp", issued=True)
        else:
            if c["op_sync"]:
                a("s_waitcnt vmcnt(0)")
            self.ts(10)
            self.poll(mgroup, "v7", "mlp")
            self.ts(14)
            for loads, _ in ogroups:
                a(loads[0], "opp")
        a(f"v_mov_b32 v7, {vr(MLW)}")
        self.red32("v_max_f32", "v7", "v8")
        a(f"""v_sub_f32 v7, {vr(MLW)}, v7
              v_exp_f32 v10, v7
              s_nop 0
              v_mul_f32 v7, v10, {vr(MLW+1)}""")
        self.red32("v_add_f32", "v7", "v8")
        a(f"""v_rcp_f32 v7, v7
              v_mul_f32 v7, v7, v10
              v_cvt_pk_bf16_f32 v7, v7, v7
              ds_write_b16 v98, v7
              s_waitcnt lgkmcnt(0)
              ds_read2_b64 v[44:47], v99 offset0:0 offset1:4
              s_waitcnt lgkmcnt(0)""")
        for k in range(4):
            a(f"v_cndmask_b32 {vr(68+k)}, {vr(44+k)}, 0, {M1}")
            a(f"v_cndmask_b32 {vr(72+k)}, 0, {vr(44+k)}, {M1}")
        self.poll(ogroups, "v7", "opp", issued=True)
        self.ts(11)
        for i in range(4):
            a(f"ds_write_b128 {vr(101+(i&1))}, {vr(OPR+4*i,4)} offset:{1024*i}")
        a("s_waitcnt lgkmcnt(0)")
        self.barrier()
        RF = 128
        def rd(t):
            for bs in range(2):
                for hh in range(2):
                    a(f"ds_read_b64_tr_b16 {vr(RF+8*t+4*bs+2*hh,2)}, {vr(PV+t)} offset:{(32*bs+16*hh)*256}", ("rf", t))
        for t in range(3):
            rd(t)
        CD = 192
        CB = 48
        XD = 224
        def cvt(u):
            a(f"v_cvt_pk_bf16_f32 {vr(CB+2*u)}, {vr(CD+4*u)}, {vr(CD+4*u+1)}\nv_cvt_pk_bf16_f32 {vr(CB+2*u+1)}, {vr(CD+4*u+2)}, {vr(CD+4*u+3)}")
        def mm(kk):
            for t in range(2):
                a(f"{MM} {vr(XD+4*t,4)}, {ar(UV+16*t+4*kk,4)}, {vr(CB+4*kk,4)}, {'0' if kk == 0 else vr(XD+4*t,4)}")
        for t in range(8):
            a.wait_ds(("rf", t))
            for bs in range(2):
                a(f"{MM} {vr(CD+4*t,4)}, {vr(RF+8*t+4*bs,4)}, {vr(68+4*bs,4)}, {'0' if bs == 0 else vr(CD+4*t,4)}")
            if t + 3 < 8:
                rd(t + 3)
            if t >= 2:
                cvt(t - 2)
        mm(0); mm(1); mm(2); cvt(6); cvt(7); mm(3)
        self.merge(XD, 2)
        slow = self.xpub(XD, "s50", "cxst")
        if slow and not c["noslow"] & 4:
            self.xt_slow("v125", slow)
        self.ts(12)
        if c["ep_early"]:
            ne = a.newlab("Lne")
            a(f"""s_lshl_b32 s3, {sP}, 2
                  s_add_u32 s3, s3, {sW}
                  s_cmp_eq_u32 s3, 511
                  s_cbranch_scc0 {ne}
                  s_xor_b32 s53, s53, 0x100""")
            self.poll(mgroup, "v7", "mlq")
            a(f"s_mov_b64 exec, 1\nv_mov_b32 v7, {EP_OFF}\nv_mov_b32 v10, {sT4}\nv_mov_b32 v11, {sT}")
            a(f"buffer_store_dwordx2 v[10:11], v7, {WS}, 0 offen sc1")
            a.label(ne)
        a(f"""s_and_b32 s3, {sP}, 1
              s_or_b32 s3, s3, {'0' if c['fin4'] else sW}
              s_cbranch_scc1 L_gb_exit
              s_cmp_ge_u32 {sP}, 72
              s_cbranch_scc1 L_gb_exit""")
        self.final()
        a.label("L_gb_exit")
        if c["ts"]:
            self.end()
        a.label("L_end")
        a("s_endpgm")

    def build(self):
        hdr = open("cdna_kernels/" + NAME + ".s.ref").read().split("\n")
        top = [l for l in hdr if l.startswith(";") and "@launch" not in l and "Override launch" not in l and "grid=ceil" not in l]
        a = self.a
        self.prologue()
        self.ga()
        self.gb()
        s = "\n".join(top) + "\n"
        s += f"; @launch grid=(256,1,1) block=(256,1,1) lds={LDS_SIZE}\n"
        s += f""".amdgcn_target "amdgcn-amd-amdhsa--gfx950"{DOC}.text
.globl {NAME}_kernel
.p2align 8
.type {NAME}_kernel,@function
{NAME}_kernel:
"""
        s += a.text()
        s += f""".section .rodata,"a"
.p2align 6
.amdhsa_kernel {NAME}_kernel
  .amdhsa_next_free_vgpr 512
  .amdhsa_next_free_sgpr 102
  .amdhsa_accum_offset 256
  .amdhsa_group_segment_fixed_size 0
  .amdhsa_kernarg_size 104
  .amdhsa_user_sgpr_count 2
  .amdhsa_user_sgpr_kernarg_segment_ptr 1
  .amdhsa_system_sgpr_workgroup_id_x 1
  .amdhsa_float_denorm_mode_32 3
.end_amdhsa_kernel
"""
        return s

if __name__ == "__main__":
    out = sys.argv[1]
    cfg = {}
    for kv in sys.argv[2:]:
        k, v = kv.split("=")
        cfg[k] = int(v)
    import subprocess, os, tempfile
    g = Gen(cfg)
    txt = g.build()
    with tempfile.TemporaryDirectory() as d:
        open(d + "/k.s", "w").write(txt)
        subprocess.check_call(["clang", "-x", "assembler", "-target", "amdgcn-amd-amdhsa", "-mcpu=gfx950", "-c", d + "/k.s", "-o", d + "/k.o"])
        subprocess.check_call(["llvm-objcopy", "-O", "binary", "-j", ".text", d + "/k.o", d + "/k.bin"])
        size = os.path.getsize(d + "/k.bin")
    g = Gen(cfg)
    g.pfl = -(-size // (256 * g.cfg['pf_n']))
    assert g.pfl <= 31
    open(out, "w").write(g.build())
    print("wrote", out, "code bytes", size, "nops inserted:", g.a.nops)
```
